```python
import torch

def _softmax(x, axis=-1):
    return torch.softmax(x, dim=axis)
def _gelu(x):
    return torch.nn.functional.gelu(x, approximate="tanh")
def _silu(x):
    return torch.nn.functional.silu(x)
def _sigmoid(x):
    return torch.sigmoid(x)
def _layernorm(x, axis=-1, eps=1e-5):
    m = x.mean(dim=axis, keepdim=True)
    v = x.var(dim=axis, keepdim=True, unbiased=False)
    return (x - m) / torch.sqrt(v + eps)
def _scatter_add(tgt, idx, src, axis=0):
    return tgt.clone().index_add_(axis, idx, src)
def _segment_sum(src, seg, n):
    out = torch.zeros((n,) + src.shape[1:], dtype=src.dtype)
    return out.index_add_(0, seg, src)
def _pad(x, pw):
    flat = tuple(v for pair in reversed(pw) for v in pair)
    return torch.nn.functional.pad(x, flat)

kernel_name = 'sequential_preLN__compressed_kv_cla__glu_gated_swiglu__prompt'

def setup_inputs():

    _w = (lambda a: (lambda t: t.to(torch.bfloat16) if t.is_floating_point() else t)(torch.as_tensor(a)))
    def _A_setup():
        B, H, Sq, Sk, D, M = 1, 32, 2048, 2048, 128, 512
        Dc = 4 * D
        return {
            "x": _w((lambda *s: torch.randn(*s, dtype=torch.bfloat16) * 0.05)(B, Sq, M)),
            "c_kv": _w((lambda *s: torch.randn(*s, dtype=torch.bfloat16) * 0.2)(B, Sk, Dc)),
            "w_q": _w((lambda *s: torch.randn(*s, dtype=torch.bfloat16) * 6.4)(M, H, D) * (M ** -0.5)),
            "w_uk": _w((lambda *s: torch.randn(*s, dtype=torch.bfloat16) * 6.4)(Dc, H, D) * (Dc ** -0.5)),
            "w_uv": _w((lambda *s: torch.randn(*s, dtype=torch.bfloat16) * 0.2)(Dc, H, D) * (Dc ** -0.5)),
            "w_o": _w((lambda *s: torch.randn(*s, dtype=torch.bfloat16) * 0.2)(H, D, M) * ((H * D) ** -0.5)),
        }
    _A_in = _A_setup()

    def _B_setup():
        B, S, D, F = 1, 2048, 512, 1376
        return {
            "x": _w((lambda *s: torch.randn(*s, dtype=torch.bfloat16) * 0.05)(B, S, D)),
            "w1": _w((lambda *s: torch.randn(*s, dtype=torch.bfloat16) * 0.2)(D, F) * (2.0 / D) ** 0.5),
            "w3": _w((lambda *s: torch.randn(*s, dtype=torch.bfloat16) * 0.2)(D, F) * (2.0 / D) ** 0.5),
            "w2": _w((lambda *s: torch.randn(*s, dtype=torch.bfloat16) * 0.2)(F, D) * (2.0 / F) ** 0.5),
        }
    _B_in = _B_setup()

    return {
        "A_x": _A_in["x"],
        "A_c_kv": _A_in["c_kv"],
        "A_w_q": _A_in["w_q"],
        "A_w_uk": _A_in["w_uk"],
        "A_w_uv": _A_in["w_uv"],
        "A_w_o": _A_in["w_o"],
        "B_x": _B_in["x"],
        "B_w1": _B_in["w1"],
        "B_w3": _B_in["w3"],
        "B_w2": _B_in["w2"],
    }

def reference(A_x, A_c_kv, A_w_q, A_w_uk, A_w_uv, A_w_o, B_x, B_w1, B_w3, B_w2):
    def _A_ref(x, c_kv, w_q, w_uk, w_uv, w_o):
        B, Sq, M = x.shape[0], x.shape[1], x.shape[2]
        Sk = c_kv.shape[1]
        H, D = w_q.shape[1], w_q.shape[2]
        q = torch.einsum("bqm,mhd->bhqd", x, w_q)
        k = torch.einsum("bkc,chd->bhkd", c_kv, w_uk)
        v = torch.einsum("bkc,chd->bhkd", c_kv, w_uv)
        scores = torch.einsum("bhqd,bhkd->bhqk", q, k) * (D ** -0.5)
        off = Sk - Sq
        qi = torch.arange(Sq)[:, None]
        kj = torch.arange(Sk)[None, :]
        cmask = kj <= (qi + off)
        scores = torch.where(cmask[None, None], scores, -1e9)
        p = _softmax(scores, axis=-1)
        ctx = torch.einsum("bhqk,bhkd->bhqd", p, v)
        return torch.einsum("bhqd,hdm->bqm", ctx, w_o)

    def _B_ref(x, w1, w3, w2):
        gate = torch.einsum("bsd,df->bsf", x, w1)
        up = torch.einsum("bsd,df->bsf", x, w3)
        h = _silu(gate) * up
        out = torch.einsum("bsf,fd->bsd", h, w2)
        return out

    x = A_x
    h = x + _A_ref(_layernorm(x, axis=-1), A_c_kv, A_w_q, A_w_uk, A_w_uv, A_w_o)
    h2 = h + _B_ref(_layernorm(h, axis=-1), B_w1, B_w3, B_w2)
    return h2
```

```python
HEADER_COMMENT = """; Kernarg layout for this problem (104 bytes, ptrs only, base s[0:1]):
"""
ARG = dict(x=0, ckv=8, wq=16, wuk=24, wuv=32, wo=40, bx=48, w1=56, w3=64, w2=72, out=80, dbg=88, ws=96)


def v(n, cnt=1):
    return f"v{n}" if cnt == 1 else f"v[{n}:{n+cnt-1}]"


def a(n, cnt=1):
    return f"a{n}" if cnt == 1 else f"a[{n}:{n+cnt-1}]"


def s(n, cnt=1):
    return f"s{n}" if cnt == 1 else f"s[{n}:{n+cnt-1}]"


class Kernel:
    def __init__(self, name, grid, block, lds, vgpr, agpr=0, sgpr=102):
        self.name, self.grid, self.block, self.lds = name, grid, block, lds
        self.vgpr, self.agpr, self.sgpr = vgpr, agpr, sgpr
        self.lines = []
        self._lab = 0

    def __call__(self, text):
        for ln in text.strip("\n").split("\n"):
            self.lines.append("    " + ln.strip() if not ln.strip().endswith(":") else ln.strip())

    def label(self, base):
        self._lab += 1
        return f"L_{self.name}_{base}_{self._lab}"

    def launch_line(self):
        g, b = self.grid, self.block
        return f"; @launch kernel={self.name} grid=({g},1,1) block=({b},1,1) lds={self.lds}"

    def text(self):
        head = f".globl {self.name}\n.p2align 8\n.type {self.name},@function\n{self.name}:\n"
        return head + "\n".join(self.lines) + "\n"

    def desc(self):
        acc = (self.vgpr + 3) // 4 * 4
        nfv = acc + self.agpr if self.agpr else self.vgpr
        return (f".p2align 6\n.amdhsa_kernel {self.name}\n"
                f"  .amdhsa_next_free_vgpr {nfv}\n  .amdhsa_next_free_sgpr {self.sgpr}\n"
                f"  .amdhsa_accum_offset {acc}\n  .amdhsa_group_segment_fixed_size 0\n"
                f"  .amdhsa_kernarg_size 104\n  .amdhsa_user_sgpr_count 2\n"
                f"  .amdhsa_user_sgpr_kernarg_segment_ptr 1\n  .amdhsa_system_sgpr_workgroup_id_x 1\n"
                f".end_amdhsa_kernel\n")


def build_file(kernels, launches=None):
    launches = launches or kernels
    out = HEADER_COMMENT
    out += "\n".join(k.launch_line() for k in launches) + "\n"
    out += '.amdgcn_target "amdgcn-amd-amdhsa--gfx950"\n.text\n'
    for k in kernels:
        out += k.text()
    out += '.section .rodata,"a"\n'
    for k in kernels:
        out += k.desc()
    return out
```

```python
from asmlib import *


class K(Kernel):
    def __init__(self, *a, **kw):
        super().__init__(*a, **kw)
        self.vm = []
        self.lg = []
        self.clock = 0
        self.lgt = {}
        self.AGE = 10

    def text(self):
        import hazard
        n0 = len(self.lines)
        self.lines = [l for l in hazard.autofix(self.lines) if l.strip()]
        return super().text()

    def vmop(self, text, tag=None):
        self(text); self.vm.append(tag)

    def lgop(self, text, tag=None):
        self(text); self.lg.append(tag); self.lgt[tag] = self.clock

    def _wait(self, q, tags, name, mx):
        if not isinstance(tags, list): tags = [tags]
        idx = max((i for i, t in enumerate(q) if t in tags), default=-1)
        if idx < 0: return
        if name == "lgkmcnt":
            while idx + 1 < len(q) and self.clock - self.lgt.get(q[idx + 1], self.clock) >= self.AGE: idx += 1
        n = min(len(q) - 1 - idx, mx)
        self(f"s_waitcnt {name}({n})")
        del q[:len(q) - n]

    def vmwait(self, tags): self._wait(self.vm, tags, "vmcnt", 63)
    def lgwait(self, tags): self._wait(self.lg, tags, "lgkmcnt", 15)

    def vmdrain(self):
        self("s_waitcnt vmcnt(0)"); self.vm = []

    def lgdrain(self):
        self("s_waitcnt lgkmcnt(0)"); self.lg = []

    def stream(self, mfmas, fill):
        def put(items):
            for it in items:
                if callable(it): it()
                else: self(it)
        put(fill.get(-1, []))
        for i, (pre, text) in enumerate(mfmas):
            put(pre)
            self(text)
            self.clock += 1
            put(fill.get(i, []))
        extra = [i for i in fill if i >= len(mfmas)]
        for i in sorted(extra): put(fill[i])


TRANS = ("v_exp_f32", "v_log_f32", "v_rcp_f32", "v_rsq_f32", "v_sqrt_f32")


class It:
    def __init__(s, x, kind=None, lo=None, hi=None):
        s.x, s.lo, s.hi = x, lo, hi
        if kind is None:
            assert isinstance(x, str)
            first = x.strip().split()[0]
            kind = "v" if first.startswith("v_") else "b" if first.startswith("s_cbranch") else "s"
        s.kind = kind
        s.cost = 4
        if isinstance(x, str):
            lines = [l.strip() for l in x.strip().split("\n") if not l.strip().endswith(":")]
            s.cost = sum(8 if l.startswith(TRANS) else 4 for l in lines)


def window(items, lo, hi, kind=None):
    out = []
    n = len(items)
    for j, x in enumerate(items):
        it = x if isinstance(x, It) else It(x, kind)
        it.due = lo + (j * (hi - lo + 1)) // max(n, 1)
        it.lo = lo if it.lo is None else max(it.lo, lo)
        it.due = max(it.due, it.lo)
        it.hi = max(hi, it.lo) if it.hi is None else it.hi
        out.append(it)
    return out


def pack(k, mfmas, streams, ahead=3):
    qs = [list(s_) for s_ in streams if s_]
    n = len(mfmas)

    def put(it):
        it.x() if callable(it.x) else k(it.x)

    def head(kinds, g, slack):
        best = None
        for q in qs:
            if q and q[0].kind in kinds and q[0].lo <= g and q[0].due <= g + slack:
                if best is None or q[0].due < best[0].due: best = q
        return best

    for g, (pre, text) in enumerate(mfmas):
        for p in pre:
            p() if callable(p) else k(p)
        k(text); k.clock += 1
        t = 4
        if g + 1 < n:
            m0 = len(k.lines)
            for p in mfmas[g + 1][0]:
                if callable(p): p()
            t += 4 * (len(k.lines) - m0)
        q = head("b", g, 0)
        if q: it = q.pop(0); put(it); t = max(t + 4, 8) + it.cost - 4
        while True:
            q = head("s", g, 0)
            if not q or (t > 4 and q[0].hi > g): break
            it = q.pop(0); put(it); t += it.cost
        q = head("d", g, 0)
        if q and (t <= 8 or q[0].hi <= g):
            put(q.pop(0)); t += 20
        nv = head("v", g, ahead)
        vcost = nv[0].cost if nv else 0
        behind = nv is not None and nv[0].due < g - 1
        q = head("r", g, 1)
        if q and t <= 8 and (q[0].due < g - 1 or q[0].hi <= g or (vcost <= 4 and t == 4) or (vcost == 0)):
            put(q.pop(0)); t += 4
            q = head("r", g, 2 if vcost == 0 else -3)
            if q and t <= 8: put(q.pop(0)); t += 4
            t += 4
        while True:
            q = head("v", g, ahead)
            if not q: break
            st = max(t, 8)
            if st + q[0].cost > 16 and q[0].hi > g and not (q[0].due < g - 2 and st < 16): break
            it = q.pop(0); put(it); t = st + it.cost
        for q in qs:
            while q and q[0].hi <= g: put(q.pop(0))
    for q in qs:
        while q: put(q.pop(0))


def spread(fill, items, lo, hi):
    n = len(items)
    for j, it in enumerate(items):
        idx = lo + (j * (hi - lo + 1)) // max(n, 1)
        fill.setdefault(idx, []).append(it)


def mfma(d, A, B, c):
    return f"v_mfma_f32_16x16x32_bf16 {d}, {A}, {B}, {c}"


def srd(k, n, lo, hi, off, size):
    k(f"s_add_u32 s{n}, s{lo}, {off}\ns_addc_u32 s{n+1}, s{hi}, 0\ns_mov_b32 s{n+2}, {size}\ns_mov_b32 s{n+3}, 0x20000")


MB = 1 << 20
WS_K = 0
WS_V = 16 * MB
WS_XN = 32 * MB
WS_CTX = 34 * MB
WS_WO = 50 * MB
WS_W13 = 54 * MB
WS_CS = 57 * MB
WS_W2 = 58 * MB
WS_H = 60 * MB
WS_ST = 62 * MB
WS_HH = 63 * MB
WS_TS = 128 * MB

P = dict(x=36, ckv=38, wq=40, wuk=42, wuv=44, wo=46, bx=48, w1=50, w3=52, w2=54, out=56, dbg=58, ws=60)


def load_args(k, nwg=256):
    k(f"""
    s_cmp_ge_u32 s2, {nwg}
    s_cbranch_scc0 {k.name}_go
    s_endpgm
    {k.name}_go:
    s_load_dwordx16 s[36:51], s[0:1], 0
    s_load_dwordx8 s[52:59], s[0:1], 64
    s_load_dwordx2 s[60:61], s[0:1], 96
    v_lshrrev_b32 v1, 6, v0
    v_and_b32 v0, 63, v0
    v_readfirstlane_b32 s3, v1
    """)


def xlane_sum(k, x, t, steps):
    for st in steps:
        if st == "q1": k(f"s_nop 1\nv_add_f32_dpp v{x}, v{x}, v{x} quad_perm:[1,0,3,2] row_mask:0xf bank_mask:0xf")
        if st == "q2": k(f"s_nop 1\nv_add_f32_dpp v{x}, v{x}, v{x} quad_perm:[2,3,0,1] row_mask:0xf bank_mask:0xf")
        if st == "r4": k(f"s_nop 1\nv_add_f32_dpp v{x}, v{x}, v{x} row_ror:4 row_mask:0xf bank_mask:0xf")
        if st == "r8": k(f"s_nop 1\nv_add_f32_dpp v{x}, v{x}, v{x} row_ror:8 row_mask:0xf bank_mask:0xf")
        if st == "p16": k(f"v_mov_b32 v{t}, v{x}\ns_nop 1\nv_permlane16_swap_b32 v{x}, v{t}\nv_add_f32 v{x}, v{x}, v{t}")
        if st == "p32": k(f"v_mov_b32 v{t}, v{x}\ns_nop 1\nv_permlane32_swap_b32 v{x}, v{t}\nv_add_f32 v{x}, v{x}, v{t}")


def stamp(k, idx, on):
    if not on: return
    k(f"""
    s_memtime s[92:93]
    s_memrealtime s[94:95]
    s_waitcnt lgkmcnt(0)
    v_writelane_b32 v1, s92, {2*idx}
    v_writelane_b32 v1, s94, {2*idx+1}
    """)


def stamp_flush(k, kid, on):
    if not on: return
    srd(k, 96, P['ws'], P['ws'] + 1, WS_TS + kid * 262144, 262144)
    k(f"s_lshl_b32 s92, s2, 2\ns_add_u32 s92, s92, s3\ns_lshl_b32 s92, s92, 8\nv_lshlrev_b32 v0, 2, v0\nv_add_u32 v0, s92, v0")
    k("buffer_store_dword v1, v0, s[96:99], 0 offen")
```

```python
import re, sys

REG = re.compile(r"^(-|abs\()?([vas])(\d+|\[(\d+):(\d+)\])\)?$")
TRANS = ("v_exp_f32", "v_log_f32", "v_rcp_f32", "v_rsq_f32", "v_sqrt_f32", "v_sin_f32", "v_cos_f32", "v_rcp_iflag_f32")


def regs(op):
    op = op.strip()
    if op in ("vcc",): return {("s", "vcc")}
    if op in ("exec",): return {("s", "exec")}
    if op == "m0": return {("s", "m0")}
    m = REG.match(op)
    if not m: return set()
    k = m.group(2)
    if m.group(4): return {(k, i) for i in range(int(m.group(4)), int(m.group(5)) + 1)}
    return {(k, int(m.group(3)))}


class I:
    def __init__(s, line, no):
        s.line, s.no = line, no
        t = line.split(None, 1)
        s.mn = t[0]
        rest = t[1] if len(t) > 1 else ""
        ops = [o.strip() for o in rest.split(",")] if rest else []
        last = ops[-1].split() if ops else []
        s.mods = " ".join(last[1:]) if last else ""
        if ops: ops[-1] = last[0] if last else ""
        s.ops = ops
        mn = s.mn
        s.w, s.r = set(), set()
        s.cls = "other"
        s.ws = 1
        R = [regs(o) for o in ops]
        if mn == "s_nop":
            s.ws = int(ops[0], 0) + 1
        if mn.startswith("v_mfma"):
            s.cls = "mfma"; s.D, s.A, s.B, s.C = R[0], R[1], R[2], R[3]
            s.w = R[0]; s.r = R[1] | R[2] | R[3]
            s.passes = 8 if "32x32x16" in mn else 4 if "16x16x32" in mn else None
            assert s.passes, line
        elif mn.startswith("v_"):
            s.cls = "valu"
            s.dpp = "_dpp" in mn or "row_" in s.mods or "quad_perm" in s.mods
            if mn.startswith("v_permlane"):
                s.w = R[0] | R[1]; s.r = R[0] | R[1]
            elif mn.startswith(("v_add_co", "v_sub_co", "v_addc_co", "v_subb_co", "v_div_scale", "v_mad_u64")):
                s.w = R[0] | R[1]; s.r = set().union(*R[2:])
            else:
                s.w = R[0]; s.r = set().union(*R[1:]) if len(R) > 1 else set()
                if mn.startswith(("v_fmac", "v_mac", "v_dot2c", "v_writelane")): s.r |= R[0]
                if mn.startswith("v_cmpx"): s.w |= {("s", "exec")}
                if mn.startswith("v_cndmask") and len(ops) == 3: s.r |= {("s", "vcc")}
        elif mn.startswith("ds_"):
            s.cls = "ds"
            if mn.startswith(("ds_read", "ds_bpermute", "ds_permute", "ds_swizzle")):
                s.w = R[0]; s.r = set().union(*R[1:])
            else:
                s.r = set().union(*R)
        elif mn.startswith(("buffer_", "global_")):
            s.cls = "vmem"
            s.lds = " lds" in (" " + s.mods)
            s.storedata = set()
            if mn.startswith(("buffer_wbl2", "buffer_inv")):
                pass
            elif "load" in mn:
                if s.lds: s.r = set().union(*R) | {("s", "m0")}
                else: s.w = R[0]; s.r = set().union(*R[1:])
            else:
                s.r = set().union(*R)
                if mn.endswith(("x3", "x4")):
                    s.storedata = R[0] if mn.startswith("buffer_") else R[1]
                if "atomic" in mn and "sc0" in s.mods: s.w = R[0]
        elif mn.startswith("s_"):
            s.cls = "salu"
            if mn.startswith(("s_cmp", "s_cbranch", "s_branch", "s_waitcnt", "s_barrier", "s_nop", "s_endpgm", "s_setprio", "s_sleep", "s_setpc", "s_bitcmp")):
                s.r = set().union(*R) if R else set()
            else:
                s.w = R[0]; s.r = set().union(*R[1:]) if len(R) > 1 else set()
                if "saveexec" in mn: s.w |= {("s", "exec")}


def isv(x): return {r for r in x if r[0] in "va"}
def iss(x): return {r for r in x if r[0] == "s"}


def need(p, c):
    n = 0
    if p.cls == "valu":
        pv, ps = isv(p.w), iss(p.w)
        if c.cls == "mfma" and pv & c.r: n = max(n, 2)
        if c.cls == "mfma" and ("s", "exec") in ps: n = max(n, 4)
        if c.cls == "valu":
            if p.mn.startswith(TRANS) and not c.mn.startswith(TRANS) and pv & c.r: n = max(n, 1)
            if p.mn.startswith(TRANS) and c.mn.startswith(TRANS) and pv & c.r: n = max(n, 1)
            if c.dpp and pv & c.r: n = max(n, 2)
            if c.dpp and ("s", "exec") in ps: n = max(n, 5)
            if c.mn.startswith("v_permlane") and pv & c.r: n = max(n, 2)
            if c.mn.startswith(("v_readlane", "v_readfirstlane")) and pv & c.r: n = max(n, 1)
            if ps & c.r:
                n = max(n, 4 if c.mn.startswith(("v_readlane", "v_writelane")) else 2)
            if ("s", "exec") in ps and c.mn.startswith(("v_readlane", "v_readfirstlane", "v_writelane", "v_permlane")): n = max(n, 4)
            if ("sdwa" in p.mn or "op_sel" in p.mods) and not p.mn.startswith("v_pk_") and pv & (c.r | c.w): n = max(n, 1)
            if c.mn.startswith("v_div_fmas") and ("s", "vcc") in ps: n = max(n, 4)
        if c.cls == "vmem" and ps & c.r: n = max(n, 5)
    if p.cls == "mfma":
        P = p.passes
        tab = {4: (6, 8, 8, 3), 8: (10, 12, 12, 7)}[P]
        if c.cls == "mfma":
            if c.C & p.D and not (c.C == p.D and c.passes == P): n = max(n, tab[0])
            if (c.A | c.B) & p.D: n = max(n, tab[1])
            if c.D & p.D and not (c.C == p.D and c.passes == P) and not (c.C & p.D): n = max(n, tab[0])
        elif c.cls in ("valu", "vmem", "ds"):
            if (c.r | c.w) & p.D: n = max(n, tab[2])
            if c.cls == "valu" and c.w & p.C: n = max(n, tab[3])
    if p.cls == "vmem" and p.storedata and c.cls in ("valu", "mfma", "ds", "vmem") and c.w & p.storedata:
        n = max(n, 2)
    if p.cls == "salu" and ("s", "m0") in p.w and c.cls == "vmem" and c.lds: n = max(n, 1)
    return n


def check(text):
    ins, labels = [], {}
    for no, raw in enumerate(text.split("\n"), 1):
        ln = raw.split(";")[0].strip()
        if not ln or ln.startswith("."): continue
        if ln.endswith(":"):
            labels[ln[:-1]] = len(ins); continue
        if not re.match(r"^(v_|s_|ds_|buffer_|global_)", ln): continue
        ins.append(I(ln, no))
    errs = set()
    W = 24

    def scan(seq, start):
        for j in range(start, len(seq)):
            c = seq[j]; d = 0
            for i in range(j - 1, max(-1, j - W), -1):
                p = seq[i]
                nd = need(p, c)
                if nd > d: errs.add((p.no, c.no, nd, d, p.line, c.line))
                d += p.ws
                if d >= 20: break

    def back(j):
        out = []
        i = j
        while i >= 0 and len(out) < W:
            if i < j and ins[i].mn in ("s_branch", "s_endpgm", "s_setpc_b64"): break
            out.append(ins[i]); i -= 1
        return out[::-1]

    def fwd(j):
        out = []
        while j < len(ins) and len(out) < W:
            out.append(ins[j])
            if ins[j].mn in ("s_branch", "s_endpgm", "s_setpc_b64"): break
            j += 1
        return out

    seg = []
    for x in ins:
        seg.append(x)
        if x.mn in ("s_branch", "s_endpgm", "s_setpc_b64"):
            scan(seg, 0); seg = []
    scan(seg, 0)
    calls = {}
    for j, x in enumerate(ins):
        if x.mn.startswith(("s_cbranch", "s_branch", "s_call")):
            t = x.ops[-1]
            if t in labels:
                b = back(j); scan(b + fwd(labels[t]), len(b))
                if x.mn.startswith("s_call"): calls.setdefault(labels[t], []).append(j)
    for tgt, sites in calls.items():
        e = tgt
        while ins[e].mn != "s_setpc_b64": e += 1
        for j in sites:
            b = back(e); scan(b + fwd(j + 1), len(b))
    return sorted(errs)


if __name__ == "__main__":
    e = check(open(sys.argv[1]).read())
    for x in e[:60]: print("HAZARD need %d have %d: L%d %s  ->  L%d %s" % (x[2], x[3], x[0], x[4], x[1], x[5]))
    print(len(e), "hazards")


def autofix(lines):
    out, win = [], []
    for raw in lines:
        ln = raw.split(";")[0].strip()
        if not ln or ln.startswith(".") or ln.endswith(":") or not re.match(r"^(v_|s_|ds_|buffer_|global_)", ln):
            out.append(raw); continue
        c = I(ln, 0)
        d, short = 0, 0
        for p in reversed(win):
            short = max(short, need(p, c) - d)
            d += p.ws
            if d >= 20: break
        if short > 0:
            out.append(f"    s_nop {short-1}")
            win.append(I(f"s_nop {short-1}", 0))
        out.append(raw); win.append(c)
        if c.mn in ("s_branch", "s_endpgm", "s_setpc_b64"): win = []
        win = win[-24:]
    return out
```

```python
from emit import *

V_WVO = 4
V_TRA = 8
V_WF = 32
V_ACC = 64
S_SOFF = 4
NSLOT = 4


def proj_setup(k, wstride=8192):
    k(f"""
    v_lshrrev_b32 v2, 3, v0
    v_mov_b32 v3, {wstride}
    v_mul_lo_u32 v2, v2, v3
    v_lshrrev_b32 v3, 4, v0
    v_and_b32 v3, 1, v3
    v_lshlrev_b32 v3, 1, v3
    v_and_b32 v12, 7, v0
    v_xor_b32 v3, v3, v12
    v_lshl_add_u32 v2, v3, 4, v2
    s_mul_i32 s4, s3, {32*wstride}
    v_add_u32 v{V_WVO}, s4, v2
    v_xor_b32 v{V_WVO+1}, 64, v{V_WVO}
    v_add_u32 v{V_WVO+2}, {2*(8*wstride-1024)}, v{V_WVO}
    v_add_u32 v{V_WVO+3}, {3*(8*wstride-1024)}, v{V_WVO+1}
    v_add_u32 v{V_WVO+1}, {8*wstride-1024}, v{V_WVO+1}
    v_lshrrev_b32 v2, 4, v0
    v_bfe_u32 v3, v0, 2, 2
    v_lshl_add_u32 v12, v2, 3, v3
    v_lshlrev_b32 v12, 7, v12
    v_and_b32 v13, 3, v0
    v_lshl_add_u32 v12, v13, 3, v12
    v_and_b32 v2, 1, v2
    v_lshrrev_b32 v3, 1, v3
    v_lshl_add_u32 v2, v2, 1, v3
    v_lshl_add_u32 v{V_TRA}, v2, 5, v12
    """)
    for t in range(1, 4):
        k(f"v_xor_b32 v{V_TRA+t}, {32*t}, v{V_TRA}")


def seq(k, items):
    def all_():
        for it in items:
            it() if callable(it) else k(it)
    return all_


def w_dma(k, step, steps, wstride=8192):
    S = steps[step]
    items = [f"s_lshl_b32 s{S_SOFF}, s3, 12\ns_add_u32 m0, s{S_SOFF}, {(step % NSLOT)*16384}\ns_mov_b32 s{S_SOFF}, {S['kc']*128*wstride + S['col']}"]
    for jj in range(4):
        items.append(lambda jj=jj: k.vmop(
            f"buffer_load_dwordx4 v{V_WVO+jj}, s[{S['srd']}:{S['srd']+3}], s{S_SOFF} offen offset:{jj*1024} lds", ("W", step)))
    return seq(k, items)


def tr_items(k, step, t):
    base = V_WF + 16 * (t % 2)
    items = []
    for ks in range(4):
        for half in range(2):
            off = (step % NSLOT) * 16384 + ks * 4096 + half * 512
            items.append(lambda ks=ks, half=half, off=off: k.lgop(
                f"ds_read_b64_tr_b16 {v(base+4*ks+2*half,2)}, v{V_TRA+t} offset:{off}", ("F", step, t, ks)))
    return items


def proj_core(k, steps, res, extra_fill, res_wait, epi, hook=None):
    ns = len(steps)
    for it in tr_items(k, 0, 0): it()
    pend = []
    for step, S in enumerate(steps):
        kc = S["kc"]
        acc = lambda t, b: v(V_ACC + 64 * S["acc"] + 16 * t + 4 * b, 4)
        mf, fill = [], {}
        for t in range(4):
            for b in range(4):
                for ks in range(4):
                    pre = []
                    if b == 0:
                        pre.append(lambda t=t, ks=ks: k.lgwait(("F", step, t, ks)))
                    if t == 0:
                        pre += res_wait(step, b, ks)
                    wf = v(V_WF + 16 * (t % 2) + 4 * ks, 4)
                    c = "0" if (kc == 0 and ks == 0) else acc(t, b)
                    A, B = (wf, res(b, 4 * kc + ks)) if S["mode"] != "V" else (res(b, 4 * kc + ks), wf)
                    mf.append((pre, mfma(acc(t, b), A, B, c)))
            if t < 3:
                spread(fill, tr_items(k, step, t + 1), 16 * t + 1, 16 * t + 12)
            elif step + 1 < ns:
                fill.setdefault(47, []).append(lambda: (k.vmwait(("W", step + 1)), k("s_barrier")))
                spread(fill, tr_items(k, step + 1, 0), 49, 60)
                if step >= 1 and step + NSLOT - 1 < ns:
                    fill.setdefault(48, []).append(w_dma(k, step + NSLOT - 1, steps))
        for lo, hi, items in extra_fill.get(step, []):
            spread(fill, items, lo, hi)
        if pend:
            take, pend = pend[:56], pend[56:]
            spread(fill, take, 8, 63)
        k.stream(mf, fill)
        if hook: hook(step)
        pend += epi(step)
    k("s_nop 7")
    seq(k, pend)()


def make_k1(name="k1_kernel", ts=False):
    k = K(name, 256, 256, 163840, vgpr=256, agpr=256)
    load_args(k)
    stamp(k, 0, ts)
    SC, SWK, SWV, SKO, SVO, SJ1, SJ2, SD1, SD2 = 8, 12, 16, 20, 24, 28, 32, 76, 80
    SX, SXN, SCS = 84, 88, 72
    V_CVO, V_CRA, V_SVO = 12, 16, 20
    CBASE = 65536
    proj_setup(k)
    k(f"""
    s_and_b32 s70, s2, 7
    s_lshl_b32 s70, s70, 2
    s_bfe_u32 s71, s2, 0x20003
    s_add_u32 s70, s70, s71
    s_lshr_b32 s71, s2, 5
    s_lshl_b32 s69, s2, 2
    s_add_u32 s69, s69, s3
    s_mul_i32 s5, s3, 24576
    s_add_u32 s5, s5, {CBASE}
    v_lshrrev_b32 v2, 4, v0
    v_and_b32 v3, 15, v0
    v_xor_b32 v21, v2, v3
    v_lshlrev_b32 v21, 4, v21
    v_lshl_add_u32 v2, v2, 10, v21
    s_lshl_b32 s4, s3, 16
    v_add_u32 v{V_CVO}, s4, v2
    v_lshl_add_u32 v{V_CRA}, v3, 8, v21
    s_lshl_b32 s4, s3, 14
    v_lshlrev_b32 v2, 4, v0
    v_add_u32 v{V_SVO}, s4, v2
    """)
    for j in range(1, 4):
        k(f"v_xor_b32 v{V_CVO+j}, {64*j}, v{V_CVO}\nv_add_u32 v{V_CVO+j}, {j*3072}, v{V_CVO+j}\nv_xor_b32 v{V_CRA+j}, {64*j}, v{V_CRA}")
    for j in range(4):
        k(f"v_add_u32 v{V_CRA+j}, s5, v{V_CRA+j}")
    k("s_waitcnt lgkmcnt(0)")
    k("s_lshl_b32 s4, s71, 18"); srd(k, SC, P['ckv'], P['ckv'] + 1, "s4", 262144)
    k("s_lshl_b32 s4, s70, 8\ns_sub_u32 s68, 0x400000, s4")
    srd(k, SWK, P['wuk'], P['wuk'] + 1, "s4", "s68")
    srd(k, SWV, P['wuv'], P['wuv'] + 1, "s4", "s68")

    steps = [dict(srd=SWK, col=128 * (s_ % 2), mode="K", kc=s_ // 2, acc=s_ % 2) for s_ in range(8)]
    steps += [dict(srd=SWV, col=128 * (s_ // 4), mode="V", kc=s_ % 4, acc=2 if s_ < 4 else 0) for s_ in range(8)]

    def c_dma(j):
        kc, b = divmod(j, 4)
        items = [f"s_add_u32 m0, s5, {(j % 6)*4096}\ns_mov_b32 s{S_SOFF}, {b*16384 + kc*256}"]
        for jj in range(4):
            items.append(lambda jj=jj: k.vmop(
                f"buffer_load_dwordx4 v{V_CVO+jj}, s[{SC}:{SC+3}], s{S_SOFF} offen offset:{jj*1024} lds", ("C", j)))
        return seq(k, items)

    def c_read(j):
        kc, b = divmod(j, 4)
        items = [lambda: k.vmwait(("C", j))]
        for ks in range(4):
            items.append(lambda ks=ks: k.lgop(
                f"ds_read_b128 {a(64*b+16*kc+4*ks,4)}, v{V_CRA+ks} offset:{(j % 6)*4096}", ("CR", j)))
        return seq(k, items)

    def c_next(j):
        return seq(k, [lambda: k.lgwait(("CR", j)), c_dma(j + 6)])

    w_dma(k, 0, steps)()
    for j in range(4): c_dma(j)()
    w_dma(k, 1, steps)()
    for j in range(4, 6): c_dma(j)()
    w_dma(k, 2, steps)(); w_dma(k, 3, steps)()
    k(f"s_lshl_b32 s4, s70, 19\ns_lshl_b32 s68, s71, 16\ns_add_u32 s4, s4, s68")
    srd(k, SKO, P['ws'], P['ws'] + 1, "s4", 65536)
    k(f"s_add_u32 s4, s4, {WS_V}")
    srd(k, SVO, P['ws'], P['ws'] + 1, "s4", 65536)
    k(f"s_lshr_b32 s4, s69, 3\ns_lshl_b32 s4, s4, 14\ns_add_u32 s4, s4, {WS_XN}")
    srd(k, SXN, P['ws'], P['ws'] + 1, "s4", 16384)
    k("s_lshl_b32 s4, s69, 11"); srd(k, SX, P['x'], P['x'] + 1, "s4", 2048)
    k(f"""
    s_lshr_b32 s64, s69, 3
    s_and_b32 s65, s69, 7
    s_lshl_b32 s66, s64, 15
    s_lshl_b32 s67, s65, 7
    s_add_u32 s66, s66, s67
    s_sub_u32 s68, {4*MB}, s66
    """)
    srd(k, SJ1, P['wo'], P['wo'] + 1, "s66", "s68")
    k(f"s_lshl_b32 s67, s65, 19\ns_lshl_b32 s64, s64, 10\ns_add_u32 s67, s67, s64\ns_add_u32 s67, s67, {WS_WO}")
    srd(k, SD1, P['ws'], P['ws'] + 1, "s67", 3 * 131072 + 1024)
    lw2, ldone = k.label("j2w2"), k.label("j2d")
    k(f"""
    s_cmp_ge_u32 s69, 704
    s_cbranch_scc1 {lw2}
    s_cmp_ge_u32 s69, 352
    s_cselect_b32 s64, 1, 0
    s_cselect_b32 s6, s{P['w3']}, s{P['w1']}
    s_cselect_b32 s7, s{P['w3']+1}, s{P['w1']+1}
    s_mul_i32 s65, s64, 352
    s_sub_u32 s65, s69, s65
    s_mul_i32 s66, s65, 2979
    s_lshr_b32 s66, s66, 16
    s_mul_i32 s67, s66, 22
    s_sub_u32 s67, s65, s67
    s_mul_i32 s63, s66, {32*2752}
    s_lshl_b32 s65, s67, 7
    s_add_u32 s63, s63, s65
    s_sub_u32 s62, {512*2752}, s63
    s_lshl_b32 s65, s67, 17
    s_lshl_b32 s4, s64, 14
    s_add_u32 s65, s65, s4
    s_lshl_b32 s4, s66, 10
    s_add_u32 s65, s65, s4
    s_add_u32 s65, s65, {WS_W13}
    s_mov_b32 s100, 32768
    s_lshl_b32 s64, s64, 4
    s_add_u32 s64, s64, s66
    s_mul_i32 s64, s64, {1408*4}
    s_lshl_b32 s4, s67, 8
    s_add_u32 s64, s64, s4
    s_add_u32 s64, s64, {WS_CS}
    s_mov_b32 s101, 256
    s_mov_b32 s68, {3*32768+1024}
    s_mov_b32 s67, 2752
    s_branch {ldone}
    {lw2}:
    s_sub_u32 s65, s69, 704
    s_mov_b32 s6, s{P['w2']}
    s_mov_b32 s7, s{P['w2']+1}
    s_lshr_b32 s66, s65, 2
    s_and_b32 s67, s65, 3
    s_lshl_b32 s63, s66, 15
    s_lshl_b32 s4, s67, 8
    s_add_u32 s63, s63, s4
    s_sub_u32 s62, {1376*1024}, s63
    s_mul_i32 s65, s67, {8*43*1024}
    s_lshl_b32 s4, s66, 10
    s_add_u32 s65, s65, s4
    s_add_u32 s65, s65, {WS_W2}
    s_mov_b32 s100, {43*1024}
    s_mov_b32 s64, {WS_CS}
    s_mov_b32 s101, 0
    s_mov_b32 s67, 1024
    s_cmp_ge_u32 s69, 876
    s_cselect_b32 s62, 0, s62
    s_cselect_b32 s63, 0, s63
    s_cselect_b32 s68, 0, {7*43*1024+1024}
    {ldone}:
    """)
    srd(k, SJ2, 6, 7, "s63", "s62")
    srd(k, SD2, P['ws'], P['ws'] + 1, "s65", "s68")
    srd(k, SCS, P['ws'], P['ws'] + 1, "s64", "s101")
    k("s_mov_b32 s62, 128\ns_cmp_ge_u32 s69, 704\ns_cselect_b32 s62, s62, 0x7000000")
    k(f"""
    v_lshrrev_b32 v2, 3, v0
    v_and_b32 v3, 7, v0
    v_lshlrev_b32 v3, 4, v3
    v_lshl_add_u32 v21, v2, 10, v3
    v_mul_lo_u32 v2, v2, s67
    v_add_u32 v22, v2, v3
    s_lshl_b32 s6, s67, 3
    s_sub_u32 s6, s6, 1024
    v_bfe_u32 v2, v0, 2, 4
    v_lshlrev_b32 v2, 7, v2
    v_and_b32 v3, 3, v0
    v_lshl_add_u32 v2, v3, 3, v2
    v_add_u32 v23, s5, v2
    v_lshlrev_b32 v24, 4, v0
    v_lshrrev_b32 v2, 4, v0
    v_lshlrev_b32 v2, 4, v2
    v_and_b32 v3, 15, v0
    v_cmp_eq_u32 vcc, 0, v3
    v_mov_b32 v3, 0x10000
    v_and_b32 v26, 1, v0
    v_cndmask_b32 v25, v3, v2, vcc
    v_lshlrev_b32 v26, 10, v26
    v_lshrrev_b32 v3, 1, v0
    v_lshl_add_u32 v26, v3, 4, v26
    """)
    stamp(k, 1, ts)
    for j in range(4): c_read(j)()
    for j in range(4): c_next(j)()
    stamp(k, 2, ts)
    k.vmwait(("W", 0))
    k("s_barrier")
    stamp(k, 3, ts)

    T = 192
    ln = []
    ln.append(lambda: k.vmop(f"buffer_load_dwordx4 {v(T,4)}, v26, s[{SX}:{SX+3}], 0 offen", "X"))
    ln.append(lambda: k.vmop(f"buffer_load_dwordx4 {v(T+4,4)}, v26, s[{SX}:{SX+3}], 0 offen offset:512", "X"))
    l2 = [lambda: k.vmwait("X")]
    X = T + 8
    class Rec:
        def __init__(s): s.items = []
        def __call__(s, t): s.items.append(t)
    R = Rec()
    for j in range(8): R(f"v_lshlrev_b32 v{X+2*j}, 16, v{T+j}\nv_and_b32 v{X+1+2*j}, 0xffff0000, v{T+j}")
    R(f"v_add_f32 v2, v{X}, v{X+1}")
    for j in range(2, 16): R(f"v_add_f32 v2, v2, v{X+j}")
    xlane_sum(R, 2, 3, ["q2", "r4", "r8", "p16", "p32"])
    R(f"v_mul_f32 v2, 0x3b000000, v2")
    R(f"v_sub_f32 v3, v{X}, v2\nv_mul_f32 v27, v3, v3")
    for j in range(1, 16): R(f"v_sub_f32 v3, v{X+j}, v2\nv_fmac_f32 v27, v3, v3")
    xlane_sum(R, 27, 3, ["q2", "r4", "r8", "p16", "p32"])
    for t_ in ["v_mul_f32 v27, 0x3b000000, v27\nv_cvt_pk_bf16_f32 v2, v2, v27", "v_and_b32 v27, 0xffff0000, v2\nv_lshlrev_b32 v2, 16, v2",
               "v_add_f32 v27, 0x3727c5ac, v27\nv_cvt_pk_bf16_f32 v27, v27, v27", "v_lshlrev_b32 v27, 16, v27\nv_sqrt_f32 v27, v27\ns_nop 0",
               "v_cvt_pk_bf16_f32 v27, v27, v27\nv_lshlrev_b32 v27, 16, v27", "v_rcp_f32 v27, v27\ns_nop 0"]: R(t_)
    for j in range(8):
        R(f"v_sub_f32 v{X+2*j}, v{X+2*j}, v2\nv_sub_f32 v{X+2*j+1}, v{X+2*j+1}, v2")
        R(f"v_cvt_pk_bf16_f32 v{T+j}, v{X+2*j}, v{X+1+2*j}\nv_lshlrev_b32 v{X+2*j}, 16, v{T+j}")
        R(f"v_and_b32 v{X+1+2*j}, 0xffff0000, v{T+j}\nv_mul_f32 v{X+2*j}, v{X+2*j}, v27")
        R(f"v_mul_f32 v{X+2*j+1}, v{X+2*j+1}, v27\nv_cvt_pk_bf16_f32 v{T+j}, v{X+2*j}, v{X+1+2*j}")
    R("s_and_b32 s68, s69, 7\ns_lshl_b32 s68, s68, 5\nv_and_b32 v2, 1, v0\nv_lshlrev_b32 v2, 4, v2")
    R("v_lshrrev_b32 v3, 1, v0\nv_lshl_add_u32 v2, v3, 8, v2\nv_add_u32 v2, s68, v2\ns_mov_b32 s68, 8192")
    l2 += R.items
    l2.append(lambda: k.vmop(f"buffer_store_dwordx4 {v(T,4)}, v2, s[{SXN}:{SXN+3}], 0 offen", "st"))
    l2.append(lambda: k.vmop(f"buffer_store_dwordx4 {v(T+4,4)}, v2, s[{SXN}:{SXN+3}], s68 offen", "st"))

    def job_issue(n):
        sr = SJ1 if n == 0 else SJ2
        items = [f"s_add_u32 m0, s5, {4096*n}\ns_mov_b32 s68, {'s62' if n == 2 else 0}"]
        for jj in range(4):
            items.append(lambda jj=jj: k.vmop(
                f"buffer_load_dwordx4 v{21 if n == 0 else 22}, s[{sr}:{sr+3}], s68 offen offset:{jj*1024} lds", ("J", n)))
            if jj < 3: items.append(f"s_add_u32 s68, s68, {'7168' if n == 0 else 's6'}")
        return seq(k, items)
    JB = 28
    JF = T + 32

    def job_finish(n):
        items = [lambda: k.vmwait(("J", n))]
        for t in range(4):
            for half in range(2):
                items.append(lambda t=t, half=half: k.lgop(
                    f"ds_read_b64_tr_b16 {v(JF+4*t+2*half,2)}, v23 offset:{4096*n + 32*t + 2048*half}", ("JF", n, t)))
        ds = SD1 if n == 0 else SD2
        if n == 0: items.append("s_mov_b32 s7, 0")
        if n == 1: items.append(f"s_mov_b32 s7, 0\nv_mov_b32 v28, 0x3f803f80\nv_mov_b32 v29, 0x3f803f80\nv_mov_b32 v30, 0x3f803f80\nv_mov_b32 v31, 0x3f803f80")
        for t in range(4):
            def st(t=t):
                k.lgwait(("JF", n, t))
                k.vmop(f"buffer_store_dwordx4 {v(JF+4*t,4)}, v24, s[{ds}:{ds+3}], s7 offen", "st")
                if n == 1: k(mfma(v(JF + 16 + 4 * t, 4), v(JF + 4 * t, 4), v(28, 4), "0"))
                k(f"s_add_u32 s7, s7, {'131072' if n == 0 else 's100'}")
            items.append(st)
        if n == 1:
            items += ["s_nop 0"] * 6
            for t in range(4):
                items.append(lambda t=t: k.vmop(f"buffer_store_dwordx4 {v(JF+16+4*t,4)}, v25, s[{SCS}:{SCS+3}], 0 offen offset:{64*t}", "st"))
        return items

    extra = {0: [(4, 4, [c_read(4)]), (14, 14, [c_next(4)]), (20, 20, [c_read(5)]), (30, 30, [c_next(5)])],
             1: [(4, 4, [c_read(6)]), (14, 14, [c_next(6)]), (20, 20, [c_read(7)]), (30, 30, [c_next(7)]), (40, 41, ln)],
             2: [(4, 4, [c_read(8)]), (14, 14, [c_next(8)]), (20, 20, [c_read(9)]), (30, 30, [c_next(9)])],
             3: [(4, 4, [c_read(10)]), (20, 20, [c_read(11)]), (24, 63, l2[:40])],
             4: [(4, 4, [c_read(12)]), (20, 20, [c_read(13)]), (0, 63, l2[40:])],
             5: [(0, 0, [c_read(14)]), (8, 8, [c_read(15)]), (20, 20, [lambda: k.lgwait(("CR", 15))]),
                 (21, 40, [job_issue(0), job_issue(1), job_issue(2)])],
             6: [(44, 63, job_finish(0))],
             7: [(0, 34, job_finish(1)), (36, 58, job_finish(2))]}
    res = lambda b, ks: a(64 * b + 4 * ks, 4)
    res_wait = lambda step, b, ks: [lambda: k.lgwait(("CR", 4 * (step // 2) + b))] if step < 8 else []

    def epi(step):
        S = steps[step]
        if S["kc"] != 3: return []
        A = lambda t, b: V_ACC + 64 * S["acc"] + 16 * t + 4 * b
        g = S["col"] // 128
        items = []
        def pack(d, x, y, sr, off):
            if S["mode"] == "V":
                for r in range(4):
                    items.append(f"v_mul_f32 v{x+r}, 0x5f800000, v{x+r}\nv_mul_f32 v{y+r}, 0x5f800000, v{y+r}")
            items.extend([f"v_cvt_pk_bf16_f32 v{d}, v{x}, v{x+1}", f"v_cvt_pk_bf16_f32 v{d+1}, v{x+2}, v{x+3}",
                          f"v_cvt_pk_bf16_f32 v{d+2}, v{y}, v{y+1}", f"v_cvt_pk_bf16_f32 v{d+3}, v{y+2}, v{y+3}"])
            so, im = divmod(off, 4096)
            def st():
                k(f"s_mov_b32 s68, {so*4096}")
                k.vmop(f"buffer_store_dwordx4 {v(d,4)}, v{V_SVO}, s[{sr}:{sr+3}], s68 offen offset:{im}", "st")
            items.append(st)
        if S["mode"] == "K":
            for b in range(4):
                for j in range(2):
                    pack(A(2 * j, b), A(2 * j, b), A(2 * j + 1, b), SKO, b * 4096 + (2 * g + j) * 1024)
        else:
            for t in range(4):
                for j in range(2):
                    pack(A(t, 2 * j), A(t, 2 * j), A(t, 2 * j + 1), SVO, j * 8192 + (4 * g + t) * 1024)
        return items
    proj_core(k, steps, res, extra, res_wait, epi, hook=lambda st: stamp(k, 4 + st, ts) if st < 15 else None)
    stamp(k, 19, ts)
    if ts:
        k.vmdrain()
        stamp(k, 20, ts)
    stamp_flush(k, 0, ts)
    k("s_endpgm")
    return k


if __name__ == "__main__":
    import hazard
    k = make_k1(ts=True)
    txt = build_file([k])
    open("t_k1.s", "w").write(txt)
    for x in hazard.check(txt)[:40]: print(x)
    print(len(txt))
```

```python
from emit import *
from k1 import proj_setup, proj_core, w_dma, seq, V_ACC, S_SOFF

BIAS = 102.0
THR_BITS = (127 - 62) << 23
NEG = 0xf149f2ca
QSCALE = 0x3e0293ee
V_L16, V_DVO, V_RA = 12, 13, 14
V_T, V_PS, V_L, V_CT, V_C, V_P, V_S, V_O, V_X = 16, 20, 22, 28, 32, 48, 64, 96, 224
A_Q, A_K, A_V = 0, 64, 128
SWQ, SXN, SK, SV, SCTX = 8, 12, 16, 20, 24
S_MASK, S_RET, S_THR, S_ARM, S_CNT, S_H, S_I, S_RB, S_RD, S_WR, S_DSO = 28, 62, 64, 68, 69, 70, 71, 72, 76, 77, 78
S_NWR = 79
SM0 = 8
CARRY = 29
FULL = "FFFF"
LASTQ = 2


class Job:
    def __init__(s, q, modes, par):
        s.q, s.modes, s.par = q, modes, par
        s.S, s.P, s.ps = V_S + 16 * par, V_P + 8 * par, V_PS + par


class Att:
    def __init__(s, k):
        s.k = k
        s.par = 0
        s.stubs = []
        s.slow = set()
        s.tmp = 0

    def qk_block(s, J, kwait):
        k = s.k
        mf = []
        for kvb in range(4):
            m = J.modes[kvb]
            if m == "E": continue
            for ds in range(4):
                pre = []
                if kwait: pre.append(lambda kvb=kvb, ds=ds: k.lgwait(("Kf", 4 * kvb + ds)))
                c = v(J.S + 4 * kvb, 4)
                if ds == 0:
                    c = v(V_C + 4 * J.q, 4)
                    if m == "T":
                        pre.append(f"v_mov_b32 v3, {NEG}")
                        for r in range(4):
                            pre.append(f"v_cndmask_b32 v{V_CT+r}, v3, v{V_C+4*J.q+r}, s[{S_MASK+2*r}:{S_MASK+2*r+1}]")
                        c = v(V_CT, 4)
                mf.append((pre, mfma(v(J.S + 4 * kvb, 4), a(A_K + 16 * kvb + 4 * ds, 4), a(A_Q + 16 * J.q + 4 * ds, 4), c)))
        return mf

    def pv_block(s, J, vwait):
        k = s.k
        mf = []
        kss = [ks for ks in range(2) if J.modes[2 * ks] != "E"]
        for dt in range(8):
            for ks in kss:
                pre = [lambda ks=ks, dt=dt: k.lgwait(("Vf", 2 * dt + ks))] if vwait else []
                o = v(V_O + 32 * J.q + 4 * dt, 4)
                mf.append((pre, mfma(o, a(A_V + 32 * ks + 4 * dt, 4), v(J.P + 4 * ks, 4), o)))
        return mf

    def sm_items(s, J, a0=None):
        items = []
        live = [e for e in range(16) if J.modes[e // 4] != "E"]
        for e in range(16):
            if e not in live: items.append(f"v_mov_b32 v{J.S+e}, {NEG}")
        for kvb in range(4):
            if J.modes[kvb] == "E" and J.modes[kvb & 2] != "E":
                items.append(f"v_mov_b32 v{J.P+2*kvb}, 0\nv_mov_b32 v{J.P+2*kvb+1}, 0")
        t = lambda e: V_T + e % 4
        n = len(live)
        for e in range(n + 1):
            if e < n: items.append(It(f"v_exp_f32 v{t(e)}, v{J.S+e}", lo=None if a0 is None else a0 + 4 * (e // 4) + 7))
            p = e - 1
            if p == 1: items.append(f"v_add_f32 v{J.ps}, v{t(0)}, v{t(1)}")
            elif p > 1: items.append(f"v_add_f32 v{J.ps}, v{J.ps}, v{t(p)}")
            if p >= 1 and p % 2 == 1: items.append(f"v_cvt_pk_bf16_f32 v{J.P+p//2}, v{t(p-1)}, v{t(p)}")
        return [x if isinstance(x, It) else It(x) for x in items]

    def check_items(s, J):
        k = s.k
        out, back = k.label("so"), k.label("sb")
        s.stubs.append((out, back, J.q, J.par))
        s.slow.add((J.q, J.par))
        a1 = f"v_cmp_nge_f32 vcc, s{S_THR+J.q}, v{J.ps}"
        a2 = f"s_cbranch_vccnz {out}\n{back}:\nv_add_f32 v{V_L+J.q}, v{V_L+J.q}, v{J.ps}"
        if J.q == LASTQ: a2 += f"\ns_mov_b32 s{S_THR+LASTQ}, s{S_ARM}"
        return a1, a2

    def kv_reads(s, which):
        k = s.k
        items = []
        for i in range(16):
            if which == "K":
                items.append(lambda i=i: k.lgop(f"ds_read_b128 {a(A_K+4*i,4)}, v{V_RA} offset:{16384+1024*i}", ("Kf", i)))
            else:
                dt, ks = divmod(i, 2)
                items.append(lambda i=i, dt=dt, ks=ks: k.lgop(
                    f"ds_read_b128 {a(A_V+32*ks+4*dt,4)}, v{V_RA} offset:{8192*ks+1024*dt}", ("Vf", i)))
        return items

    def dma_items(s, gen):
        k = s.k
        items = []
        for part, sr in enumerate((SV, SK)):
            for jj in range(4):
                pre = []
                if jj == 0:
                    pre = [f"s_mov_b32 m0, s{S_WR}"] if part == 0 else [f"s_add_u32 m0, s{S_WR}, 16384", f"s_add_u32 s{S_DSO}, s{S_DSO}, 16384"]
                for x in pre: items.append(It(x))
                items.append(It(lambda sr=sr, jj=jj: k.vmop(
                    f"buffer_load_dwordx4 v{V_DVO}, s[{sr}:{sr+3}], s{S_DSO} offen offset:{jj*1024} lds", ("D", gen)), "d"))
        return items

    def period(s, specs, dma=True, nextk=True, extra=None, last=False):
        k = s.k
        jobs = []
        for q, m in specs:
            jobs.append(Job(q, m, s.par)); s.par ^= 1
        mf, pos, pvpos = [], [], []
        V, ctl = [], []
        prev, prev_sm, pstart = s.pend, s.psm, 0
        for j, J in enumerate(jobs):
            a0 = len(mf)
            blk = s.qk_block(J, kwait=True)
            mf += blk
            L = len(blk)
            e = a0 + min(SM0 - 1, L - 3)
            V += window(prev_sm, pstart, e)
            c1, c2 = s.check_items(prev)
            V += window([c1], e, e + 1)
            ctl += window([c2], min(e + 3, a0 + L - 1), min(e + 4, a0 + L - 1))
            if j == 0:
                ctl += window([It(lambda: (k.vmwait(("D", 0)), k("s_barrier")), "s")], a0 + L - 1, a0 + L - 1)
            b0 = len(mf)
            blk = s.pv_block(prev, vwait=True)
            mf += blk
            pvpos.append((b0, len(blk)))
            pos.append((a0, L))
            pstart = a0 + min(SM0, L)
            prev, prev_sm = J, s.sm_items(J, a0)
        n = len(mf)
        if last:
            V += window(prev_sm, pstart, n - 1); prev_sm = []
        else:
            take = CARRY if len(prev_sm) == 39 else (len(prev_sm) * (n - pstart)) // (n - pstart + SM0)
            V += window(prev_sm[:take], pstart, n - 1)
            prev_sm = [it.x for it in prev_sm[take:]]
        streams = [V, ctl]
        b0, Lb = pvpos[0]
        vend = pvpos[1][0] - 4 if len(pvpos) > 1 else n - 1
        rv = [It(x, "r", lo=b0 + min(i, Lb - 1)) for i, x in enumerate(s.kv_reads("V"))]
        streams.append(window(rv, b0, vend))
        if nextk:
            a0, L = pos[-1]
            rk = [It(x, "r", lo=a0 + min(i, L - 1)) for i, x in enumerate(s.kv_reads("K"))]
            streams.append(window(rk, a0, n - 2))
        if dma:
            streams.append(window(s.dma_items(4), pvpos[0][0], n - 6))
        for lo, hi, items in (extra(pos, pvpos, n) if extra else []):
            streams.append(window(items, lo, hi))
        if not last:
            streams.append(window([f"s_lshl_b32 s4, s3, 12", f"s_add_u32 s{S_NWR}, s{S_RD}, s4", f"s_add_u32 s{S_RD}, s{S_RD}, 32768",
                                   f"s_cmp_eq_u32 s{S_RD}, 163840\ns_cselect_b32 s{S_RD}, 0, s{S_RD}"], n - 12, n - 5))
            streams.append(window([f"s_mov_b32 s{S_WR}, s{S_NWR}", f"v_add_u32 v{V_RA}, s{S_RD}, v{V_L16}"], n - 1, n - 1))
        pack(k, mf, streams)
        k.vm = [("D", t[1] - 1) if isinstance(t, tuple) and t[0] == "D" else t for t in k.vm]
        s.pend, s.psm = prev, prev_sm

    def loop(s, specs, count_expr):
        k = s.k
        top, end = k.label("lp"), k.label("le")
        k(count_expr)
        k(f"s_cmp_eq_u32 s{S_CNT}, 0\ns_cbranch_scc1 {end}\n{top}:")
        got = [t for t in k.vm if isinstance(t, tuple) and t[0] == "D"]
        k.vm = [("D", g) for g in range(4) for _ in range(8)]
        assert got == k.vm[len(k.vm) - len(got):] and len(got) >= 24
        for i in range(16): k.lgt[("Kf", i)] = k.clock - 32 + 2 * i
        vm0, lg0, par0, psm0, pq = list(k.vm), list(k.lg), s.par, list(s.psm), (s.pend.q, s.pend.par, s.pend.modes)
        s.period(specs)
        k(f"s_sub_u32 s{S_CNT}, s{S_CNT}, 1\ns_cmp_lg_u32 s{S_CNT}, 0\ns_cbranch_scc1 {top}\n{end}:")
        assert k.vm == vm0, (k.vm, vm0)
        assert k.lg == lg0[len(lg0) - len(k.lg):], (k.lg, lg0)
        k.lg = lg0
        assert s.par == par0 and s.psm == psm0 and (s.pend.q, s.pend.par, s.pend.modes) == pq

    def drain(s):
        k = s.k
        J = s.pend
        c1, c2 = s.check_items(J)
        k(c1); k("s_nop 1"); k(c2)
        k.stream(s.pv_block(J, vwait=True), {})

    def out_items(s, q):
        k = s.k
        l, t, O = V_L + q, V_X, V_O + 32 * q
        items = [f"v_mov_b32 v{t}, v{l}\ns_nop 1\nv_permlane16_swap_b32 v{l}, v{t}\nv_add_f32 v{l}, v{l}, v{t}",
                 f"v_mov_b32 v{t}, v{l}\ns_nop 1\nv_permlane32_swap_b32 v{l}, v{t}\nv_add_f32 v{l}, v{l}, v{t}",
                 f"v_rcp_f32 v{l}, v{l}\ns_nop 0\nv_mul_f32 v{l}, 0x1f800000, v{l}"]
        for ds in range(4):
            x = O + 8 * ds
            for r in range(0, 8, 2):
                items.append(f"v_mul_f32 v{x+r}, v{x+r}, v{l}\nv_mul_f32 v{x+r+1}, v{x+r+1}, v{l}")
                items.append(f"v_cvt_pk_bf16_f32 v{x+r//2}, v{x+r}, v{x+r+1}")
            items.append(It(lambda x=x, ds=ds: k.vmop(
                f"buffer_store_dwordx4 {v(x,4)}, v{V_L16}, s[{SCTX}:{SCTX+3}], s{S_RB+q} offen offset:{ds*1024}", "st"), "d"))
        return [x if isinstance(x, It) else It(x) for x in items]

    def emit_slow(s):
        k = s.k
        for out, back, q, par in s.stubs:
            k(f"{out}:\ns_call_b64 s[{S_RET}:{S_RET+1}], {k.name}_slow{q}{par}\ns_branch {back}")
        for q, par in sorted(s.slow):
            J = Job(q, FULL, par)
            mx, t, al = V_X + 1, V_X + 2, V_X + 3
            nf, join = k.label("nf"), k.label("sj")
            k(f"{k.name}_slow{q}{par}:\nv_max3_f32 v{mx}, v{J.S}, v{J.S+1}, v{J.S+2}")
            for e in range(3, 15, 2): k(f"v_max3_f32 v{mx}, v{mx}, v{J.S+e}, v{J.S+e+1}")
            k(f"""
            v_max_f32 v{mx}, v{mx}, v{J.S+15}
            v_mov_b32 v{t}, v{mx}
            s_nop 1
            v_permlane16_swap_b32 v{mx}, v{t}
            v_max_f32 v{mx}, v{mx}, v{t}
            v_mov_b32 v{t}, v{mx}
            s_nop 1
            v_permlane32_swap_b32 v{mx}, v{t}
            v_max_f32 v{mx}, v{mx}, v{t}
            v_add_f32 v{mx}, 0x42cc0000, v{mx}
            s_cmp_eq_u32 s{S_THR+q}, {THR_BITS}
            s_cbranch_scc1 {nf}
            s_mov_b32 s{S_THR+q}, {THR_BITS}
            """)
            if q == LASTQ: k(f"s_mov_b32 s{S_ARM}, {THR_BITS}")
            k(f"""
            s_branch {join}
            {nf}:
            v_max_f32 v{mx}, 0, v{mx}
            v_sub_f32 v{al}, 0, v{mx}
            v_exp_f32 v{al}, v{al}
            s_nop 0
            v_mul_f32 v{V_L+q}, v{V_L+q}, v{al}
            """)
            for r in range(32): k(f"v_mul_f32 v{V_O+32*q+r}, v{V_O+32*q+r}, v{al}")
            k(f"{join}:")
            for r in range(4): k(f"v_sub_f32 v{V_C+4*q+r}, v{V_C+4*q+r}, v{mx}")
            for e in range(16): k(f"v_sub_f32 v{V_X+8+e}, v{J.S+e}, v{mx}")
            for e in range(16): k(f"v_exp_f32 v{V_X+8+e}, v{V_X+8+e}")
            k(f"v_add_f32 v{J.ps}, v{V_X+8}, v{V_X+9}")
            for e in range(2, 16): k(f"v_add_f32 v{J.ps}, v{J.ps}, v{V_X+8+e}")
            for e in range(8): k(f"v_cvt_pk_bf16_f32 v{J.P+e}, v{V_X+8+2*e}, v{V_X+9+2*e}")
            k(f"s_nop 1\ns_setpc_b64 s[{S_RET}:{S_RET+1}]")


def diag_modes(blk):
    return "".join("F" if b < blk else "T" if b == blk else "E" for b in range(4))


def make_k2(name="k2_kernel", ts=False):
    k = K(name, 256, 256, 163840, vgpr=256, agpr=256)
    load_args(k)
    stamp(k, 0, ts)
    proj_setup(k)
    k(f"""
    s_and_b32 s{S_H}, s2, 7
    s_lshl_b32 s{S_H}, s{S_H}, 2
    s_bfe_u32 s{S_I}, s2, 0x20003
    s_add_u32 s{S_H}, s{S_H}, s{S_I}
    s_lshr_b32 s{S_I}, s2, 5
    v_lshlrev_b32 v{V_L16}, 4, v0
    s_lshl_b32 s4, s3, 12
    v_add_u32 v{V_DVO}, s4, v{V_L16}
    s_lshl_b32 s5, s{S_I}, 3
    s_sub_u32 s6, 120, s5
    s_sub_u32 s7, 7, s3
    s_add_u32 s{S_RB}, s5, s3
    s_add_u32 s{S_RB+1}, s5, s7
    s_add_u32 s{S_RB+2}, s6, s3
    s_add_u32 s{S_RB+3}, s6, s7
    """)
    for q in range(4): k(f"s_lshl_b32 s{S_RB+q}, s{S_RB+q}, 14")
    k(f"s_waitcnt lgkmcnt(0)\ns_lshl_b32 s4, s{S_H}, 8\ns_sub_u32 s5, 0x400000, s4")
    srd(k, SWQ, P['wq'], P['wq'] + 1, "s4", "s5")
    srd(k, SXN, P['ws'], P['ws'] + 1, WS_XN, 2 * MB)
    steps = [dict(srd=SWQ, col=128 * (s_ % 2), mode="Q", kc=s_ // 2, acc=s_ % 2) for s_ in range(8)]

    def xn_items(kc):
        out = []
        for b in range(4):
            its = [f"s_add_u32 s5, s{S_RB+b}, {kc*4096}"]
            for ks in range(4):
                its.append(lambda b=b, ks=ks: k.vmop(
                    f"buffer_load_dwordx4 {a(64*b+16*kc+4*ks,4)}, v{V_L16}, s[{SXN}:{SXN+3}], s5 offen offset:{ks*1024}", ("XN", kc, b)))
            out.append(seq(k, its))
        return out
    w_dma(k, 0, steps)()
    for it in xn_items(0): it()
    w_dma(k, 1, steps)()
    for it in xn_items(1): it()
    w_dma(k, 2, steps)(); w_dma(k, 3, steps)()
    k(f"s_lshl_b32 s4, s{S_H}, 19\ns_sub_u32 s5, 16, s{S_I}\ns_lshl_b32 s5, s5, 15")
    srd(k, SK, P['ws'], P['ws'] + 1, "s4", "s5")
    k(f"s_add_u32 s4, s4, {WS_V}")
    srd(k, SV, P['ws'], P['ws'] + 1, "s4", "s5")
    k(f"s_lshl_b32 s4, s{S_H}, 12\ns_add_u32 s4, s4, {WS_CTX}")
    srd(k, SCTX, P['ws'], P['ws'] + 1, "s4", 16 * MB)
    k("v_lshrrev_b32 v2, 4, v0\nv_lshlrev_b32 v2, 2, v2\nv_and_b32 v3, 15, v0\nv_sub_u32 v2, v3, v2")
    for r in range(4): k(f"v_cmp_le_i32 s[{S_MASK+2*r}:{S_MASK+2*r+1}], {r}, v2")
    A = Att(k)

    def k0_dma():
        k(f"s_lshl_b32 s4, s3, 12\ns_add_u32 m0, s4, 81920\ns_nop 0")
        for jj in range(4):
            k.vmop(f"buffer_load_dwordx4 v{V_DVO}, s[{SK}:{SK+3}], 0 offen offset:{jj*1024} lds", "K0")

    def pair_dma(p):
        return seq(k, [f"s_lshl_b32 s4, s3, 12\ns_add_u32 s{S_WR}, s4, {((p+3) % 5)*32768}\ns_mov_b32 s{S_DSO}, {p*16384}"] + [it.x for it in A.dma_items(p)])
    stamp(k, 1, ts)
    k.vmwait(("W", 0))
    k("s_barrier")
    stamp(k, 2, ts)
    extra = {0: [(4, 40, xn_items(2))], 2: [(4, 40, xn_items(3))], 4: [(4, 4, [k0_dma]), (24, 24, [pair_dma(0)])], 5: [(8, 8, [pair_dma(1)])]}
    res = lambda b, ks: a(64 * b + 4 * ks, 4)
    res_wait = lambda step, b, ks: [lambda: k.vmwait(("XN", step // 2, b))]

    def epi(step):
        if step < 6: return []
        g = step % 2
        items = []
        for b in range(4):
            for j in range(2):
                x, y = V_ACC + 64 * g + 32 * j + 4 * b, V_ACC + 64 * g + 32 * j + 16 + 4 * b
                for z in (x, y):
                    for r in range(0, 4, 2):
                        items.append(f"v_mul_f32 v{z+r}, {QSCALE}, v{z+r}\nv_mul_f32 v{z+r+1}, {QSCALE}, v{z+r+1}")
                        items.append(f"v_cvt_pk_bf16_f32 v{x + (2 if z == y else 0) + r//2}, v{z+r}, v{z+r+1}")
        return items
    proj_core(k, steps, res, extra, res_wait, epi)
    stamp(k, 3, ts)
    k.vmwait("K0")
    k("s_barrier")
    pair_dma(2)(); pair_dma(3)()
    k(f"s_mov_b32 s{S_DSO}, {4*16384}\ns_lshl_b32 s4, s3, 12\ns_add_u32 s{S_WR}, s4, 65536\ns_mov_b32 s{S_RD}, 98304")
    k(f"v_add_u32 v{V_RA}, 65536, v{V_L16}")
    for it in A.kv_reads("K"): it()
    k(f"v_add_u32 v{V_RA}, 98304, v{V_L16}")
    for g in range(2):
        for b in range(4):
            for j in range(2):
                x = V_ACC + 64 * g + 32 * j + 4 * b
                for r in range(4): k(f"v_accvgpr_write_b32 a{A_Q+16*b+4*(2*g+j)+r}, v{x+r}")
    for r in range(128): k(f"v_mov_b32 v{V_O+r}, 0")
    for r in range(V_T, V_L + 4): k(f"v_mov_b32 v{r}, 0")
    for r in range(16): k(f"v_mov_b32 v{V_C+r}, 0xc2cc0000\nv_mov_b32 v{V_P+r}, 0\nv_mov_b32 v{V_S+16+r}, {NEG}")
    for q in range(4): k(f"s_mov_b32 s{S_THR+q}, {THR_BITS if q == LASTQ else '-1.0'}\ns_lshl_b32 s{S_RB+q}, s{S_RB+q}, 3")
    k(f"s_mov_b32 s{S_ARM}, -1.0")
    A.pend = Job(LASTQ, FULL, 1)
    full_sm = A.sm_items(A.pend)
    A.psm = [it.x for it in full_sm[CARRY:]]
    stamp(k, 4, ts)
    shared = [(0, FULL), (1, FULL), (3, FULL), (2, FULL)]
    single = [(3, FULL), (2, FULL)]
    A.loop(shared, f"s_lshl_b32 s{S_CNT}, s{S_I}, 1")
    stamp(k, 5, ts)

    def variants(fn):
        labs = [k.label(f"w{w}") for w in range(4)]
        join = k.label("vj")
        st = (list(k.vm), list(k.lg), A.par, A.pend, list(A.psm))
        res_ = None
        for w in range(4):
            k(f"{labs[w]}:")
            if w < 3: k(f"s_cmp_eq_u32 s3, {w}\ns_cbranch_scc0 {labs[w+1]}")
            k.vm, k.lg, A.par, A.pend, A.psm = list(st[0]), list(st[1]), st[2], st[3], list(st[4])
            fn(w)
            k.vm = [t for t in k.vm if isinstance(t, tuple) and t[0] == "D"]
            now = (list(k.vm), list(k.lg), A.par, A.pend.q, A.pend.par, list(A.psm))
            assert res_ is None or res_ == now, (res_, now)
            res_ = now
            if w < 3: k(f"s_branch {join}")
        k(f"{join}:")

    def diagA(w):
        A.period([(0, diag_modes(w)), (1, FULL), (3, FULL), (2, FULL)])
        A.period([(1, diag_modes(3 - w)), (3, FULL), (2, FULL)],
                 extra=lambda pos, pv, n: [(2, pv[1][0] - 1, A.out_items(0)), (pv[2][0] - 4, n - 1, A.out_items(1))])
    variants(diagA)
    stamp(k, 6, ts)
    A.loop(single, f"s_lshl_b32 s4, s{S_I}, 2\ns_sub_u32 s{S_CNT}, 28, s4")
    stamp(k, 7, ts)

    def diagB(w):
        A.period([(3, FULL), (2, diag_modes(w))], dma=False)
        A.period([(3, diag_modes(3 - w))], dma=False, nextk=False, last=True)
        o2 = A.out_items(2)
        J = A.pend
        c1, c2 = A.check_items(J)
        k(c1); seq(k, [it.x for it in o2[:3]])(); k("s_nop 0"); k(c2)
        blk = A.pv_block(J, vwait=True)
        pack(k, blk, [window(o2[3:], 0, len(blk) - 1)])
        seq(k, [it.x for it in A.out_items(3)])()
        k.lg = []
        A.psm = []
    variants(diagB)
    stamp(k, 8, ts)
    if ts:
        k.vmdrain(); stamp(k, 9, ts)
    stamp_flush(k, 1, ts)
    k("s_endpgm")
    A.emit_slow()
    return k


if __name__ == "__main__":
    import hazard, k1
    ks = [k1.make_k1(), make_k2(ts=True)]
    txt = build_file(ks)
    open("t_k2.s", "w").write(txt)
    for x in hazard.check(txt)[:40]: print(x)
    print(len(txt), txt.count("s_nop"))
```

```python
from emit import *
from k1 import seq

V_L16, V_AO, V_BO, V_ACC, V_T = 2, 4, 8, 64, 128
SA, SB, SR, SO, SS = 8, 12, 16, 20, 24
S_R, S_C, S_KO, S_KA, S_CNT = 70, 71, 72, 73, 74


def gemm_main(k, nk, per_wave, ts):
    for t in range(4):
        k(f"v_add_u32 v{V_AO+t}, {t*nk*1024}, v{V_L16}")
    k(f"s_mul_i32 s{S_KO}, s3, {per_wave*1024}")
    nb = (per_wave + 1) // 2
    short = 4 * per_wave > nk

    def loads(b):
        items = []
        kss = range(min(2, per_wave - 2 * b))
        for ks in kss:
            lastk = short and 2 * b + ks == per_wave - 1
            for t in range(4):
                for op, sr in ((0, SA), (1, SB)):
                    so = S_KA if (lastk and op == 0) else S_KO
                    items.append(It(lambda t=t, ks=ks, op=op, sr=sr, so=so: k.vmop(
                        f"buffer_load_dwordx4 {a(64*(b%4)+32*op+8*t+4*ks,4)}, v{V_AO+t}, s[{sr}:{sr+3}], s{so} offen offset:{ks*1024}", ("L", b % 4, ks)), "d"))
        items.append(It(f"s_add_u32 s{S_KO}, s{S_KO}, 2048"))
        return items

    def batch(b, nxt):
        mf = []
        kss = list(range(min(2, per_wave - 2 * b)))
        first = True
        for nt in range(4):
            for rr in range(4):
                rb = rr if nt % 2 == 0 else 3 - rr
                for ks in (kss if rr % 2 == 0 else kss[::-1]):
                    pre = [lambda: k.vmwait([("L", b % 4, x) for x in kss])] if first else []
                    first = False
                    acc = v(V_ACC + 16 * rb + 4 * nt, 4)
                    mf.append((pre, mfma(acc, a(64 * (b % 4) + 8 * nt + 4 * ks, 4), a(64 * (b % 4) + 32 + 8 * rb + 4 * ks, 4), acc)))
        pack(k, mf, [window(loads(b + 3), 0, len(mf) - 1)] if nxt else [])

    if short:
        k(f"s_add_u32 s{S_KA}, s{S_KO}, {(per_wave-1)//2*2048}\ns_cmp_eq_u32 s3, 3\ns_cselect_b32 s{S_KA}, 0x7000000, s{S_KA}")
    for b in range(3):
        seq(k, [it.x for it in loads(b)])()
    return nb, batch


def reduce_write(k, gs, tsz):
    k(f"""
    v_and_b32 v12, 15, v0
    v_lshlrev_b32 v12, 4, v12
    v_lshrrev_b32 v13, 4, v0
    v_mul_u32_u24 v13, {gs}, v13
    v_add_u32 v12, v12, v13
    s_mul_i32 s4, s3, {16*tsz}
    v_add_u32 v13, s4, v12
    s_nop 7
    """)
    for i in range(16):
        k.lgop(f"ds_write_b128 v13, {v(V_ACC+4*i,4)} offset:{i*tsz}", "rw")
    k.lgdrain()
    k("s_barrier")


def tile_ids(k):
    k(f"""
    s_and_b32 s{S_R}, s2, 7
    s_lshl_b32 s{S_R}, s{S_R}, 2
    s_bfe_u32 s4, s2, 0x20003
    s_add_u32 s{S_R}, s{S_R}, s4
    s_lshr_b32 s{S_C}, s2, 5
    v_lshlrev_b32 v{V_L16}, 4, v0
    s_waitcnt lgkmcnt(0)
    """)


def make_k3(name="k3_kernel", ts=False):
    k = K(name, 256, 256, 65536, vgpr=256, agpr=256)
    load_args(k)
    stamp(k, 0, ts)
    tile_ids(k)
    k(f"s_lshl_b32 s4, s{S_C}, 19\ns_add_u32 s4, s4, {WS_WO}"); srd(k, SA, P['ws'], P['ws'] + 1, "s4", 4 * 131072)
    k(f"s_lshl_b32 s4, s{S_R}, 19\ns_add_u32 s4, s4, {WS_CTX}"); srd(k, SB, P['ws'], P['ws'] + 1, "s4", 4 * 131072)
    nb, batch = gemm_main(k, 128, 32, ts)
    k(f"s_lshl_b32 s5, s{S_R}, 2\ns_add_u32 s5, s5, s3\ns_lshl_b32 s5, s5, 14\ns_lshl_b32 s4, s{S_C}, 7\ns_add_u32 s4, s4, s5")
    srd(k, SR, P['x'], P['x'] + 1, "s4", 15 * 1024 + 128)
    k(f"s_lshl_b32 s4, s{S_C}, 11\ns_add_u32 s4, s4, s5\ns_add_u32 s4, s4, {WS_H}"); srd(k, SO, P['ws'], P['ws'] + 1, "s4", 2048)
    k(f"s_lshr_b32 s5, s5, 4\ns_lshl_b32 s4, s{S_C}, 3\ns_add_u32 s4, s4, s5\ns_add_u32 s4, s4, {WS_ST}"); srd(k, SS, P['ws'], P['ws'] + 1, "s4", 1024)
    k("v_and_b32 v12, 15, v0\nv_lshlrev_b32 v14, 6, v12\nv_lshlrev_b32 v12, 10, v12\nv_lshrrev_b32 v13, 4, v0\nv_lshl_add_u32 v12, v13, 3, v12")
    X = 16
    for nt in range(4):
        k.vmop(f"buffer_load_dwordx2 {v(X+2*nt,2)}, v12, s[{SR}:{SR+3}], 0 offen offset:{32*nt}", "X")
    for r in range(64): k(f"v_mov_b32 v{V_ACC+r}, 0")
    stamp(k, 1, ts)
    top = k.label("lp")
    k(f"s_mov_b32 s{S_CNT}, 3\n{top}:")
    k.vm = [t for t in k.vm if t != "X"]
    vm0 = list(k.vm)
    for b in range(4): batch(b, True)
    assert k.vm == vm0
    k(f"s_sub_u32 s{S_CNT}, s{S_CNT}, 1\ns_cmp_lg_u32 s{S_CNT}, 0\ns_cbranch_scc1 {top}")
    batch(12, True)
    for b in range(13, 16): batch(b, False)
    stamp(k, 2, ts)
    reduce_write(k, 256, 1024)
    k(f"s_lshl_b32 s4, s3, 12\nv_add_u32 v13, s4, v{V_L16}")
    for w in range(4):
        for nt in range(4):
            k.lgop(f"ds_read_b128 {v(V_T+16*w+4*nt,4)}, v13 offset:{w*16384+nt*1024}", ("rr", w))
    k.lgwait(("rr", 1))
    for r in range(16): k(f"v_add_f32 v{V_T+r}, v{V_T+r}, v{V_T+16+r}")
    k.lgwait(("rr", 3))
    for r in range(16): k(f"v_add_f32 v{V_T+32+r}, v{V_T+32+r}, v{V_T+48+r}")
    for r in range(16): k(f"v_add_f32 v{V_T+r}, v{V_T+r}, v{V_T+32+r}")
    H, U = 24, V_T + 16
    for j in range(8):
        k(f"""
        v_cvt_pk_bf16_f32 v{H+j}, v{V_T+2*j}, v{V_T+2*j+1}
        v_lshlrev_b32 v{U+2*j}, 16, v{X+j}
        v_and_b32 v{U+2*j+1}, 0xffff0000, v{X+j}
        v_lshlrev_b32 v{V_T+2*j}, 16, v{H+j}
        v_and_b32 v{V_T+2*j+1}, 0xffff0000, v{H+j}
        v_add_f32 v{U+2*j}, v{U+2*j}, v{V_T+2*j}
        v_add_f32 v{U+2*j+1}, v{U+2*j+1}, v{V_T+2*j+1}
        v_cvt_pk_bf16_f32 v{H+j}, v{U+2*j}, v{U+2*j+1}
        """)
    for j in range(2):
        k.vmop(f"buffer_store_dwordx4 {v(H+4*j,4)}, v{V_L16}, s[{SO}:{SO+3}], 0 offen offset:{1024*j}", "st")
    for j in range(8):
        k(f"v_lshlrev_b32 v{U+2*j}, 16, v{H+j}\nv_and_b32 v{U+2*j+1}, 0xffff0000, v{H+j}")
    k(f"v_add_f32 v32, v{U}, v{U+1}")
    for j in range(2, 16): k(f"v_add_f32 v32, v32, v{U+j}")
    xlane_sum(k, 32, 3, ["p16", "p32"])
    k(f"v_mul_f32 v32, 0x3c800000, v32\nv_sub_f32 v3, v{U}, v32\nv_mul_f32 v33, v3, v3")
    for j in range(1, 16): k(f"v_sub_f32 v3, v{U+j}, v32\nv_fmac_f32 v33, v3, v3")
    xlane_sum(k, 33, 3, ["p16", "p32"])
    k(f"buffer_store_dwordx2 v[32:33], v14, s[{SS}:{SS+3}], 0 offen")
    stamp(k, 3, ts)
    stamp_flush(k, 2, ts)
    k("s_endpgm")
    return k


def make_k5(name="k5_kernel", ts=False):
    GS, TS = 320, 1344
    k = K(name, 256, 256, 64 * TS, vgpr=256, agpr=256)
    load_args(k)
    stamp(k, 0, ts)
    tile_ids(k)
    k(f"s_mul_i32 s4, s{S_C}, {4*43*1024}\ns_add_u32 s4, s4, {WS_W2}"); srd(k, SA, P['ws'], P['ws'] + 1, "s4", 4 * 43 * 1024)
    k(f"s_mul_i32 s4, s{S_R}, {4*43*1024}\ns_add_u32 s4, s4, {WS_HH}"); srd(k, SB, P['ws'], P['ws'] + 1, "s4", 4 * 43 * 1024)
    nb, batch = gemm_main(k, 43, 11, ts)
    k(f"s_lshl_b32 s5, s{S_R}, 2\ns_add_u32 s5, s5, s3\ns_lshl_b32 s5, s5, 14\ns_lshl_b32 s4, s{S_C}, 7\ns_add_u32 s4, s4, s5")
    srd(k, SO, P['out'], P['out'] + 1, "s4", 15 * 1024 + 128)
    k(f"s_lshl_b32 s4, s{S_C}, 11\ns_add_u32 s4, s4, s5\ns_add_u32 s4, s4, {WS_H}"); srd(k, SR, P['ws'], P['ws'] + 1, "s4", 2048)
    k(f"""
    v_lshrrev_b32 v12, 2, v0
    v_and_b32 v13, 1, v0
    v_bfe_u32 v14, v0, 1, 1
    v_lshlrev_b32 v15, 4, v12
    v_lshl_add_u32 v3, v13, 9, v15
    v_lshl_add_u32 v3, v14, 3, v3
    v_mul_u32_u24 v13, {2*GS}, v13
    v_mul_u32_u24 v14, {TS}, v14
    v_add3_u32 v15, v15, v13, v14
    s_mul_i32 s4, s3, {4*TS}
    v_add_u32 v15, s4, v15
    v_and_b32 v13, 3, v0
    v_lshlrev_b32 v13, 4, v13
    v_lshl_add_u32 v14, v12, 10, v13
    """)
    X = 16
    for hh in range(2):
        for gg in range(2):
            k.vmop(f"buffer_load_dwordx2 {v(X+4*hh+2*gg,2)}, v3, s[{SR}:{SR+3}], 0 offen offset:{1024*hh+256*gg}", "X")
    for r in range(64): k(f"v_mov_b32 v{V_ACC+r}, 0")
    stamp(k, 1, ts)
    for b in range(nb): batch(b, b + 3 < nb)
    stamp(k, 2, ts)
    reduce_write(k, GS, TS)
    k(f"v_add_u32 v13, {32*TS}, v15")
    for w in range(4):
        for hh in range(2):
            for gg in range(2):
                k.lgop(f"ds_read_b128 {v(V_T+16*w+8*hh+4*gg,4)}, v{15 if w < 2 else 13} offset:{(w % 2)*16*TS+2*hh*TS+gg*GS}", ("rr", w))
    k.lgwait(("rr", 1))
    for r in range(16): k(f"v_add_f32 v{V_T+r}, v{V_T+r}, v{V_T+16+r}")
    k.lgwait(("rr", 3))
    for r in range(16): k(f"v_add_f32 v{V_T+32+r}, v{V_T+32+r}, v{V_T+48+r}")
    for r in range(16): k(f"v_add_f32 v{V_T+r}, v{V_T+r}, v{V_T+32+r}")
    k.vmwait("X")
    H, U = 24, V_T + 16
    for j in range(8):
        k(f"""
        v_cvt_pk_bf16_f32 v{H+j}, v{V_T+2*j}, v{V_T+2*j+1}
        v_lshlrev_b32 v{U+2*j}, 16, v{X+j}
        v_and_b32 v{U+2*j+1}, 0xffff0000, v{X+j}
        v_lshlrev_b32 v{V_T+2*j}, 16, v{H+j}
        v_and_b32 v{V_T+2*j+1}, 0xffff0000, v{H+j}
        v_add_f32 v{U+2*j}, v{U+2*j}, v{V_T+2*j}
        v_add_f32 v{U+2*j+1}, v{U+2*j+1}, v{V_T+2*j+1}
        v_cvt_pk_bf16_f32 v{H+j}, v{U+2*j}, v{U+2*j+1}
        """)
        if j % 4 == 3:
            k.vmop(f"buffer_store_dwordx4 {v(H+j-3,4)}, v14, s[{SO}:{SO+3}], 0 offen offset:{64*(j//4)}", "st")
    stamp(k, 3, ts)
    stamp_flush(k, 4, ts)
    k("s_endpgm")
    return k
```

```python
from emit import *
from k1 import seq

V_L16, V_WVO, V_HO, V_RA = 2, 4, 7, 9
V_MB, V_RS, V_S2, V_NL = 12, 14, 16, 18
V_WF, V_ACC, V_T = 32, 64, 160
SW, SH, SST, SCS, SO = 8, 12, 16, 20, 24
S_RB, S_PS, S_SO, S_LW = 70, 71, 72, 73
SLOT, NSL, CSL = 24576, 6, 147456


def body(k, np_, ts):
    nt = 4 * np_
    tw = np_
    k(f"s_mul_i32 s4, s3, {tw*16384}\nv_add_u32 v{V_WVO}, s4, v{V_L16}\nv_add_u32 v{V_WVO+1}, {16384-2048}, v{V_WVO}\n"
      f"v_add_u32 v{V_WVO+2}, {2*16384}, v{V_WVO}\ns_mul_i32 s{S_LW}, s3, {tw*2048}")

    def wdma(s_):
        items = [It(f"s_add_u32 m0, s{S_LW}, {(s_ % NSL)*SLOT}"), It(f"s_mov_b32 s{S_SO}, {s_*2048}")]
        for tt in range(tw):
            if tt == 2: items.append(It(f"s_add_u32 m0, s{S_LW}, {(s_ % NSL)*SLOT + 4096}"))
            for kk in range(2):
                items.append(It(lambda tt=tt, kk=kk: k.vmop(
                    f"buffer_load_dwordx4 v{V_WVO+tt}, s[{SW}:{SW+3}], s{S_SO} offen offset:{(tt % 2)*2048 + kk*1024} lds", ("W", s_)), "d"))
        return items

    def hload(s_):
        items = [It(f"s_mov_b32 s5, {s_*2048}")]
        for rb in range(2):
            for kk in range(2):
                items.append(It(lambda rb=rb, kk=kk: k.vmop(
                    f"buffer_load_dwordx4 {a(16*s_+8*rb+4*kk,4)}, v{V_HO+rb}, s[{SH}:{SH+3}], s5 offen offset:{kk*1024}", ("H", s_)), "d"))
        return items
    run = lambda items: seq(k, [it.x for it in items])()
    k(f"v_and_b32 v3, 15, v0\nv_lshlrev_b32 v3, 6, v3\nv_lshrrev_b32 v10, 4, v0\nv_lshl_add_u32 v3, v10, 4, v3")
    for rb in range(2):
        k.vmop(f"buffer_load_dwordx4 {v(V_T+4*rb,4)}, v3, s[{SST}:{SST+3}], 0 offen offset:{1024*rb}", "ST")
    k(f"""
    s_lshl_b32 s4, s3, 6
    v_add_u32 v10, s4, v0
    v_bfe_u32 v11, v10, 4, 1
    v_mul_u32_u24 v11, {16*5632}, v11
    v_lshrrev_b32 v3, 5, v10
    v_lshlrev_b32 v3, 6, v3
    v_add_u32 v11, v11, v3
    v_and_b32 v3, 15, v0
    v_lshl_add_u32 v11, v3, 2, v11
    v_lshlrev_b32 v10, 2, v10
    s_mov_b32 s4, 0
    """)
    for ks in range(16):
        k.vmop(f"buffer_load_dword v{V_T+8+ks}, v11, s[{SCS}:{SCS+3}], s4 offen", "CS")
        if ks < 15: k("s_add_u32 s4, s4, 5632")
    for s_ in range(3):
        run(wdma(s_)); run(hload(s_))
    k.vmwait("CS")
    for ks in range(1, 16): k(f"v_add_f32 v{V_T+8}, v{V_T+8}, v{V_T+8+ks}")
    k(f"v_add_u32 v10, {CSL}, v10")
    k.lgop(f"ds_write_b32 v10, v{V_T+8}", "csw")
    for rb in range(2):
        T = V_T + 4 * rb
        m, q = V_MB + rb, V_RS + rb
        k(f"v_add_f32 v{m}, v{T}, v{T+2}")
        xlane_sum(k, m, 3, ["p16", "p32"])
        k(f"""
        v_mul_f32 v{m}, 0x3e000000, v{m}
        v_sub_f32 v{T}, v{T}, v{m}
        v_sub_f32 v{T+2}, v{T+2}, v{m}
        v_mul_f32 v{T}, v{T}, v{T}
        v_fmac_f32 v{T}, v{T+2}, v{T+2}
        v_add_f32 v{q}, v{T+1}, v{T+3}
        v_fmac_f32 v{q}, 0x42800000, v{T}
        """)
        xlane_sum(k, q, 3, ["p16", "p32"])
        k(f"""
        v_mul_f32 v{q}, 0x3b000000, v{q}
        v_cvt_pk_bf16_f32 v{m}, v{m}, v{q}
        v_and_b32 v{q}, 0xffff0000, v{m}
        v_lshlrev_b32 v{m}, 16, v{m}
        v_xor_b32 v{m}, 0x80000000, v{m}
        v_add_f32 v{q}, 0x3727c5ac, v{q}
        v_cvt_pk_bf16_f32 v{q}, v{q}, v{q}
        v_lshlrev_b32 v{q}, 16, v{q}
        v_sqrt_f32 v{q}, v{q}
        s_nop 0
        v_cvt_pk_bf16_f32 v{q}, v{q}, v{q}
        v_lshlrev_b32 v{q}, 16, v{q}
        v_mul_f32 v{V_S2+rb}, v{q}, v{q}
        v_rcp_f32 v{q}, v{q}
        s_nop 0
        v_mul_f32 v{V_NL+rb}, 0xbfb8aa3b, v{q}
        """)
    for s_ in range(3, 6):
        run(wdma(s_)); run(hload(s_))
    k.lgdrain()
    k(f"v_add_u32 v{V_RA+1}, {2*SLOT}, v{V_L16}\nv_add_u32 v{V_RA+2}, {4*SLOT}, v{V_L16}")
    k.vmwait(("W", 0))
    k("s_barrier")
    k(f"v_lshrrev_b32 v3, 4, v0\nv_lshlrev_b32 v3, 4, v3\nv_add_u32 v3, {CSL}, v3")
    for t in range(nt):
        k.lgop(f"ds_read_b128 {v(V_T+4*t,4)}, v3 offset:{64*t}", ("cs", t))

    def wreads(s_, t):
        return [It(lambda kk=kk: k.lgop(
            f"ds_read_b128 {v(V_WF+8*(t % 4)+4*kk,4)}, v{V_RA + (s_ % NSL)//2} offset:{((s_ % NSL) % 2)*SLOT + t*2048 + kk*1024}", ("F", s_, t)), "r") for kk in range(2)]
    for t in range(3): run(wreads(0, t))
    acc = lambda t, rb: V_ACC + 8 * t + 4 * rb
    for t in range(nt):
        k.lgwait(("cs", t))
        for rb in range(2):
            for r in range(4): k(f"v_mul_f32 v{acc(t, rb)+r}, v{V_T+4*t+r}, v{V_MB+rb}")
    stamp(k, 1, ts)
    for s_ in range(8):
        mf, rd = [], []
        for t in range(nt):
            for rr in range(2):
                rb = rr if t % 2 == 0 else 1 - rr
                for kk in ((0, 1) if rr == 0 else (1, 0)):
                    pre = []
                    if len(mf) == 0: pre.append(lambda: k.vmwait(("H", s_)))
                    if rr == 0 and kk == 0: pre.append(lambda t=t: k.lgwait(("F", s_, t)))
                    mf.append((pre, mfma(v(acc(t, rb), 4), v(V_WF + 8 * (t % 4) + 4 * kk, 4), a(16 * s_ + 8 * rb + 4 * kk, 4), v(acc(t, rb), 4))))
            t3 = t + 3
            if t3 < nt: its = wreads(s_, t3)
            elif s_ < 7: its = wreads(s_ + 1, t3 - nt)
            else: its = []
            rd += window(its, 4 * t, 4 * t + 3)
        streams = [rd]
        bpos = 4 * (nt - 3) - 1
        if s_ < 7:
            streams.append(window([It(lambda: (k.vmwait(("W", s_ + 1)), k("s_barrier")), "s")], bpos, bpos))
        if s_ in (1, 2):
            streams.append(window(wdma(s_ + 5), bpos + 1, len(mf) - 1))
        if s_ in (0, 1):
            streams.append(window(hload(s_ + 6), 2, 20))
        pack(k, mf, streams)
    stamp(k, 2, ts)
    k("s_nop 7")
    for pp in range(np_):
        for rb in range(2):
            T = V_T + 16 * ((2 * pp + rb) % 2)
            el = [(acc(4 * pp + 2 * f, rb) + r, acc(4 * pp + 2 * f + 1, rb) + r) for f in range(2) for r in range(4)]
            for j, (g, u) in enumerate(el): k(f"v_mul_f32 v{T+j}, v{g}, v{V_NL+rb}")
            for j, (g, u) in enumerate(el): k(f"v_exp_f32 v{T+j}, v{T+j}\nv_mul_f32 v{g}, v{g}, v{u}")
            for j, (g, u) in enumerate(el): k(f"v_fma_f32 v{T+j}, v{T+j}, v{V_S2+rb}, v{V_S2+rb}")
            for j, (g, u) in enumerate(el): k(f"v_rcp_f32 v{T+j}, v{T+j}")
            for j, (g, u) in enumerate(el): k(f"v_mul_f32 v{g}, v{g}, v{T+j}")
            for j in range(4): k(f"v_cvt_pk_bf16_f32 v{T+8+j}, v{el[2*j][0]}, v{el[2*j+1][0]}")
            k(f"s_mov_b32 s4, {rb*43*1024}")
            k.vmop(f"buffer_store_dwordx4 {v(T+8,4)}, v{V_L16}, s[{SO}:{SO+3}], s4 offen offset:{pp*1024}", "st")
    stamp(k, 3, ts)
    stamp_flush(k, 3, ts)
    k("s_endpgm")


def make_k4(name="k4_kernel", ts=False):
    k = K(name, 256, 256, CSL + 1024, vgpr=256, agpr=128)
    load_args(k)
    stamp(k, 0, ts)
    k(f"""
    s_and_b32 s{S_RB}, s2, 7
    s_lshl_b32 s{S_RB}, s{S_RB}, 1
    s_bfe_u32 s4, s2, 0x10003
    s_add_u32 s{S_RB}, s{S_RB}, s4
    s_lshl_b32 s{S_RB}, s{S_RB}, 3
    s_lshl_b32 s4, s3, 1
    s_add_u32 s{S_RB}, s{S_RB}, s4
    s_lshr_b32 s6, s2, 4
    s_mul_i32 s4, s6, 3
    s_lshl_b32 s5, s6, 1
    s_add_u32 s5, s5, 11
    s_min_u32 s{S_PS}, s4, s5
    v_lshlrev_b32 v{V_L16}, 4, v0
    v_mov_b32 v{V_HO}, v{V_L16}
    v_add_u32 v{V_HO+1}, 16384, v{V_L16}
    v_mov_b32 v{V_RA}, v{V_L16}
    s_waitcnt lgkmcnt(0)
    """)
    k(f"s_lshl_b32 s4, s{S_PS}, 16\ns_add_u32 s4, s4, {WS_W13}"); srd(k, SW, P['ws'], P['ws'] + 1, "s4", 12 * 16384)
    k(f"s_lshl_b32 s4, s{S_RB}, 14\ns_add_u32 s4, s4, {WS_H}"); srd(k, SH, P['ws'], P['ws'] + 1, "s4", 32768)
    k(f"s_lshl_b32 s4, s{S_RB}, 10\ns_add_u32 s4, s4, {WS_ST}"); srd(k, SST, P['ws'], P['ws'] + 1, "s4", 2048)
    k(f"s_lshl_b32 s4, s{S_PS}, 7\ns_sub_u32 s5, {32*5632}, s4\ns_add_u32 s4, s4, {WS_CS}"); srd(k, SCS, P['ws'], P['ws'] + 1, "s4", "s5")
    k(f"s_mul_i32 s4, s{S_RB}, {43*1024}\ns_lshl_b32 s5, s{S_PS}, 10\ns_add_u32 s4, s4, s5\ns_add_u32 s4, s4, {WS_HH}")
    srd(k, SO, P['ws'], P['ws'] + 1, "s4", 43 * 1024 + 3072)
    two = k.label("two")
    k(f"s_cmp_ge_u32 s6, 11\ns_cbranch_scc1 {two}")
    for np_ in (3, 2):
        k.vm, k.lg = [], []
        body(k, np_, ts)
        if np_ == 3: k(f"{two}:")
    return k
```

```python
import sys, hazard
from asmlib import build_file
import k1, k2, k35, k4

def build(ts=False):
    ks = [k1.make_k1(ts=ts), k2.make_k2(ts=ts), k35.make_k3(ts=ts), k4.make_k4(ts=ts), k35.make_k5(ts=ts)]
    txt = build_file(ks)
    errs = hazard.check(txt)
    for x in errs[:40]: print(x)
    assert not errs
    return txt

if __name__ == "__main__":
    open("t_all.s", "w").write(build(True))
    txt = build(False)
    open("sequential_preLN__compressed_kv_cla__glu_gated_swiglu__prompt.s", "w").write(txt)
    print(len(txt))
```

```python
from asmlib import *


class K(Kernel):
    def __init__(self, *a, **kw):
        super().__init__(*a, **kw)
        self.vm = []
        self.lg = []
        self.clock = 0
        self.lgt = {}
        self.AGE = 10

    def text(self):
        import hazard
        n0 = len(self.lines)
        self.lines = [l for l in hazard.autofix(self.lines) if l.strip()]
        return super().text()

    def vmop(self, text, tag=None):
        self(text); self.vm.append(tag)

    def lgop(self, text, tag=None):
        self(text); self.lg.append(tag); self.lgt[tag] = self.clock

    def _wait(self, q, tags, name, mx):
        if not isinstance(tags, list): tags = [tags]
        idx = max((i for i, t in enumerate(q) if t in tags), default=-1)
        if idx < 0: return
        if name == "lgkmcnt":
            while idx + 1 < len(q) and self.clock - self.lgt.get(q[idx + 1], self.clock) >= self.AGE: idx += 1
        n = min(len(q) - 1 - idx, mx)
        self(f"s_waitcnt {name}({n})")
        del q[:len(q) - n]

    def vmwait(self, tags): self._wait(self.vm, tags, "vmcnt", 63)
    def lgwait(self, tags): self._wait(self.lg, tags, "lgkmcnt", 15)

    def vmdrain(self):
        self("s_waitcnt vmcnt(0)"); self.vm = []

    def lgdrain(self):
        self("s_waitcnt lgkmcnt(0)"); self.lg = []

    def stream(self, mfmas, fill):
        def put(items):
            for it in items:
                if callable(it): it()
                else: self(it)
        put(fill.get(-1, []))
        for i, (pre, text) in enumerate(mfmas):
            put(pre)
            self(text)
            self.clock += 1
            put(fill.get(i, []))
        extra = [i for i in fill if i >= len(mfmas)]
        for i in sorted(extra): put(fill[i])


TRANS = ("v_exp_f32", "v_log_f32", "v_rcp_f32", "v_rsq_f32", "v_sqrt_f32")


class It:
    def __init__(s, x, kind=None, lo=None, hi=None):
        s.x, s.lo, s.hi = x, lo, hi
        if kind is None:
            assert isinstance(x, str)
            first = x.strip().split()[0]
            kind = "v" if first.startswith("v_") else "b" if first.startswith("s_cbranch") else "s"
        s.kind = kind
        s.cost = 4
        if isinstance(x, str):
            lines = [l.strip() for l in x.strip().split("\n") if not l.strip().endswith(":")]
            s.cost = sum(8 if l.startswith(TRANS) else 4 for l in lines)


def window(items, lo, hi, kind=None):
    out = []
    n = len(items)
    for j, x in enumerate(items):
        it = x if isinstance(x, It) else It(x, kind)
        it.due = lo + (j * (hi - lo + 1)) // max(n, 1)
        it.lo = lo if it.lo is None else max(it.lo, lo)
        it.due = max(it.due, it.lo)
        it.hi = max(hi, it.lo) if it.hi is None else it.hi
        out.append(it)
    return out


def pack(k, mfmas, streams, ahead=3):
    qs = [list(s_) for s_ in streams if s_]
    n = len(mfmas)

    def put(it):
        it.x() if callable(it.x) else k(it.x)

    def head(kinds, g, slack):
        best = None
        for q in qs:
            if q and q[0].kind in kinds and q[0].lo <= g and q[0].due <= g + slack:
                if best is None or q[0].due < best[0].due: best = q
        return best

    for g, (pre, text) in enumerate(mfmas):
        for p in pre:
            p() if callable(p) else k(p)
        k(text); k.clock += 1
        t = 4
        if g + 1 < n:
            m0 = len(k.lines)
            for p in mfmas[g + 1][0]:
                if callable(p): p()
            t += 4 * (len(k.lines) - m0)
        q = head("b", g, 0)
        if q: it = q.pop(0); put(it); t = max(t + 4, 8) + it.cost - 4
        while True:
            q = head("s", g, 0)
            if not q or (t > 4 and q[0].hi > g): break
            it = q.pop(0); put(it); t += it.cost
        q = head("d", g, 0)
        if q and (t <= 8 or q[0].hi <= g):
            put(q.pop(0)); t += 20
        nv = head("v", g, ahead)
        vcost = nv[0].cost if nv else 0
        behind = nv is not None and nv[0].due < g - 1
        q = head("r", g, 1)
        if q and t <= 8 and (q[0].due < g - 1 or q[0].hi <= g or (vcost <= 4 and t == 4) or (vcost == 0)):
            put(q.pop(0)); t += 4
            q = head("r", g, 2 if vcost == 0 else -3)
            if q and t <= 8: put(q.pop(0)); t += 4
            t += 4
        while True:
            q = head("v", g, ahead)
            if not q: break
            st = max(t, 8)
            if st + q[0].cost > 16 and q[0].hi > g and not (q[0].due < g - 2 and st < 16): break
            it = q.pop(0); put(it); t = st + it.cost
        for q in qs:
            while q and q[0].hi <= g: put(q.pop(0))
    for q in qs:
        while q: put(q.pop(0))


def spread(fill, items, lo, hi):
    n = len(items)
    for j, it in enumerate(items):
        idx = lo + (j * (hi - lo + 1)) // max(n, 1)
        fill.setdefault(idx, []).append(it)


def mfma(d, A, B, c):
    return f"v_mfma_f32_16x16x32_bf16 {d}, {A}, {B}, {c}"


def srd(k, n, lo, hi, off, size):
    k(f"s_add_u32 s{n}, s{lo}, {off}\ns_addc_u32 s{n+1}, s{hi}, 0\ns_mov_b32 s{n+2}, {size}\ns_mov_b32 s{n+3}, 0x20000")


MB = 1 << 20
WS_K = 0
WS_V = 16 * MB
WS_XN = 32 * MB
WS_CTX = 34 * MB
WS_WO = 50 * MB
WS_W13 = 54 * MB
WS_CS = 57 * MB
WS_W2 = 58 * MB
WS_H = 60 * MB
WS_ST = 62 * MB
WS_HH = 63 * MB
WS_FL = 69 * MB
WS_TS = 128 * MB

P = dict(x=36, ckv=38, wq=40, wuk=42, wuv=44, wo=46, bx=48, w1=50, w3=52, w2=54, out=56, dbg=58, ws=60)


def load_args(k, nwg=256):
    k(f"""
    s_cmp_ge_u32 s2, {nwg}
    s_cbranch_scc0 {k.name}_go
    s_endpgm
    {k.name}_go:
    s_load_dwordx16 s[36:51], s[0:1], 0
    s_load_dwordx8 s[52:59], s[0:1], 64
    s_load_dwordx2 s[60:61], s[0:1], 96
    v_lshrrev_b32 v1, 6, v0
    v_and_b32 v0, 63, v0
    v_readfirstlane_b32 s3, v1
    """)


def xlane_sum(k, x, t, steps):
    for st in steps:
        if st == "q1": k(f"s_nop 1\nv_add_f32_dpp v{x}, v{x}, v{x} quad_perm:[1,0,3,2] row_mask:0xf bank_mask:0xf")
        if st == "q2": k(f"s_nop 1\nv_add_f32_dpp v{x}, v{x}, v{x} quad_perm:[2,3,0,1] row_mask:0xf bank_mask:0xf")
        if st == "r4": k(f"s_nop 1\nv_add_f32_dpp v{x}, v{x}, v{x} row_ror:4 row_mask:0xf bank_mask:0xf")
        if st == "r8": k(f"s_nop 1\nv_add_f32_dpp v{x}, v{x}, v{x} row_ror:8 row_mask:0xf bank_mask:0xf")
        if st == "p16": k(f"v_mov_b32 v{t}, v{x}\ns_nop 1\nv_permlane16_swap_b32 v{x}, v{t}\nv_add_f32 v{x}, v{x}, v{t}")
        if st == "p32": k(f"v_mov_b32 v{t}, v{x}\ns_nop 1\nv_permlane32_swap_b32 v{x}, v{t}\nv_add_f32 v{x}, v{x}, v{t}")


def stamp(k, idx, on):
    if not on: return
    k(f"""
    s_memtime s[92:93]
    s_memrealtime s[94:95]
    s_waitcnt lgkmcnt(0)
    v_writelane_b32 v1, s92, {2*idx}
    v_writelane_b32 v1, s94, {2*idx+1}
    """)


def stamp_flush(k, kid, on):
    if not on: return
    srd(k, 88, P['ws'], P['ws'] + 1, WS_TS + kid * 262144, 262144)
    k(f"s_lshl_b32 s92, s2, 2\ns_add_u32 s92, s92, s3\ns_lshl_b32 s92, s92, 8\nv_lshlrev_b32 v0, 2, v0\nv_add_u32 v0, s92, v0")
    k("buffer_store_dword v1, v0, s[88:91], 0 offen")


S_FL, S_TAG, S_SPIN = 96, 100, 101
FOFF = {1: 0, 2: 0x8000, 3: 0x10000, 4: 0x18000, 5: 0x20000, 6: 0x28000}
FSTR = {1: 128, 2: 128, 3: 128, 4: 128, 5: 128, 6: 128}
EPOCH = 0x30000
SC = " sc1"


def sync_init(k, vt=2):
    srd(k, S_FL, P['ws'], P['ws'] + 1, WS_FL, 0x40000)
    k(f"v_mov_b32 v{vt}, {EPOCH}")
    k.vmop(f"buffer_load_dword v{vt+1}, v{vt}, s[{S_FL}:{S_FL+3}], 0 offen sc1", "EP")


def sync_tag(k, vt=2):
    k.vmwait("EP")
    k(f"v_readfirstlane_b32 s{S_TAG}, v{vt+1}\ns_nop 0\ns_add_u32 s{S_TAG}, s{S_TAG}, 1")


def publish(k, phase, vt):
    lab = k.label("pub")
    k(f"""
    s_cmp_eq_u32 s3, 0
    s_cbranch_scc0 {lab}
    s_mul_i32 s4, s2, {FSTR[phase]}
    s_add_u32 s4, s4, {FOFF[phase]}
    v_lshl_add_u32 v{vt}, v0, 2, s4
    v_mov_b32 v{vt+1}, s{S_TAG}
    s_mov_b64 exec, 0xffffffff
    buffer_store_dword v{vt+1}, v{vt}, s[{S_FL}:{S_FL+3}], 0 offen sc1
    s_mov_b64 exec, -1
    {lab}:
    """)


def wide_poll(vaddr, vt):
    return "\n".join(f"buffer_load_dword v{vt+j}, v{vaddr+j}, s[{S_FL}:{S_FL+3}], 0 offen sc1" for j in range(4))


def wide_addr(vaddr, phase):
    return [f"v_lshlrev_b32 v{vaddr}, 7, v0"] + [f"v_add_u32 v{vaddr+j}, {FOFF[phase] + 8192*j}, v{vaddr}" for j in (3, 2, 1, 0)]


def await_flags(k, vaddr, vt, wide=False):
    top, done = k.label("spin"), k.label("ok")
    k(f"s_mov_b32 s{S_SPIN}, 0x40000\n{top}:")
    if wide:
        k(f"""
        {wide_poll(vaddr, vt)}
        s_waitcnt vmcnt(0)
        v_xor_b32 v{vt}, s{S_TAG}, v{vt}
        v_xor_b32 v{vt+1}, s{S_TAG}, v{vt+1}
        v_xor_b32 v{vt+2}, s{S_TAG}, v{vt+2}
        v_xor_b32 v{vt+3}, s{S_TAG}, v{vt+3}
        v_or3_b32 v{vt}, v{vt}, v{vt+1}, v{vt+2}
        v_or_b32 v{vt}, v{vt}, v{vt+3}
        v_cmp_ne_u32 vcc, 0, v{vt}
        """)
    else:
        k(f"""
        buffer_load_dword v{vt}, v{vaddr}, s[{S_FL}:{S_FL+3}], 0 offen sc1
        s_waitcnt vmcnt(0)
        v_cmp_ne_u32 vcc, s{S_TAG}, v{vt}
        """)
    k(f"""
    s_nop 0
    s_cbranch_vccz {done}
    s_sleep 1
    s_sub_u32 s{S_SPIN}, s{S_SPIN}, 1
    s_cmp_lg_u32 s{S_SPIN}, 0
    s_cbranch_scc1 {top}
    {done}:
    """)
    k.vm = []
```

```python
from emit import *

V_WVO = 4
V_TRA = 8
V_WF = 32
V_ACC = 64
S_SOFF = 4
SC1 = " sc1"
S_W4K = 58
NSLOT = 4


def proj_setup(k, wstride=8192):
    k(f"""
    v_lshrrev_b32 v2, 3, v0
    v_mov_b32 v3, {wstride}
    v_mul_lo_u32 v2, v2, v3
    v_lshrrev_b32 v3, 4, v0
    v_and_b32 v3, 1, v3
    v_lshlrev_b32 v3, 1, v3
    v_and_b32 v12, 7, v0
    v_xor_b32 v3, v3, v12
    v_lshl_add_u32 v2, v3, 4, v2
    s_mul_i32 s4, s3, {32*wstride}
    v_add_u32 v{V_WVO}, s4, v2
    v_xor_b32 v{V_WVO+1}, 64, v{V_WVO}
    v_add_u32 v{V_WVO+2}, {2*(8*wstride-1024)}, v{V_WVO}
    v_add_u32 v{V_WVO+3}, {3*(8*wstride-1024)}, v{V_WVO+1}
    v_add_u32 v{V_WVO+1}, {8*wstride-1024}, v{V_WVO+1}
    v_lshrrev_b32 v2, 4, v0
    v_bfe_u32 v3, v0, 2, 2
    v_lshl_add_u32 v12, v2, 3, v3
    v_lshlrev_b32 v12, 7, v12
    v_and_b32 v13, 3, v0
    v_lshl_add_u32 v12, v13, 3, v12
    v_and_b32 v2, 1, v2
    v_lshrrev_b32 v3, 1, v3
    v_lshl_add_u32 v2, v2, 1, v3
    v_lshl_add_u32 v{V_TRA}, v2, 5, v12
    """)
    for t in range(1, 4):
        k(f"v_xor_b32 v{V_TRA+t}, {32*t}, v{V_TRA}")


def seq(k, items):
    def all_():
        for it in items:
            it() if callable(it) else k(it)
    return all_


def L(f, kind):
    return It(f, kind)


def w_dma(k, step, steps, wstride=8192):
    S = steps[step]
    items = [It(f"s_add_u32 m0, s{S_W4K}, {(step % NSLOT)*16384}"), It(f"s_mov_b32 s{S_SOFF}, {S['kc']*128*wstride + S['col']}")]
    for jj in range(4):
        items.append(L(lambda jj=jj: k.vmop(
            f"buffer_load_dwordx4 v{V_WVO+jj}, s[{S['srd']}:{S['srd']+3}], s{S_SOFF} offen offset:{jj*1024} lds", ("W", step)), "d"))
    return items


def run(k, items):
    for it in items:
        x = it.x if isinstance(it, It) else it
        x() if callable(x) else k(x)


def tr_items(k, step, t):
    base = V_WF + 16 * (t % 2)
    items = []
    for ks in range(4):
        for half in range(2):
            off = (step % NSLOT) * 16384 + ks * 4096 + half * 512
            items.append(L(lambda ks=ks, half=half, off=off: k.lgop(
                f"ds_read_b64_tr_b16 {v(base+4*ks+2*half,2)}, v{V_TRA+t} offset:{off}", ("F", step, t, ks)), "r"))
    return items


def proj_core(k, steps, res, extra_fill, res_wait, epi, hook=None, at_barrier=None):
    ns = len(steps)
    run(k, tr_items(k, 0, 0))
    pend = []
    for step, S in enumerate(steps):
        kc = S["kc"]
        acc = lambda t, b: v(V_ACC + 64 * S["acc"] + 16 * t + 4 * b, 4)
        mf, rd, ctl, mem = [], [], [], []
        for t in range(4):
            for b in range(4):
                for kk in range(4):
                    ks = kk if b % 2 == 0 else 3 - kk
                    pre = []
                    if b == 0:
                        pre.append(lambda t=t, ks=ks: k.lgwait(("F", step, t, ks)))
                    if t == 0:
                        pre += res_wait(step, b, ks)
                    wf = v(V_WF + 16 * (t % 2) + 4 * ks, 4)
                    c = "0" if (kc == 0 and kk == 0) else acc(t, b)
                    A, B = (wf, res(b, 4 * kc + ks)) if S["mode"] != "V" else (res(b, 4 * kc + ks), wf)
                    mf.append((pre, mfma(acc(t, b), A, B, c)))
            if t < 3:
                rd += window(tr_items(k, step, t + 1), 16 * t, 16 * t + 11)
            elif step + 1 < ns:
                def bar(step=step):
                    k.vmwait(("W", step + 1))
                    pre_, post_ = (at_barrier or {}).get(step, (None, None))
                    if pre_: pre_()
                    k("s_barrier")
                    if post_: post_()
                ctl += window([L(bar, "s")], 47, 47)
                rd += window(tr_items(k, step + 1, 0), 48, 59)
        streams = [rd, ctl]
        for e in extra_fill.get(step, []):
            if len(e) == 4: mem += window(e[2], e[0], e[1])
            else: streams.append(window(e[2], e[0], e[1]))
        if step >= 1 and step + NSLOT - 1 < ns:
            mem += window(w_dma(k, step + NSLOT - 1, steps), 48, 62)
        streams.append(mem)
        if pend:
            quota = 20 if step < 12 else 24 if step < 16 else 40 if step < 20 else 64
            take, pend = pend[:quota], pend[quota:]
            streams.append(window(take, 8, 63))
        pack(k, mf, streams)
        if hook: hook(step)
        pend += epi(step)
    k("s_nop 7")
    run(k, pend)


def kv_phase(k, ts=False):
    SC, SWK, SWV, SKO, SVO, SJ1, SJ2, SD1, SD2 = 8, 12, 16, 20, 24, 28, 32, 76, 80
    SX, SXN, SCS = 84, 88, 72
    V_CVO, V_CRA, V_SVO = 12, 16, 20
    CBASE = 65536
    proj_setup(k)
    k(f"""
    s_and_b32 s70, s2, 7
    s_lshl_b32 s70, s70, 2
    s_bfe_u32 s71, s2, 0x20003
    s_add_u32 s70, s70, s71
    s_lshr_b32 s71, s2, 5
    s_lshl_b32 s69, s2, 2
    s_add_u32 s69, s69, s3
    s_mul_i32 s5, s3, 24576
    s_add_u32 s5, s5, {CBASE}
    v_lshrrev_b32 v2, 4, v0
    v_and_b32 v3, 15, v0
    v_xor_b32 v21, v2, v3
    v_lshlrev_b32 v21, 4, v21
    v_lshl_add_u32 v2, v2, 10, v21
    s_lshl_b32 s4, s3, 16
    v_add_u32 v{V_CVO}, s4, v2
    v_lshl_add_u32 v{V_CRA}, v3, 8, v21
    s_lshl_b32 s4, s3, 14
    v_lshlrev_b32 v2, 4, v0
    v_add_u32 v{V_SVO}, s4, v2
    """)
    for j in range(1, 4):
        k(f"v_xor_b32 v{V_CVO+j}, {64*j}, v{V_CVO}\nv_add_u32 v{V_CVO+j}, {j*3072}, v{V_CVO+j}\nv_xor_b32 v{V_CRA+j}, {64*j}, v{V_CRA}")
    for j in range(4):
        k(f"v_add_u32 v{V_CRA+j}, s5, v{V_CRA+j}")
    k(f"s_waitcnt lgkmcnt(0)\ns_lshl_b32 s{S_W4K}, s3, 12")
    k("s_lshl_b32 s4, s71, 18"); srd(k, SC, P['ckv'], P['ckv'] + 1, "s4", 262144)
    k("s_lshl_b32 s4, s70, 8\ns_sub_u32 s68, 0x400000, s4")
    srd(k, SWK, P['wuk'], P['wuk'] + 1, "s4", "s68")
    srd(k, SWV, P['wuv'], P['wuv'] + 1, "s4", "s68")

    steps = [dict(srd=SWK, col=128 * (s_ % 2), mode="K", kc=s_ // 2, acc=s_ % 2) for s_ in range(8)]
    steps += [dict(srd=SWV, col=128 * (s_ // 4), mode="V", kc=s_ % 4, acc=2 if s_ < 4 else 0) for s_ in range(8)]

    def c_dma(j):
        kc, b = divmod(j, 4)
        items = [It(f"s_add_u32 m0, s5, {(j % 6)*4096}"), It(f"s_mov_b32 s{S_SOFF}, {b*16384 + kc*256}")]
        for jj in range(4):
            items.append(L(lambda jj=jj: k.vmop(
                f"buffer_load_dwordx4 v{V_CVO+jj}, s[{SC}:{SC+3}], s{S_SOFF} offen offset:{jj*1024} lds", ("C", j)), "d"))
        return items

    def c_read(j):
        kc, b = divmod(j, 4)
        items = [L(lambda: k.vmwait(("C", j)), "s")]
        for ks in range(4):
            items.append(L(lambda ks=ks: k.lgop(
                f"ds_read_b128 {a(64*b+16*kc+4*ks,4)}, v{V_CRA+ks} offset:{(j % 6)*4096}", ("CR", j)), "r"))
        return items

    def c_next(j):
        return [L(lambda: k.lgwait(("CR", j)), "s")] + c_dma(j + 6)

    run(k, w_dma(k, 0, steps))
    for j in range(4): run(k, c_dma(j))
    run(k, w_dma(k, 1, steps))
    for j in range(4, 6): run(k, c_dma(j))
    run(k, w_dma(k, 2, steps)); run(k, w_dma(k, 3, steps))
    sync_init(k, 30)
    k(f"s_lshl_b32 s4, s70, 19\ns_lshl_b32 s68, s71, 16\ns_add_u32 s4, s4, s68")
    srd(k, SKO, P['ws'], P['ws'] + 1, "s4", 65536)
    k(f"s_add_u32 s4, s4, {WS_V}")
    srd(k, SVO, P['ws'], P['ws'] + 1, "s4", 65536)
    k(f"s_lshr_b32 s4, s69, 3\ns_lshl_b32 s4, s4, 14\ns_add_u32 s4, s4, {WS_XN}")
    srd(k, SXN, P['ws'], P['ws'] + 1, "s4", 16384)
    k("s_lshl_b32 s4, s69, 11"); srd(k, SX, P['x'], P['x'] + 1, "s4", 2048)
    k(f"""
    s_lshr_b32 s64, s69, 3
    s_and_b32 s65, s69, 7
    s_lshl_b32 s66, s64, 15
    s_lshl_b32 s67, s65, 7
    s_add_u32 s66, s66, s67
    s_sub_u32 s68, {4*MB}, s66
    """)
    srd(k, SJ1, P['wo'], P['wo'] + 1, "s66", "s68")
    k(f"s_lshl_b32 s67, s65, 19\ns_lshl_b32 s64, s64, 10\ns_add_u32 s67, s67, s64\ns_add_u32 s67, s67, {WS_WO}")
    srd(k, SD1, P['ws'], P['ws'] + 1, "s67", 3 * 131072 + 1024)
    lw2, ldone = k.label("j2w2"), k.label("j2d")
    k(f"""
    s_cmp_ge_u32 s69, 704
    s_cbranch_scc1 {lw2}
    s_cmp_ge_u32 s69, 352
    s_cselect_b32 s64, 1, 0
    s_cselect_b32 s6, s{P['w3']}, s{P['w1']}
    s_cselect_b32 s7, s{P['w3']+1}, s{P['w1']+1}
    s_mul_i32 s65, s64, 352
    s_sub_u32 s65, s69, s65
    s_mul_i32 s66, s65, 2979
    s_lshr_b32 s66, s66, 16
    s_mul_i32 s67, s66, 22
    s_sub_u32 s67, s65, s67
    s_mul_i32 s63, s66, {32*2752}
    s_lshl_b32 s65, s67, 7
    s_add_u32 s63, s63, s65
    s_sub_u32 s62, {512*2752}, s63
    s_lshl_b32 s65, s67, 17
    s_lshl_b32 s4, s64, 14
    s_add_u32 s65, s65, s4
    s_lshl_b32 s4, s66, 10
    s_add_u32 s65, s65, s4
    s_add_u32 s65, s65, {WS_W13}
    s_mov_b32 s48, 32768
    s_lshl_b32 s64, s64, 4
    s_add_u32 s64, s64, s66
    s_mul_i32 s64, s64, {1408*4}
    s_lshl_b32 s4, s67, 8
    s_add_u32 s64, s64, s4
    s_add_u32 s64, s64, {WS_CS}
    s_mov_b32 s49, 256
    s_mov_b32 s68, {3*32768+1024}
    s_mov_b32 s67, 2752
    s_branch {ldone}
    {lw2}:
    s_sub_u32 s65, s69, 704
    s_mov_b32 s6, s{P['w2']}
    s_mov_b32 s7, s{P['w2']+1}
    s_lshr_b32 s66, s65, 2
    s_and_b32 s67, s65, 3
    s_lshl_b32 s63, s66, 15
    s_lshl_b32 s4, s67, 8
    s_add_u32 s63, s63, s4
    s_sub_u32 s62, {1376*1024}, s63
    s_mul_i32 s65, s67, {8*43*1024}
    s_lshl_b32 s4, s66, 10
    s_add_u32 s65, s65, s4
    s_add_u32 s65, s65, {WS_W2}
    s_mov_b32 s48, {43*1024}
    s_mov_b32 s64, {WS_CS}
    s_mov_b32 s49, 0
    s_mov_b32 s67, 1024
    s_cmp_ge_u32 s69, 876
    s_cselect_b32 s62, 0, s62
    s_cselect_b32 s63, 0, s63
    s_cselect_b32 s68, 0, {7*43*1024+1024}
    {ldone}:
    """)
    srd(k, SJ2, 6, 7, "s63", "s62")
    srd(k, SD2, P['ws'], P['ws'] + 1, "s65", "s68")
    srd(k, SCS, P['ws'], P['ws'] + 1, "s64", "s49")
    k("s_mov_b32 s62, 128\ns_cmp_ge_u32 s69, 704\ns_cselect_b32 s62, s62, 0x7000000")
    k(f"""
    v_lshrrev_b32 v2, 3, v0
    v_and_b32 v3, 7, v0
    v_lshlrev_b32 v3, 4, v3
    v_lshl_add_u32 v21, v2, 10, v3
    v_mul_lo_u32 v2, v2, s67
    v_add_u32 v22, v2, v3
    s_lshl_b32 s6, s67, 3
    s_sub_u32 s6, s6, 1024
    v_bfe_u32 v2, v0, 2, 4
    v_lshlrev_b32 v2, 7, v2
    v_and_b32 v3, 3, v0
    v_lshl_add_u32 v2, v3, 3, v2
    v_add_u32 v23, s5, v2
    v_lshlrev_b32 v24, 4, v0
    v_lshrrev_b32 v2, 4, v0
    v_lshlrev_b32 v2, 4, v2
    v_and_b32 v3, 15, v0
    v_lshl_add_u32 v25, v3, 6, v2
    v_and_b32 v26, 1, v0
    v_lshlrev_b32 v26, 10, v26
    v_lshrrev_b32 v3, 1, v0
    v_lshl_add_u32 v26, v3, 4, v26
    """)
    k("s_mov_b32 s64, 4096\ns_mov_b32 s65, 8192\ns_mov_b32 s66, 12288")
    stamp(k, 1, ts)
    for j in range(4): run(k, c_read(j))
    for j in range(4): run(k, c_next(j))
    stamp(k, 2, ts)
    k.vmwait(("W", 0))
    k("s_barrier")
    stamp(k, 3, ts)

    T = 192
    ln = []
    ln.append(L(lambda: k.vmop(f"buffer_load_dwordx4 {v(T,4)}, v26, s[{SX}:{SX+3}], 0 offen", "X"), "d"))
    ln.append(L(lambda: k.vmop(f"buffer_load_dwordx4 {v(T+4,4)}, v26, s[{SX}:{SX+3}], 0 offen offset:512", "X"), "d"))
    l2 = [L(lambda: k.vmwait("X"), "s")]
    X = T + 8
    class Rec:
        def __init__(s): s.items = []
        def __call__(s, t):
            for l_ in t.split("\n"):
                if not l_.startswith("s_nop"): s.items.append(It(l_))
    R = Rec()
    for j in range(8): R(f"v_lshlrev_b32 v{X+2*j}, 16, v{T+j}\nv_and_b32 v{X+1+2*j}, 0xffff0000, v{T+j}")
    R(f"v_add_f32 v2, v{X}, v{X+1}")
    for j in range(2, 16): R(f"v_add_f32 v2, v2, v{X+j}")
    xlane_sum(R, 2, 3, ["q2", "r4", "r8", "p16", "p32"])
    R(f"v_mul_f32 v2, 0x3b000000, v2")
    R(f"v_sub_f32 v3, v{X}, v2\nv_mul_f32 v27, v3, v3")
    for j in range(1, 16): R(f"v_sub_f32 v3, v{X+j}, v2\nv_fmac_f32 v27, v3, v3")
    xlane_sum(R, 27, 3, ["q2", "r4", "r8", "p16", "p32"])
    for t_ in ["v_mul_f32 v27, 0x3b000000, v27\nv_cvt_pk_bf16_f32 v2, v2, v27", "v_and_b32 v27, 0xffff0000, v2\nv_lshlrev_b32 v2, 16, v2",
               "v_add_f32 v27, 0x3727c5ac, v27\nv_cvt_pk_bf16_f32 v27, v27, v27", "v_lshlrev_b32 v27, 16, v27\nv_sqrt_f32 v27, v27\ns_nop 0",
               "v_cvt_pk_bf16_f32 v27, v27, v27\nv_lshlrev_b32 v27, 16, v27", "v_rcp_f32 v27, v27\ns_nop 0"]: R(t_)
    for j in range(8):
        R(f"v_sub_f32 v{X+2*j}, v{X+2*j}, v2\nv_sub_f32 v{X+2*j+1}, v{X+2*j+1}, v2")
        R(f"v_cvt_pk_bf16_f32 v{T+j}, v{X+2*j}, v{X+1+2*j}\nv_lshlrev_b32 v{X+2*j}, 16, v{T+j}")
        R(f"v_and_b32 v{X+1+2*j}, 0xffff0000, v{T+j}\nv_mul_f32 v{X+2*j}, v{X+2*j}, v27")
        R(f"v_mul_f32 v{X+2*j+1}, v{X+2*j+1}, v27\nv_cvt_pk_bf16_f32 v{T+j}, v{X+2*j}, v{X+1+2*j}")
    l2 += R.items
    XL = CBASE + 12288
    R = Rec()
    R(f"s_lshl_b32 s68, s3, 5\ns_add_u32 s68, s68, {XL}\nv_and_b32 v2, 1, v0\nv_lshlrev_b32 v2, 4, v2")
    R("v_lshrrev_b32 v3, 1, v0\nv_lshl_add_u32 v2, v3, 7, v2\nv_add_u32 v2, s68, v2")
    l3 = R.items + [L(lambda j=j: k.lgop(f"ds_write_b128 v2, {v(T+4*j,4)} offset:{4096*j}", "xw"), "r") for j in range(2)]
    R = Rec()
    R(f"s_lshl_b32 s68, s3, 11\ns_add_u32 s68, s68, {XL}\nv_add_u32 v2, s68, v24")
    l4 = R.items + [L(lambda j=j: k.lgop(f"ds_read_b128 {v(T+4*j,4)}, v2 offset:{1024*j}", "xr"), "r") for j in range(2)]
    R = Rec()
    R("s_and_b32 s68, s2, 1\ns_lshl_b32 s68, s68, 7\ns_add_u32 s68, s68, s58\nv_lshrrev_b32 v2, 3, v0\nv_lshlrev_b32 v2, 8, v2")
    R("v_and_b32 v3, 7, v0\nv_lshl_add_u32 v2, v3, 4, v2\nv_add_u32 v2, s68, v2")
    l4 += R.items + [L(lambda: k.lgwait("xr"), "s")]
    l4 += [L(lambda j=j: k.vmop(f"buffer_store_dwordx4 {v(T+4*j,4)}, v2, s[{SXN}:{SXN+3}], 0 offen offset:{2048*j}{SC1}", "sj"), "d") for j in range(2)]

    def job_issue(n):
        sr = SJ1 if n == 0 else SJ2
        items = [It(f"s_add_u32 m0, s5, {4096*n}"), It(f"s_mov_b32 s68, {'s62' if n == 2 else 0}")]
        for jj in range(4):
            items.append(L(lambda jj=jj: k.vmop(
                f"buffer_load_dwordx4 v{21 if n == 0 else 22}, s[{sr}:{sr+3}], s68 offen offset:{jj*1024} lds", ("J", n)), "d"))
            if jj < 3: items.append(It(f"s_add_u32 s68, s68, {'7168' if n == 0 else 's6'}"))
        return items
    JB = 28
    JF = V_ACC

    def job_finish(n):
        items = [L(lambda: k.vmwait(("J", n)), "s")]
        for t in range(4):
            for half in range(2):
                items.append(L(lambda t=t, half=half: k.lgop(
                    f"ds_read_b64_tr_b16 {v(JF+4*t+2*half,2)}, v23 offset:{4096*n + 32*t + 2048*half}", ("JF", n, t)), "r"))
        ds = SD1 if n == 0 else SD2
        if n < 2: items.append(It("s_mov_b32 s7, 0"))
        if n == 1: items += [It(f"v_mov_b32 v{28+r}, 0x3f803f80") for r in range(4)]
        for t in range(4):
            items.append(L(lambda t=t: k.lgwait(("JF", n, t)), "s"))
            items.append(L(lambda t=t: k.vmop(f"buffer_store_dwordx4 {v(JF+4*t,4)}, v24, s[{ds}:{ds+3}], s7 offen{SC1}", "sw"), "d"))
            if n == 1: items.append(It(mfma(v(JF + 16 + 4 * t, 4), v(JF + 4 * t, 4), v(28, 4), "0")))
            items.append(It(f"s_add_u32 s7, s7, {'131072' if n == 0 else 's48'}"))
        if n == 1:
            items.append(It("v_and_b32 v3, 15, v0"))
            for t in range(1, 4):
                items.append(It(f"v_cmp_eq_u32 vcc, {t}, v3"))
                items += [It(f"v_cndmask_b32 v{JF+16+r}, v{JF+16+r}, v{JF+16+4*t+r}, vcc") for r in range(4)]
            items.append(L(lambda: k.vmop(f"buffer_store_dwordx4 {v(JF+16,4)}, v25, s[{SCS}:{SCS+3}], 0 offen{SC1}", "sw"), "d"))
        return items

    cc = lambda j: c_read(j) + (c_next(j) if j + 6 < 16 else [])
    n3 = len(l2) // 3
    extra = {0: [(2, 46, cc(4) + cc(5) + ln, "mem"), (50, 50, [L(lambda: sync_tag(k, 30), "s")])],
             1: [(2, 46, cc(6) + cc(7), "mem")],
             2: [(2, 46, cc(8) + cc(9), "mem"), (20, 63, l2[:n3])],
             3: [(2, 30, cc(10) + cc(11)), (0, 63, l2[n3:2*n3])],
             4: [(2, 30, cc(12) + cc(13)), (0, 63, l2[2*n3:])],
             5: [(0, 16, cc(14) + cc(15) + [L(lambda: k.lgwait(("CR", 15)), "s")], "mem"), (48, 63, l3)],
             6: [(0, 30, job_issue(0), "mem"), (48, 63, l4)],
             7: [(0, 47, job_issue(1) + job_issue(2), "mem")],
             9: [(0, 63, job_finish(0))],
             10: [(0, 63, job_finish(1))],
             11: [(0, 63, job_finish(2))]}

    def epi(step):
        S = steps[step]
        if S["kc"] != 3: return []
        A = lambda t, b: V_ACC + 64 * S["acc"] + 16 * t + 4 * b
        g = S["col"] // 128
        items = []
        def pk(d, x, y, sr, off):
            if S["mode"] == "V":
                for r in range(4):
                    items.append(It(f"v_mul_f32 v{x+r}, 0x5f800000, v{x+r}\nv_mul_f32 v{y+r}, 0x5f800000, v{y+r}"))
            items.extend(It(t_) for t_ in [f"v_cvt_pk_bf16_f32 v{d}, v{x}, v{x+1}", f"v_cvt_pk_bf16_f32 v{d+1}, v{x+2}, v{x+3}",
                                           f"v_cvt_pk_bf16_f32 v{d+2}, v{y}, v{y+1}", f"v_cvt_pk_bf16_f32 v{d+3}, v{y+2}, v{y+3}"])
            so, im = divmod(off, 4096)
            items.append(L(lambda: k.vmop(
                f"buffer_store_dwordx4 {v(d,4)}, v{V_SVO}, s[{sr}:{sr+3}], {'0' if so == 0 else 's%d' % (63+so)} offen offset:{im}{SC1}", "kv"), "d"))
        if S["mode"] == "K":
            for b in range(4):
                for j in range(2):
                    pk(A(2 * j, b), A(2 * j, b), A(2 * j + 1, b), SKO, b * 4096 + (2 * g + j) * 1024)
        else:
            for t in range(4):
                for j in range(2):
                    pk(A(t, 2 * j), A(t, 2 * j), A(t, 2 * j + 1), SVO, j * 8192 + (4 * g + t) * 1024)
        return items
    return steps, extra, epi
```

```python
from emit import *
from k1 import seq, run, L, V_ACC, S_SOFF, S_W4K, SC1

BIAS = 102.0
THR_BITS = (127 - 62) << 23
NEG = 0xf149f2ca
QSCALE = 0x3e0293ee
V_L16, V_DVO, V_RA = 12, 13, 14
V_T, V_PS, V_L, V_CT, V_C, V_P, V_S, V_O, V_X = 16, 20, 22, 28, 32, 48, 64, 96, 224
A_Q, A_K, A_V = 0, 64, 128
SWQ, SXN, SK, SV, SCTX = 8, 28, 12, 32, 16
S_MASK, S_RET, S_THR, S_ARM, S_CNT, S_H, S_I, S_RB, S_RD, S_WR, S_DSO = 80, 62, 64, 68, 69, 70, 71, 72, 76, 77, 78
S_NWR = 79
SM0 = 8
CARRY = 29
FULL = "FFFF"
LASTQ = 2


class Job:
    def __init__(s, q, modes, par):
        s.q, s.modes, s.par = q, modes, par
        s.S, s.P, s.ps = V_S + 16 * par, V_P + 8 * par, V_PS + par


class Att:
    def __init__(s, k):
        s.k = k
        s.par = 0
        s.stubs = []
        s.slow = set()
        s.tmp = 0

    def qk_block(s, J, kwait):
        k = s.k
        mf = []
        for kvb in range(4):
            m = J.modes[kvb]
            if m == "E": continue
            for ds in range(4):
                pre = []
                if kwait: pre.append(lambda kvb=kvb, ds=ds: k.lgwait(("Kf", 4 * kvb + ds)))
                c = v(J.S + 4 * kvb, 4)
                if ds == 0:
                    c = v(V_C + 4 * J.q, 4)
                    if m == "T":
                        pre.append(f"v_mov_b32 v3, {NEG}")
                        for r in range(4):
                            pre.append(f"v_cndmask_b32 v{V_CT+r}, v3, v{V_C+4*J.q+r}, s[{S_MASK+2*r}:{S_MASK+2*r+1}]")
                        c = v(V_CT, 4)
                mf.append((pre, mfma(v(J.S + 4 * kvb, 4), a(A_K + 16 * kvb + 4 * ds, 4), a(A_Q + 16 * J.q + 4 * ds, 4), c)))
        return mf

    def pv_block(s, J, vwait):
        k = s.k
        mf = []
        kss = [ks for ks in range(2) if J.modes[2 * ks] != "E"]
        for dt in range(8):
            for ks in kss:
                pre = [lambda ks=ks, dt=dt: k.lgwait(("Vf", 2 * dt + ks))] if vwait else []
                o = v(V_O + 32 * J.q + 4 * dt, 4)
                mf.append((pre, mfma(o, a(A_V + 32 * ks + 4 * dt, 4), v(J.P + 4 * ks, 4), o)))
        return mf

    def sm_items(s, J, a0=None):
        items = []
        live = [e for e in range(16) if J.modes[e // 4] != "E"]
        for e in range(16):
            if e not in live: items.append(f"v_mov_b32 v{J.S+e}, {NEG}")
        for kvb in range(4):
            if J.modes[kvb] == "E" and J.modes[kvb & 2] != "E":
                items.append(f"v_mov_b32 v{J.P+2*kvb}, 0\nv_mov_b32 v{J.P+2*kvb+1}, 0")
        t = lambda e: V_T + e % 4
        n = len(live)
        for e in range(n + 1):
            if e < n: items.append(It(f"v_exp_f32 v{t(e)}, v{J.S+e}", lo=None if a0 is None else a0 + 4 * (e // 4) + 7))
            p = e - 1
            if p == 1: items.append(f"v_add_f32 v{J.ps}, v{t(0)}, v{t(1)}")
            elif p > 1: items.append(f"v_add_f32 v{J.ps}, v{J.ps}, v{t(p)}")
            if p >= 1 and p % 2 == 1: items.append(f"v_cvt_pk_bf16_f32 v{J.P+p//2}, v{t(p-1)}, v{t(p)}")
        return [x if isinstance(x, It) else It(x) for x in items]

    def check_items(s, J):
        k = s.k
        out, back = k.label("so"), k.label("sb")
        s.stubs.append((out, back, J.q, J.par))
        s.slow.add((J.q, J.par))
        a1 = f"v_cmp_nge_f32 vcc, s{S_THR+J.q}, v{J.ps}"
        a2 = f"s_cbranch_vccnz {out}\n{back}:\nv_add_f32 v{V_L+J.q}, v{V_L+J.q}, v{J.ps}"
        if J.q == LASTQ: a2 += f"\ns_mov_b32 s{S_THR+LASTQ}, s{S_ARM}"
        return a1, a2

    def kv_reads(s, which):
        k = s.k
        items = []
        for i in range(16):
            if which == "K":
                items.append(lambda i=i: k.lgop(f"ds_read_b128 {a(A_K+4*i,4)}, v{V_RA} offset:{16384+1024*i}", ("Kf", i)))
            else:
                dt, ks = divmod(i, 2)
                items.append(lambda i=i, dt=dt, ks=ks: k.lgop(
                    f"ds_read_b128 {a(A_V+32*ks+4*dt,4)}, v{V_RA} offset:{8192*ks+1024*dt}", ("Vf", i)))
        return items

    def dma_items(s, gen):
        k = s.k
        items = []
        for part, sr in enumerate((SV, SK)):
            for jj in range(4):
                pre = []
                if jj == 0:
                    pre = [f"s_mov_b32 m0, s{S_WR}"] if part == 0 else [f"s_add_u32 m0, s{S_WR}, 16384", f"s_add_u32 s{S_DSO}, s{S_DSO}, 16384"]
                for x in pre: items.append(It(x))
                items.append(It(lambda sr=sr, jj=jj: k.vmop(
                    f"buffer_load_dwordx4 v{V_DVO}, s[{sr}:{sr+3}], s{S_DSO} offen offset:{jj*1024}{SC1} lds", ("D", gen)), "d"))
        return items

    def period(s, specs, dma=True, nextk=True, extra=None, last=False):
        k = s.k
        jobs = []
        for q, m in specs:
            jobs.append(Job(q, m, s.par)); s.par ^= 1
        mf, pos, pvpos = [], [], []
        V, ctl = [], []
        prev, prev_sm, pstart = s.pend, s.psm, 0
        for j, J in enumerate(jobs):
            a0 = len(mf)
            blk = s.qk_block(J, kwait=True)
            mf += blk
            L = len(blk)
            e = a0 + min(SM0 - 1, L - 3)
            V += window(prev_sm, pstart, e)
            c1, c2 = s.check_items(prev)
            V += window([c1], e, e + 1)
            ctl += window([c2], min(e + 3, a0 + L - 1), min(e + 4, a0 + L - 1))
            if j == 0:
                ctl += window([It(lambda: (k.vmwait(("D", 0)), k("s_barrier")), "s")], a0 + L - 1, a0 + L - 1)
            b0 = len(mf)
            blk = s.pv_block(prev, vwait=True)
            mf += blk
            pvpos.append((b0, len(blk)))
            pos.append((a0, L))
            pstart = a0 + min(SM0, L)
            prev, prev_sm = J, s.sm_items(J, a0)
        n = len(mf)
        if last:
            V += window(prev_sm, pstart, n - 1); prev_sm = []
        else:
            take = CARRY if len(prev_sm) == 39 else (len(prev_sm) * (n - pstart)) // (n - pstart + SM0)
            V += window(prev_sm[:take], pstart, n - 1)
            prev_sm = [it.x for it in prev_sm[take:]]
        streams = [V, ctl]
        b0, Lb = pvpos[0]
        vend = pvpos[1][0] - 4 if len(pvpos) > 1 else n - 1
        rv = [It(x, "r", lo=b0 + min(i, Lb - 1)) for i, x in enumerate(s.kv_reads("V"))]
        streams.append(window(rv, b0, vend))
        if nextk:
            a0, L = pos[-1]
            rk = [It(x, "r", lo=a0 + min(i, L - 1)) for i, x in enumerate(s.kv_reads("K"))]
            streams.append(window(rk, a0, n - 2))
        if dma:
            streams.append(window(s.dma_items(4), pvpos[0][0], n - 6))
        for lo, hi, items in (extra(pos, pvpos, n) if extra else []):
            streams.append(window(items, lo, hi))
        if not last:
            streams.append(window([f"s_add_u32 s{S_NWR}, s{S_RD}, s{S_W4K}", f"s_add_u32 s{S_RD}, s{S_RD}, 32768",
                                   f"s_cmp_eq_u32 s{S_RD}, 163840\ns_cselect_b32 s{S_RD}, 0, s{S_RD}"], n - 12, n - 5))
            streams.append(window([f"s_mov_b32 s{S_WR}, s{S_NWR}", f"v_add_u32 v{V_RA}, s{S_RD}, v{V_L16}"], n - 1, n - 1))
        pack(k, mf, streams)
        k.vm = [("D", t[1] - 1) if isinstance(t, tuple) and t[0] == "D" else t for t in k.vm]
        s.pend, s.psm = prev, prev_sm

    def loop(s, specs, count_expr):
        k = s.k
        top, end = k.label("lp"), k.label("le")
        k(count_expr)
        k(f"s_cmp_eq_u32 s{S_CNT}, 0\ns_cbranch_scc1 {end}\n{top}:")
        got = [t for t in k.vm if isinstance(t, tuple) and t[0] == "D"]
        k.vm = [("D", g) for g in range(4) for _ in range(8)]
        assert got == k.vm[len(k.vm) - len(got):] and len(got) >= 24
        for i in range(16): k.lgt[("Kf", i)] = k.clock - 32 + 2 * i
        vm0, lg0, par0, psm0, pq = list(k.vm), list(k.lg), s.par, list(s.psm), (s.pend.q, s.pend.par, s.pend.modes)
        s.period(specs)
        k(f"s_sub_u32 s{S_CNT}, s{S_CNT}, 1\ns_cmp_lg_u32 s{S_CNT}, 0\ns_cbranch_scc1 {top}\n{end}:")
        assert k.vm == vm0, (k.vm, vm0)
        assert k.lg == lg0[len(lg0) - len(k.lg):], (k.lg, lg0)
        k.lg = lg0
        assert s.par == par0 and s.psm == psm0 and (s.pend.q, s.pend.par, s.pend.modes) == pq

    def drain(s):
        k = s.k
        J = s.pend
        c1, c2 = s.check_items(J)
        k(c1); k("s_nop 1"); k(c2)
        k.stream(s.pv_block(J, vwait=True), {})

    def out_items(s, q):
        k = s.k
        l, t, O = V_L + q, V_X, V_O + 32 * q
        items = [f"v_mov_b32 v{t}, v{l}\ns_nop 1\nv_permlane16_swap_b32 v{l}, v{t}\nv_add_f32 v{l}, v{l}, v{t}",
                 f"v_mov_b32 v{t}, v{l}\ns_nop 1\nv_permlane32_swap_b32 v{l}, v{t}\nv_add_f32 v{l}, v{l}, v{t}",
                 f"v_rcp_f32 v{l}, v{l}\ns_nop 0\nv_mul_f32 v{l}, 0x1f800000, v{l}"]
        for ds in range(4):
            x = O + 8 * ds
            for r in range(0, 8, 2):
                items.append(f"v_mul_f32 v{x+r}, v{x+r}, v{l}\nv_mul_f32 v{x+r+1}, v{x+r+1}, v{l}")
                items.append(f"v_cvt_pk_bf16_f32 v{x+r//2}, v{x+r}, v{x+r+1}")
            items.append(It(lambda x=x, ds=ds: k.vmop(
                f"buffer_store_dwordx4 {v(x,4)}, v{V_L16}, s[{SCTX}:{SCTX+3}], s{S_RB+q} offen offset:{ds*1024}{SC1}", "st"), "d"))
        return [x if isinstance(x, It) else It(x) for x in items]

    def emit_slow(s):
        k = s.k
        for out, back, q, par in s.stubs:
            k(f"{out}:\ns_call_b64 s[{S_RET}:{S_RET+1}], {k.name}_slow{q}{par}\ns_branch {back}")
        for q, par in sorted(s.slow):
            J = Job(q, FULL, par)
            mx, t, al = V_X + 1, V_X + 2, V_X + 3
            nf, join = k.label("nf"), k.label("sj")
            k(f"{k.name}_slow{q}{par}:\nv_max3_f32 v{mx}, v{J.S}, v{J.S+1}, v{J.S+2}")
            for e in range(3, 15, 2): k(f"v_max3_f32 v{mx}, v{mx}, v{J.S+e}, v{J.S+e+1}")
            k(f"""
            v_max_f32 v{mx}, v{mx}, v{J.S+15}
            v_mov_b32 v{t}, v{mx}
            s_nop 1
            v_permlane16_swap_b32 v{mx}, v{t}
            v_max_f32 v{mx}, v{mx}, v{t}
            v_mov_b32 v{t}, v{mx}
            s_nop 1
            v_permlane32_swap_b32 v{mx}, v{t}
            v_max_f32 v{mx}, v{mx}, v{t}
            v_add_f32 v{mx}, 0x42cc0000, v{mx}
            s_cmp_eq_u32 s{S_THR+q}, {THR_BITS}
            s_cbranch_scc1 {nf}
            s_mov_b32 s{S_THR+q}, {THR_BITS}
            """)
            if q == LASTQ: k(f"s_mov_b32 s{S_ARM}, {THR_BITS}")
            k(f"""
            s_branch {join}
            {nf}:
            v_max_f32 v{mx}, 0, v{mx}
            v_sub_f32 v{al}, 0, v{mx}
            v_exp_f32 v{al}, v{al}
            s_nop 0
            v_mul_f32 v{V_L+q}, v{V_L+q}, v{al}
            """)
            for r in range(32): k(f"v_mul_f32 v{V_O+32*q+r}, v{V_O+32*q+r}, v{al}")
            k(f"{join}:")
            for r in range(4): k(f"v_sub_f32 v{V_C+4*q+r}, v{V_C+4*q+r}, v{mx}")
            for e in range(16): k(f"v_sub_f32 v{V_X+8+e}, v{J.S+e}, v{mx}")
            for e in range(16): k(f"v_exp_f32 v{V_X+8+e}, v{V_X+8+e}")
            k(f"v_add_f32 v{J.ps}, v{V_X+8}, v{V_X+9}")
            for e in range(2, 16): k(f"v_add_f32 v{J.ps}, v{J.ps}, v{V_X+8+e}")
            for e in range(8): k(f"v_cvt_pk_bf16_f32 v{J.P+e}, v{V_X+8+2*e}, v{V_X+9+2*e}")
            k(f"s_nop 1\ns_setpc_b64 s[{S_RET}:{S_RET+1}]")


def diag_modes(blk):
    return "".join("F" if b < blk else "T" if b == blk else "E" for b in range(4))


QACC = (1, 2)


def q_phase(k, A, base):
    steps = [dict(srd=SWQ, col=128 * (s_ % 2), mode="Q", kc=s_ // 2, acc=QACC[s_ % 2]) for s_ in range(8)]
    setup = f"""
    v_lshlrev_b32 v{V_L16}, 4, v0
    v_add_u32 v{V_DVO}, s{S_W4K}, v{V_L16}
    s_lshl_b32 s5, s{S_I}, 3
    s_sub_u32 s6, 120, s5
    s_sub_u32 s7, 7, s3
    s_add_u32 s{S_RB}, s5, s3
    s_add_u32 s{S_RB+1}, s5, s7
    s_add_u32 s{S_RB+2}, s6, s3
    s_add_u32 s{S_RB+3}, s6, s7
    s_lshl_b32 s{S_RB}, s{S_RB}, 14
    s_lshl_b32 s{S_RB+1}, s{S_RB+1}, 14
    s_lshl_b32 s{S_RB+2}, s{S_RB+2}, 14
    s_lshl_b32 s{S_RB+3}, s{S_RB+3}, 14
    """
    su = [It(l_.strip()) for l_ in setup.strip().split("\n")]

    class Rec:
        def __init__(s): s.items = []
        def __call__(s, t): s.items.append(It(t, "s"))
    R = Rec()
    R(f"s_lshl_b32 s5, s{S_H}, 8\ns_sub_u32 s6, 0x400000, s5")
    srd(R, SWQ, P['wq'], P['wq'] + 1, "s5", "s6")
    srd(R, SXN, P['ws'], P['ws'] + 1, WS_XN, 2 * MB)
    R(f"s_lshl_b32 s5, s{S_H}, 19\ns_sub_u32 s6, 16, s{S_I}\ns_lshl_b32 s6, s6, 15")
    srd(R, SK, P['ws'], P['ws'] + 1, "s5", "s6")
    R(f"s_add_u32 s5, s5, {WS_V}")
    srd(R, SV, P['ws'], P['ws'] + 1, "s5", "s6")
    su += R.items

    def xn_items(kc, bs):
        out = []
        for b in bs:
            out.append(It(f"s_add_u32 s5, s{S_RB+b}, {kc*4096}"))
            for ks in range(4):
                out.append(L(lambda b=b, ks=ks: k.vmop(
                    f"buffer_load_dwordx4 {a(64*b+16*kc+4*ks,4)}, v{V_L16}, s[{SXN}:{SXN+3}], s5 offen offset:{ks*1024}{SC1}", ("XN", kc, b)), "d"))
        return out

    def k0_dma():
        return [It(f"s_add_u32 m0, s{S_W4K}, 81920")] + [L(lambda jj=jj: k.vmop(
            f"buffer_load_dwordx4 v{V_DVO}, s[{SK}:{SK+3}], 0 offen offset:{jj*1024}{SC1} lds", "K0"), "d") for jj in range(4)]

    def pair_dma(p):
        return [It(f"s_add_u32 s{S_WR}, s{S_W4K}, {((p+3) % 5)*32768}"), It(f"s_mov_b32 s{S_DSO}, {p*16384}")] + A.dma_items(p)

    def epi(step):
        if step < base + 6: return []
        g = QACC[(step - base) % 2]
        items = []
        for b in range(4):
            for j in range(2):
                x, y = V_ACC + 64 * g + 32 * j + 4 * b, V_ACC + 64 * g + 32 * j + 16 + 4 * b
                for z in (x, y):
                    for r in range(0, 4, 2):
                        items.append(It(f"v_mul_f32 v{z+r}, {QSCALE}, v{z+r}\nv_mul_f32 v{z+r+1}, {QSCALE}, v{z+r+1}"))
                        items.append(It(f"v_cvt_pk_bf16_f32 v{x + (2 if z == y else 0) + r//2}, v{z+r}, v{z+r+1}"))
        return items
    return steps, su, xn_items, k0_dma, pair_dma, epi


def att_phase(k, A, pair_dma, ts, st0):
    k.vmwait("K0")
    k("s_barrier")
    run(k, pair_dma(2)); run(k, pair_dma(3))
    k(f"s_mov_b32 s{S_DSO}, {4*16384}\ns_add_u32 s{S_WR}, s{S_W4K}, 65536\ns_mov_b32 s{S_RD}, 98304")
    k(f"v_add_u32 v{V_RA}, 65536, v{V_L16}")
    for it in A.kv_reads("K"): it()
    k(f"v_add_u32 v{V_RA}, 98304, v{V_L16}")
    k(f"s_lshl_b32 s4, s{S_H}, 12\ns_add_u32 s4, s4, {WS_CTX}")
    srd(k, SCTX, P['ws'], P['ws'] + 1, "s4", 16 * MB)
    k("v_lshrrev_b32 v2, 4, v0\nv_lshlrev_b32 v2, 2, v2\nv_and_b32 v3, 15, v0\nv_sub_u32 v2, v3, v2")
    for r in range(4): k(f"v_cmp_le_i32 s[{S_MASK+2*r}:{S_MASK+2*r+1}], {r}, v2")
    for g in range(2):
        for b in range(4):
            for j in range(2):
                x = V_ACC + 64 * QACC[g] + 32 * j + 4 * b
                for r in range(4): k(f"v_accvgpr_write_b32 a{A_Q+16*b+4*(2*g+j)+r}, v{x+r}")
    for r in range(128): k(f"v_mov_b32 v{V_O+r}, 0")
    for r in range(V_T, V_L + 4): k(f"v_mov_b32 v{r}, 0")
    for r in range(16): k(f"v_mov_b32 v{V_C+r}, 0xc2cc0000\nv_mov_b32 v{V_P+r}, 0\nv_mov_b32 v{V_S+16+r}, {NEG}")
    for q in range(4): k(f"s_mov_b32 s{S_THR+q}, {THR_BITS if q == LASTQ else '-1.0'}\ns_lshl_b32 s{S_RB+q}, s{S_RB+q}, 3")
    k(f"s_mov_b32 s{S_ARM}, -1.0")
    A.pend = Job(LASTQ, FULL, 1)
    full_sm = A.sm_items(A.pend)
    A.psm = [it.x for it in full_sm[CARRY:]]
    stamp(k, st0, ts)
    shared = [(0, FULL), (1, FULL), (3, FULL), (2, FULL)]
    single = [(3, FULL), (2, FULL)]
    A.loop(shared, f"s_lshl_b32 s{S_CNT}, s{S_I}, 1")
    stamp(k, st0 + 1, ts)

    def variants(fn):
        labs = [k.label(f"w{w}") for w in range(4)]
        join = k.label("vj")
        st = (list(k.vm), list(k.lg), A.par, A.pend, list(A.psm))
        res_ = None
        for w in range(4):
            k(f"{labs[w]}:")
            if w < 3: k(f"s_cmp_eq_u32 s3, {w}\ns_cbranch_scc0 {labs[w+1]}")
            k.vm, k.lg, A.par, A.pend, A.psm = list(st[0]), list(st[1]), st[2], st[3], list(st[4])
            fn(w)
            k.vm = [t for t in k.vm if isinstance(t, tuple) and t[0] == "D"]
            now = (list(k.vm), list(k.lg), A.par, A.pend.q, A.pend.par, list(A.psm))
            assert res_ is None or res_ == now, (res_, now)
            res_ = now
            if w < 3: k(f"s_branch {join}")
        k(f"{join}:")

    def diagA(w):
        A.period([(0, diag_modes(w)), (1, FULL), (3, FULL), (2, FULL)])
        A.period([(1, diag_modes(3 - w)), (3, FULL), (2, FULL)],
                 extra=lambda pos, pv, n: [(2, pv[1][0] - 1, A.out_items(0)), (pv[2][0] - 4, n - 1, A.out_items(1))])
    variants(diagA)
    stamp(k, st0 + 2, ts)
    A.loop(single, f"s_lshl_b32 s4, s{S_I}, 2\ns_sub_u32 s{S_CNT}, 28, s4")
    stamp(k, st0 + 3, ts)

    def diagB(w):
        A.period([(3, FULL), (2, diag_modes(w))], dma=False)
        A.period([(3, diag_modes(3 - w))], dma=False, nextk=False, last=True)
        o2 = A.out_items(2)
        J = A.pend
        c1, c2 = A.check_items(J)
        k(c1); run(k, o2[:3]); k("s_nop 0"); k(c2)
        blk = A.pv_block(J, vwait=True)
        pack(k, blk, [window(o2[3:], 0, len(blk) - 1)])
        run(k, A.out_items(3))
        k.lg = []
        A.psm = []
    variants(diagB)
```

```python
from emit import *
from k1 import seq, SC1

V_L16, V_AO, V_BO, V_ACC, V_T = 2, 4, 8, 64, 128
SA, SB, SR, SO, SS = 8, 12, 16, 20, 24
S_R, S_C, S_KO, S_KA, S_CNT = 70, 71, 72, 73, 74


def gemm_main(k, nk, per_wave, ts):
    for t in range(4):
        k(f"v_add_u32 v{V_AO+t}, {t*nk*1024}, v{V_L16}")
    k(f"s_mul_i32 s{S_KO}, s3, {per_wave*1024}")
    nb = (per_wave + 1) // 2
    short = 4 * per_wave > nk

    def loads(b):
        items = []
        kss = range(min(2, per_wave - 2 * b))
        for ks in kss:
            lastk = short and 2 * b + ks == per_wave - 1
            for t in range(4):
                for op, sr in ((0, SA), (1, SB)):
                    so = S_KA if (lastk and op == 0) else S_KO
                    items.append(It(lambda t=t, ks=ks, op=op, sr=sr, so=so: k.vmop(
                        f"buffer_load_dwordx4 {a(64*(b%4)+32*op+8*t+4*ks,4)}, v{V_AO+t}, s[{sr}:{sr+3}], s{so} offen offset:{ks*1024}{SC1}", ("L", b % 4, ks)), "d"))
        items.append(It(f"s_add_u32 s{S_KO}, s{S_KO}, 2048"))
        return items

    def batch(b, nxt):
        mf = []
        kss = list(range(min(2, per_wave - 2 * b)))
        first = True
        for nt in range(4):
            for rr in range(4):
                rb = rr if nt % 2 == 0 else 3 - rr
                for ks in (kss if rr % 2 == 0 else kss[::-1]):
                    pre = [lambda: k.vmwait([("L", b % 4, x) for x in kss])] if first else []
                    first = False
                    acc = v(V_ACC + 16 * rb + 4 * nt, 4)
                    mf.append((pre, mfma(acc, a(64 * (b % 4) + 8 * nt + 4 * ks, 4), a(64 * (b % 4) + 32 + 8 * rb + 4 * ks, 4), acc)))
        pack(k, mf, [window(loads(b + 3), 0, len(mf) - 1)] if nxt else [])

    if short:
        k(f"s_add_u32 s{S_KA}, s{S_KO}, {(per_wave-1)//2*2048}\ns_cmp_eq_u32 s3, 3\ns_cselect_b32 s{S_KA}, 0x7000000, s{S_KA}")
    for b in range(3):
        seq(k, [it.x for it in loads(b)])()
    return nb, batch


def reduce_write(k, gs, tsz):
    k(f"""
    v_and_b32 v12, 15, v0
    v_lshlrev_b32 v12, 4, v12
    v_lshrrev_b32 v13, 4, v0
    v_mul_u32_u24 v13, {gs}, v13
    v_add_u32 v12, v12, v13
    s_mul_i32 s4, s3, {16*tsz}
    v_add_u32 v13, s4, v12
    s_nop 7
    """)
    for i in range(16):
        k.lgop(f"ds_write_b128 v13, {v(V_ACC+4*i,4)} offset:{i*tsz}", "rw")
    k.lgdrain()
    k("s_barrier")


def tile_ids(k):
    k(f"""
    s_and_b32 s{S_R}, s2, 7
    s_lshl_b32 s{S_R}, s{S_R}, 2
    s_bfe_u32 s4, s2, 0x20003
    s_add_u32 s{S_R}, s{S_R}, s4
    s_lshr_b32 s{S_C}, s2, 5
    v_lshlrev_b32 v{V_L16}, 4, v0
    """)


def o_phase(k, ts, st0):
    tile_ids(k)
    k(f"""
    s_lshr_b32 s4, s{S_R}, 1
    s_sub_u32 s5, 15, s4
    s_min_u32 s4, s4, s5
    s_lshl_b32 s4, s4, 5
    s_lshl_b32 s5, s3, 1
    s_add_u32 s4, s4, s5
    s_lshl_b32 s4, s4, 7
    s_add_u32 s4, s4, {FOFF[3]}
    v_bfe_u32 v12, v0, 2, 1
    v_and_b32 v13, 3, v0
    v_lshl_add_u32 v12, v13, 3, v12
    v_lshlrev_b32 v12, 7, v12
    v_add_u32 v12, s4, v12
    """)
    await_flags(k, 12, 13)
    stamp(k, st0, ts)
    k(f"s_lshl_b32 s4, s{S_C}, 19\ns_add_u32 s4, s4, {WS_WO}"); srd(k, SA, P['ws'], P['ws'] + 1, "s4", 4 * 131072)
    k(f"s_lshl_b32 s4, s{S_R}, 19\ns_add_u32 s4, s4, {WS_CTX}"); srd(k, SB, P['ws'], P['ws'] + 1, "s4", 4 * 131072)
    nb, batch = gemm_main(k, 128, 32, ts)
    k(f"s_lshl_b32 s5, s{S_R}, 2\ns_add_u32 s5, s5, s3\ns_lshl_b32 s5, s5, 14\ns_lshl_b32 s4, s{S_C}, 7\ns_add_u32 s4, s4, s5")
    srd(k, SR, P['x'], P['x'] + 1, "s4", 15 * 1024 + 128)
    k(f"s_lshl_b32 s4, s{S_C}, 11\ns_add_u32 s4, s4, s5\ns_add_u32 s4, s4, {WS_H}"); srd(k, SO, P['ws'], P['ws'] + 1, "s4", 2048)
    k(f"s_lshr_b32 s5, s5, 4\ns_lshl_b32 s4, s{S_C}, 7\ns_add_u32 s4, s4, s5\ns_add_u32 s4, s4, {WS_ST}"); srd(k, SS, P['ws'], P['ws'] + 1, "s4", 128)
    k("v_and_b32 v12, 15, v0\nv_lshlrev_b32 v14, 3, v0\nv_lshlrev_b32 v12, 10, v12\nv_lshrrev_b32 v13, 4, v0\nv_lshl_add_u32 v12, v13, 3, v12")
    X = 16
    for nt in range(4):
        k.vmop(f"buffer_load_dwordx2 {v(X+2*nt,2)}, v12, s[{SR}:{SR+3}], 0 offen offset:{32*nt}", "X")
    for r in range(64): k(f"v_mov_b32 v{V_ACC+r}, 0")
    top = k.label("lp")
    k(f"s_mov_b32 s{S_CNT}, 3\n{top}:")
    k.vm = [t for t in k.vm if t != "X"]
    vm0 = list(k.vm)
    for b in range(4): batch(b, True)
    assert k.vm == vm0
    k(f"s_sub_u32 s{S_CNT}, s{S_CNT}, 1\ns_cmp_lg_u32 s{S_CNT}, 0\ns_cbranch_scc1 {top}")
    batch(12, True)
    for b in range(13, 16): batch(b, False)
    stamp(k, st0 + 1, ts)
    reduce_write(k, 256, 1024)
    k(f"s_lshl_b32 s4, s3, 12\nv_add_u32 v13, s4, v{V_L16}")
    for w in range(4):
        for nt in range(4):
            k.lgop(f"ds_read_b128 {v(V_T+16*w+4*nt,4)}, v13 offset:{w*16384+nt*1024}", ("rr", w))
    k.lgwait(("rr", 1))
    for r in range(16): k(f"v_add_f32 v{V_T+r}, v{V_T+r}, v{V_T+16+r}")
    k.lgwait(("rr", 3))
    for r in range(16): k(f"v_add_f32 v{V_T+32+r}, v{V_T+32+r}, v{V_T+48+r}")
    for r in range(16): k(f"v_add_f32 v{V_T+r}, v{V_T+r}, v{V_T+32+r}")
    H, U = 24, V_T + 16
    for j in range(8):
        k(f"""
        v_cvt_pk_bf16_f32 v{H+j}, v{V_T+2*j}, v{V_T+2*j+1}
        v_lshlrev_b32 v{U+2*j}, 16, v{X+j}
        v_and_b32 v{U+2*j+1}, 0xffff0000, v{X+j}
        v_lshlrev_b32 v{V_T+2*j}, 16, v{H+j}
        v_and_b32 v{V_T+2*j+1}, 0xffff0000, v{H+j}
        v_add_f32 v{U+2*j}, v{U+2*j}, v{V_T+2*j}
        v_add_f32 v{U+2*j+1}, v{U+2*j+1}, v{V_T+2*j+1}
        v_cvt_pk_bf16_f32 v{H+j}, v{U+2*j}, v{U+2*j+1}
        """)
    for j in range(2):
        k.vmop(f"buffer_store_dwordx4 {v(H+4*j,4)}, v{V_L16}, s[{SO}:{SO+3}], 0 offen offset:{1024*j}{SC1}", "st")
    for j in range(8):
        k(f"v_lshlrev_b32 v{U+2*j}, 16, v{H+j}\nv_and_b32 v{U+2*j+1}, 0xffff0000, v{H+j}")
    k(f"v_add_f32 v32, v{U}, v{U+1}")
    for j in range(2, 16): k(f"v_add_f32 v32, v32, v{U+j}")
    xlane_sum(k, 32, 3, ["p16", "p32"])
    k(f"v_mul_f32 v32, 0x3c800000, v32\nv_sub_f32 v3, v{U}, v32\nv_mul_f32 v33, v3, v3")
    for j in range(1, 16): k(f"v_sub_f32 v3, v{U+j}, v32\nv_fmac_f32 v33, v3, v3")
    xlane_sum(k, 33, 3, ["p16", "p32"])
    k.vmop(f"buffer_store_dwordx2 v[32:33], v14, s[{SS}:{SS+3}], 0 offen{SC1}", "st")


def d_phase(k, ts, st0):
    GS, TS = 320, 1344
    tile_ids(k)
    k(f"""
    s_lshr_b32 s4, s{S_R}, 2
    s_bfe_u32 s5, s{S_R}, 0x10001
    s_lshl_b32 s5, s5, 3
    s_add_u32 s4, s4, s5
    s_lshl_b32 s4, s4, 7
    s_add_u32 s4, s4, {FOFF[5]}
    v_and_b32 v12, 15, v0
    v_lshlrev_b32 v12, 11, v12
    v_add_u32 v12, s4, v12
    """)
    await_flags(k, 12, 13)
    stamp(k, st0, ts)
    k(f"s_mul_i32 s4, s{S_C}, {4*43*1024}\ns_add_u32 s4, s4, {WS_W2}"); srd(k, SA, P['ws'], P['ws'] + 1, "s4", 4 * 43 * 1024)
    k(f"s_mul_i32 s4, s{S_R}, {4*43*1024}\ns_add_u32 s4, s4, {WS_HH}"); srd(k, SB, P['ws'], P['ws'] + 1, "s4", 4 * 43 * 1024)
    nb, batch = gemm_main(k, 43, 11, ts)
    k(f"s_lshl_b32 s5, s{S_R}, 2\ns_add_u32 s5, s5, s3\ns_lshl_b32 s5, s5, 14\ns_lshl_b32 s4, s{S_C}, 7\ns_add_u32 s4, s4, s5")
    srd(k, SO, P['out'], P['out'] + 1, "s4", 15 * 1024 + 128)
    k(f"s_lshl_b32 s4, s{S_C}, 11\ns_add_u32 s4, s4, s5\ns_add_u32 s4, s4, {WS_H}"); srd(k, SR, P['ws'], P['ws'] + 1, "s4", 2048)
    k(f"""
    v_lshrrev_b32 v12, 2, v0
    v_and_b32 v13, 1, v0
    v_bfe_u32 v14, v0, 1, 1
    v_lshlrev_b32 v15, 4, v12
    v_lshl_add_u32 v3, v13, 9, v15
    v_lshl_add_u32 v3, v14, 3, v3
    v_mul_u32_u24 v13, {2*GS}, v13
    v_mul_u32_u24 v14, {TS}, v14
    v_add3_u32 v15, v15, v13, v14
    s_mul_i32 s4, s3, {4*TS}
    v_add_u32 v15, s4, v15
    v_and_b32 v13, 3, v0
    v_lshlrev_b32 v13, 4, v13
    v_lshl_add_u32 v14, v12, 10, v13
    """)
    X = 16
    for hh in range(2):
        for gg in range(2):
            k.vmop(f"buffer_load_dwordx2 {v(X+4*hh+2*gg,2)}, v3, s[{SR}:{SR+3}], 0 offen offset:{1024*hh+256*gg}{SC1}", "X")
    for r in range(64): k(f"v_mov_b32 v{V_ACC+r}, 0")
    for b in range(nb): batch(b, b + 3 < nb)
    stamp(k, st0 + 1, ts)
    reduce_write(k, GS, TS)
    k(f"v_add_u32 v13, {32*TS}, v15")
    for w in range(4):
        for hh in range(2):
            for gg in range(2):
                k.lgop(f"ds_read_b128 {v(V_T+16*w+8*hh+4*gg,4)}, v{15 if w < 2 else 13} offset:{(w % 2)*16*TS+2*hh*TS+gg*GS}", ("rr", w))
    k.lgwait(("rr", 1))
    for r in range(16): k(f"v_add_f32 v{V_T+r}, v{V_T+r}, v{V_T+16+r}")
    k.lgwait(("rr", 3))
    for r in range(16): k(f"v_add_f32 v{V_T+32+r}, v{V_T+32+r}, v{V_T+48+r}")
    for r in range(16): k(f"v_add_f32 v{V_T+r}, v{V_T+r}, v{V_T+32+r}")
    k.vmwait("X")
    H, U = 24, V_T + 16
    for j in range(8):
        k(f"""
        v_cvt_pk_bf16_f32 v{H+j}, v{V_T+2*j}, v{V_T+2*j+1}
        v_lshlrev_b32 v{U+2*j}, 16, v{X+j}
        v_and_b32 v{U+2*j+1}, 0xffff0000, v{X+j}
        v_lshlrev_b32 v{V_T+2*j}, 16, v{H+j}
        v_and_b32 v{V_T+2*j+1}, 0xffff0000, v{H+j}
        v_add_f32 v{U+2*j}, v{U+2*j}, v{V_T+2*j}
        v_add_f32 v{U+2*j+1}, v{U+2*j+1}, v{V_T+2*j+1}
        v_cvt_pk_bf16_f32 v{H+j}, v{U+2*j}, v{U+2*j+1}
        """)
        if j % 4 == 3:
            k.vmop(f"buffer_store_dwordx4 {v(H+j-3,4)}, v14, s[{SO}:{SO+3}], 0 offen offset:{64*(j//4)}", "st")
```

```python
from emit import *
from k1 import seq, SC1

V_L16, V_WVO, V_HO, V_RA = 2, 4, 7, 9
V_MB, V_RS, V_S2, V_NL = 12, 14, 16, 18
V_WF, V_ACC, V_T = 32, 64, 160
SW, SH, SST, SCS, SO = 8, 12, 16, 20, 24
S_RB, S_PS, S_SO, S_LW = 70, 71, 72, 73
SLOT, NSL, CSL = 24576, 6, 147456


def body(k, np_, ts, st0):
    nt = 4 * np_
    tw = np_
    k(f"s_mul_i32 s4, s3, {tw*16384}\nv_add_u32 v{V_WVO}, s4, v{V_L16}\nv_add_u32 v{V_WVO+1}, {16384-2048}, v{V_WVO}\n"
      f"v_add_u32 v{V_WVO+2}, {2*16384}, v{V_WVO}\ns_mul_i32 s{S_LW}, s3, {tw*2048}")

    def wdma(s_):
        items = [It(f"s_add_u32 m0, s{S_LW}, {(s_ % NSL)*SLOT}"), It(f"s_mov_b32 s{S_SO}, {s_*2048}")]
        for tt in range(tw):
            if tt == 2: items.append(It(f"s_add_u32 m0, s{S_LW}, {(s_ % NSL)*SLOT + 4096}"))
            for kk in range(2):
                items.append(It(lambda tt=tt, kk=kk: k.vmop(
                    f"buffer_load_dwordx4 v{V_WVO+tt}, s[{SW}:{SW+3}], s{S_SO} offen offset:{(tt % 2)*2048 + kk*1024}{SC1} lds", ("W", s_)), "d"))
        return items

    def hload(s_):
        items = [It(f"s_mov_b32 s5, {s_*2048}")]
        for rb in range(2):
            for kk in range(2):
                items.append(It(lambda rb=rb, kk=kk: k.vmop(
                    f"buffer_load_dwordx4 {a(16*s_+8*rb+4*kk,4)}, v{V_HO+rb}, s[{SH}:{SH+3}], s5 offen offset:{kk*1024}{SC1}", ("H", s_)), "d"))
        return items
    run = lambda items: seq(k, [it.x for it in items])()
    k(f"v_and_b32 v3, 15, v0\nv_lshlrev_b32 v3, 3, v3\nv_lshrrev_b32 v10, 4, v0\nv_lshl_add_u32 v3, v10, 8, v3")
    for rb in range(2):
        for c in range(2):
            k.vmop(f"buffer_load_dwordx2 {v(V_T+4*rb+2*c,2)}, v3, s[{SST}:{SST+3}], 0 offen offset:{1024*rb+128*c}{SC1}", "ST")
    k(f"""
    s_lshl_b32 s4, s3, 6
    v_add_u32 v10, s4, v0
    v_bfe_u32 v11, v10, 4, 1
    v_mul_u32_u24 v11, {16*5632}, v11
    v_lshrrev_b32 v3, 5, v10
    v_lshlrev_b32 v3, 6, v3
    v_add_u32 v11, v11, v3
    v_and_b32 v3, 15, v0
    v_lshl_add_u32 v11, v3, 2, v11
    v_lshlrev_b32 v10, 2, v10
    s_mov_b32 s4, 0
    """)
    for ks in range(16):
        k.vmop(f"buffer_load_dword v{V_T+8+ks}, v11, s[{SCS}:{SCS+3}], s4 offen{SC1}", "CS")
        if ks < 15: k("s_add_u32 s4, s4, 5632")
    for s_ in range(3):
        run(wdma(s_)); run(hload(s_))
    k.vmwait("CS")
    for ks in range(1, 16): k(f"v_add_f32 v{V_T+8}, v{V_T+8}, v{V_T+8+ks}")
    k(f"v_add_u32 v10, {CSL}, v10")
    k.lgop(f"ds_write_b32 v10, v{V_T+8}", "csw")
    for rb in range(2):
        T = V_T + 4 * rb
        m, q = V_MB + rb, V_RS + rb
        k(f"v_add_f32 v{m}, v{T}, v{T+2}")
        xlane_sum(k, m, 3, ["p16", "p32"])
        k(f"""
        v_mul_f32 v{m}, 0x3e000000, v{m}
        v_sub_f32 v{T}, v{T}, v{m}
        v_sub_f32 v{T+2}, v{T+2}, v{m}
        v_mul_f32 v{T}, v{T}, v{T}
        v_fmac_f32 v{T}, v{T+2}, v{T+2}
        v_add_f32 v{q}, v{T+1}, v{T+3}
        v_fmac_f32 v{q}, 0x42800000, v{T}
        """)
        xlane_sum(k, q, 3, ["p16", "p32"])
        k(f"""
        v_mul_f32 v{q}, 0x3b000000, v{q}
        v_cvt_pk_bf16_f32 v{m}, v{m}, v{q}
        v_and_b32 v{q}, 0xffff0000, v{m}
        v_lshlrev_b32 v{m}, 16, v{m}
        v_xor_b32 v{m}, 0x80000000, v{m}
        v_add_f32 v{q}, 0x3727c5ac, v{q}
        v_cvt_pk_bf16_f32 v{q}, v{q}, v{q}
        v_lshlrev_b32 v{q}, 16, v{q}
        v_sqrt_f32 v{q}, v{q}
        s_nop 0
        v_cvt_pk_bf16_f32 v{q}, v{q}, v{q}
        v_lshlrev_b32 v{q}, 16, v{q}
        v_mul_f32 v{V_S2+rb}, v{q}, v{q}
        v_rcp_f32 v{q}, v{q}
        s_nop 0
        v_mul_f32 v{V_NL+rb}, 0xbfb8aa3b, v{q}
        """)
    for s_ in range(3, 6):
        run(wdma(s_)); run(hload(s_))
    k.lgdrain()
    k(f"v_add_u32 v{V_RA+1}, {2*SLOT}, v{V_L16}\nv_add_u32 v{V_RA+2}, {4*SLOT}, v{V_L16}")
    k.vmwait(("W", 0))
    k("s_barrier")
    k(f"v_lshrrev_b32 v3, 4, v0\nv_lshlrev_b32 v3, 4, v3\nv_add_u32 v3, {CSL}, v3")
    for t in range(nt):
        k.lgop(f"ds_read_b128 {v(V_T+4*t,4)}, v3 offset:{64*t}", ("cs", t))

    def wreads(s_, t):
        return [It(lambda kk=kk: k.lgop(
            f"ds_read_b128 {v(V_WF+8*(t % 4)+4*kk,4)}, v{V_RA + (s_ % NSL)//2} offset:{((s_ % NSL) % 2)*SLOT + t*2048 + kk*1024}", ("F", s_, t)), "r") for kk in range(2)]
    for t in range(3): run(wreads(0, t))
    acc = lambda t, rb: V_ACC + 8 * t + 4 * rb
    for t in range(nt):
        k.lgwait(("cs", t))
        for rb in range(2):
            for r in range(4): k(f"v_mul_f32 v{acc(t, rb)+r}, v{V_T+4*t+r}, v{V_MB+rb}")
    stamp(k, st0 + 1, ts)
    for s_ in range(8):
        mf, rd = [], []
        for t in range(nt):
            for rr in range(2):
                rb = rr if t % 2 == 0 else 1 - rr
                for kk in ((0, 1) if rr == 0 else (1, 0)):
                    pre = []
                    if len(mf) == 0: pre.append(lambda: k.vmwait(("H", s_)))
                    if rr == 0 and kk == 0: pre.append(lambda t=t: k.lgwait(("F", s_, t)))
                    mf.append((pre, mfma(v(acc(t, rb), 4), v(V_WF + 8 * (t % 4) + 4 * kk, 4), a(16 * s_ + 8 * rb + 4 * kk, 4), v(acc(t, rb), 4))))
            t3 = t + 3
            if t3 < nt: its = wreads(s_, t3)
            elif s_ < 7: its = wreads(s_ + 1, t3 - nt)
            else: its = []
            rd += window(its, 4 * t, 4 * t + 3)
        streams = [rd]
        bpos = 4 * (nt - 3) - 1
        if s_ < 7:
            streams.append(window([It(lambda: (k.vmwait(("W", s_ + 1)), k("s_barrier")), "s")], bpos, bpos))
        if s_ in (1, 2):
            streams.append(window(wdma(s_ + 5), bpos + 1, len(mf) - 1))
        if s_ in (0, 1):
            streams.append(window(hload(s_ + 6), 2, 20))
        pack(k, mf, streams)
    stamp(k, st0 + 2, ts)
    k("s_nop 7")
    for pp in range(np_):
        for rb in range(2):
            T = V_T + 16 * ((2 * pp + rb) % 2)
            el = [(acc(4 * pp + 2 * f, rb) + r, acc(4 * pp + 2 * f + 1, rb) + r) for f in range(2) for r in range(4)]
            for j, (g, u) in enumerate(el): k(f"v_mul_f32 v{T+j}, v{g}, v{V_NL+rb}")
            for j, (g, u) in enumerate(el): k(f"v_exp_f32 v{T+j}, v{T+j}\nv_mul_f32 v{g}, v{g}, v{u}")
            for j, (g, u) in enumerate(el): k(f"v_fma_f32 v{T+j}, v{T+j}, v{V_S2+rb}, v{V_S2+rb}")
            for j, (g, u) in enumerate(el): k(f"v_rcp_f32 v{T+j}, v{T+j}")
            for j, (g, u) in enumerate(el): k(f"v_mul_f32 v{g}, v{g}, v{T+j}")
            for j in range(4): k(f"v_cvt_pk_bf16_f32 v{T+8+j}, v{el[2*j][0]}, v{el[2*j+1][0]}")
            k(f"s_mov_b32 s4, {rb*43*1024}")
            k.vmop(f"buffer_store_dwordx4 {v(T+8,4)}, v{V_L16}, s[{SO}:{SO+3}], s4 offen offset:{pp*1024}{SC1}", "st")


def g_phase(k, ts, st0):
    k(f"""
    s_and_b32 s{S_RB}, s2, 7
    s_lshl_b32 s{S_RB}, s{S_RB}, 1
    s_bfe_u32 s4, s2, 0x10003
    s_add_u32 s{S_RB}, s{S_RB}, s4
    s_lshl_b32 s{S_RB}, s{S_RB}, 3
    s_lshl_b32 s4, s3, 1
    s_add_u32 s{S_RB}, s{S_RB}, s4
    s_lshr_b32 s6, s2, 4
    s_mul_i32 s4, s6, 3
    s_lshl_b32 s5, s6, 1
    s_add_u32 s5, s5, 11
    s_min_u32 s{S_PS}, s4, s5
    v_lshlrev_b32 v{V_L16}, 4, v0
    v_mov_b32 v{V_HO}, v{V_L16}
    v_add_u32 v{V_HO+1}, 16384, v{V_L16}
    v_mov_b32 v{V_RA}, v{V_L16}
    s_lshr_b32 s5, s{S_RB}, 2
    s_lshr_b32 s4, s5, 2
    s_and_b32 s5, s5, 3
    s_lshl_b32 s5, s5, 3
    s_add_u32 s4, s4, s5
    s_lshl_b32 s4, s4, 7
    s_add_u32 s4, s4, {FOFF[4]}
    v_and_b32 v12, 7, v0
    v_lshlrev_b32 v12, 12, v12
    v_add_u32 v12, s4, v12
    """)
    await_flags(k, 12, 13)
    stamp(k, st0, ts)
    k(f"s_lshl_b32 s4, s{S_PS}, 16\ns_add_u32 s4, s4, {WS_W13}"); srd(k, SW, P['ws'], P['ws'] + 1, "s4", 12 * 16384)
    k(f"s_lshl_b32 s4, s{S_RB}, 14\ns_add_u32 s4, s4, {WS_H}"); srd(k, SH, P['ws'], P['ws'] + 1, "s4", 32768)
    k(f"s_lshl_b32 s4, s{S_RB}, 10\ns_add_u32 s4, s4, {WS_ST}"); srd(k, SST, P['ws'], P['ws'] + 1, "s4", 2048)
    k(f"s_lshl_b32 s4, s{S_PS}, 7\ns_sub_u32 s5, {32*5632}, s4\ns_add_u32 s4, s4, {WS_CS}"); srd(k, SCS, P['ws'], P['ws'] + 1, "s4", "s5")
    k(f"s_mul_i32 s4, s{S_RB}, {43*1024}\ns_lshl_b32 s5, s{S_PS}, 10\ns_add_u32 s4, s4, s5\ns_add_u32 s4, s4, {WS_HH}")
    srd(k, SO, P['ws'], P['ws'] + 1, "s4", 43 * 1024 + 3072)
    two, join = k.label("two"), k.label("gj")
    k(f"s_cmp_ge_u32 s6, 11\ns_cbranch_scc1 {two}")
    for np_ in (3, 2):
        k.vm, k.lg = [], []
        body(k, np_, ts, st0)
        k(f"s_branch {join}\n{two}:" if np_ == 3 else f"{join}:")
```

```python
import sys, hazard
from emit import *
import k1, k2, k35, k4
from k1 import run, L

NAME = "sequential_preLN__compressed_kv_cla__glu_gated_swiglu__prompt_kernel"
NSTAMP = 24


def poll_pair(k, vaddr, vt, stubs, wide):
    out, back = k.label("po"), k.label("pb")
    stubs.append((out, back, vaddr, vt, wide))
    tag = ("PL", out)
    if wide: issue = [L(lambda x=x: k.vmop(x, tag), "d") for x in wide_poll(vaddr, vt).split("\n")]
    else: issue = [L(lambda: k.vmop(f"buffer_load_dword v{vt}, v{vaddr}, s[{S_FL}:{S_FL+3}], 0 offen sc1", tag), "d")]
    chk = [L(lambda: k.vmwait(tag), "s")]
    if wide:
        chk += [It(f"v_xor_b32 v{vt+j}, s{S_TAG}, v{vt+j}") for j in range(4)]
        chk += [It(f"v_or3_b32 v{vt}, v{vt}, v{vt+1}, v{vt+2}"), It(f"v_or_b32 v{vt}, v{vt}, v{vt+3}"), It(f"v_cmp_ne_u32 vcc, 0, v{vt}")]
    else:
        chk += [It(f"v_cmp_ne_u32 vcc, s{S_TAG}, v{vt}")]
    chk += [It("s_nop 0"), It(f"s_cbranch_vccnz {out}\n{back}:")]
    return issue, chk


def build(ts=False, name=NAME, steps_ts=False):
    k = K(name, 256, 256, 163840, vgpr=256, agpr=256)
    load_args(k)
    stamp(k, 0, ts)
    stubs = []
    steps, extra, epi_kv = k1.kv_phase(k, ts)
    A = k2.Att(k)
    qsteps, qsetup, xn_items, k0_dma, pair_dma, epi_q = k2.q_phase(k, A, 16)
    steps += qsteps
    f1 = """
    s_lshl_b32 s67, s71, 3
    v_mov_b32 v16, s67
    s_sub_u32 s67, 120, s67
    v_mov_b32 v17, s67
    v_and_b32 v18, 4, v0
    v_cmp_eq_u32 vcc, 0, v18
    v_cndmask_b32 v16, v17, v16, vcc
    s_sub_u32 s67, 7, s3
    v_mov_b32 v17, s67
    v_mov_b32 v19, s3
    v_and_b32 v18, 2, v0
    v_cmp_eq_u32 vcc, 0, v18
    v_cndmask_b32 v17, v17, v19, vcc
    v_add_u32 v16, v16, v17
    v_and_b32 v18, 1, v0
    v_lshl_add_u32 v18, v16, 1, v18
    v_lshlrev_b32 v18, 7, v18
    s_and_b32 s67, s2, 31
    s_lshl_b32 s67, s67, 7
    """ + f"""s_add_u32 s67, s67, {FOFF[2]}
    v_and_b32 v19, 7, v0
    v_lshlrev_b32 v19, 12, v19
    v_add_u32 v19, s67, v19"""
    fsetup = [It(l_.strip()) for l_ in f1.strip().split("\n")]
    p1, c1 = poll_pair(k, 18, 16, stubs, False)
    p2, c2 = poll_pair(k, 19, 16, stubs, False)
    extra[8] = [(0, 63, fsetup)]
    extra[11].append((24, 24, p1, "mem"))
    extra[12] = [(0, 63, qsetup), (30, 62, c1)]
    for j_ in range(8): extra[13 + j_] = [(0, 46, xn_items(j_ // 2, (0, 1) if j_ % 2 == 0 else (2, 3)), "mem")]
    extra[21] = [(20, 20, p2, "mem")]
    extra[22] = [(0, 8, c2, "mem"), (9, 47, k0_dma() + pair_dma(0), "mem")]
    extra[23] = [(0, 40, pair_dma(1), "mem")]
    res = lambda b, ks: a(64 * b + 4 * ks, 4)

    def res_wait(step, b, ks):
        if step < 8: return [lambda: k.lgwait(("CR", 4 * (step // 2) + b))]
        if step >= 16: return [lambda: k.vmwait(("XN", (step - 16) // 2, b))]
        return []
    at_bar = {6: (lambda: k.lgwait("xw"), None), 9: (lambda: k.vmwait("sj"), lambda: publish(k, 1, 2)),
              14: (lambda: k.vmwait("sw"), lambda: publish(k, 6, 2)), 19: (lambda: k.vmwait("kv"), lambda: publish(k, 2, 2))}
    hook = lambda st: stamp(k, {7: 4, 15: 5, 21: 6, 23: 7}[st], ts) if st in (7, 15, 21, 23) else None
    if steps_ts:
        hook = lambda st: stamp(k, 4 + st, True)
        ts = False
    k1.proj_core(k, steps, res, extra, res_wait, lambda st: epi_kv(st) if st < 16 else epi_q(st), hook=hook, at_barrier=at_bar)
    k2.att_phase(k, A, pair_dma, ts, 8)
    stamp(k, 12, ts)

    def hand_off(phase):
        k.vmdrain(); k("s_barrier"); publish(k, phase, 2)
    hand_off(3)
    for l_ in wide_addr(4, 6): k(l_)
    await_flags(k, 4, 8, True)
    stamp(k, 13, ts)
    k35.o_phase(k, ts, 14)
    stamp(k, 16, ts)
    hand_off(4)
    k4.g_phase(k, ts, 17)
    stamp(k, 20, ts)
    hand_off(5)
    k35.d_phase(k, ts, 21)
    lab = k.label("ep")
    k(f"""
    s_or_b32 s4, s2, s3
    s_cmp_eq_u32 s4, 0
    s_cbranch_scc0 {lab}
    v_mov_b32 v2, {EPOCH}
    v_mov_b32 v3, s{S_TAG}
    s_mov_b64 exec, 1
    buffer_store_dword v3, v2, s[{S_FL}:{S_FL+3}], 0 offen sc1
    s_mov_b64 exec, -1
    {lab}:
    """)
    stamp(k, 23, ts)
    stamp_flush(k, 0, ts or steps_ts)
    k("s_endpgm")
    A.emit_slow()
    for out, back, vaddr, vt, wide in stubs:
        k(f"{out}:")
        await_flags(k, vaddr, vt, wide)
        k(f"s_branch {back}")
    txt = build_file([k])
    errs = hazard.check(txt)
    for x in errs[:40]: print(x)
    assert not errs
    return txt


if __name__ == "__main__":
    open("t_all.s", "w").write(build(True))
    open("t_steps.s", "w").write(build(True, steps_ts=True))
    txt = build(False)
    open("t_nots.s", "w").write(txt)
    txt = txt.replace(f"; @launch kernel={NAME} grid", "; @launch grid")
    open("sequential_preLN__compressed_kv_cla__glu_gated_swiglu__prompt.s", "w").write(txt)
    print(len(txt))
```

```python
from asmlib import *


class K(Kernel):
    def __init__(self, *a, **kw):
        super().__init__(*a, **kw)
        self.vm = []
        self.lg = []
        self.clock = 0
        self.lgt = {}
        self.AGE = 10

    def text(self):
        import hazard
        n0 = len(self.lines)
        self.lines = [l for l in hazard.autofix(self.lines) if l.strip()]
        return super().text()

    def vmop(self, text, tag=None):
        self(text); self.vm.append(tag)

    def lgop(self, text, tag=None):
        self(text); self.lg.append(tag); self.lgt[tag] = self.clock

    def _wait(self, q, tags, name, mx):
        if not isinstance(tags, list): tags = [tags]
        idx = max((i for i, t in enumerate(q) if t in tags), default=-1)
        if idx < 0: return
        if name == "lgkmcnt":
            while idx + 1 < len(q) and self.clock - self.lgt.get(q[idx + 1], self.clock) >= self.AGE: idx += 1
        n = min(len(q) - 1 - idx, mx)
        self(f"s_waitcnt {name}({n})")
        del q[:len(q) - n]

    def vmwait(self, tags): self._wait(self.vm, tags, "vmcnt", 63)
    def lgwait(self, tags): self._wait(self.lg, tags, "lgkmcnt", 15)

    def vmdrain(self):
        self("s_waitcnt vmcnt(0)"); self.vm = []

    def lgdrain(self):
        self("s_waitcnt lgkmcnt(0)"); self.lg = []

    def stream(self, mfmas, fill):
        def put(items):
            for it in items:
                if callable(it): it()
                else: self(it)
        put(fill.get(-1, []))
        for i, (pre, text) in enumerate(mfmas):
            put(pre)
            self(text)
            self.clock += 1
            put(fill.get(i, []))
        extra = [i for i in fill if i >= len(mfmas)]
        for i in sorted(extra): put(fill[i])


TRANS = ("v_exp_f32", "v_log_f32", "v_rcp_f32", "v_rsq_f32", "v_sqrt_f32")


class It:
    def __init__(s, x, kind=None, lo=None, hi=None):
        s.x, s.lo, s.hi = x, lo, hi
        if kind is None:
            assert isinstance(x, str)
            first = x.strip().split()[0]
            kind = "v" if first.startswith("v_") else "b" if first.startswith("s_cbranch") else "s"
        s.kind = kind
        s.cost = 4
        if isinstance(x, str):
            lines = [l.strip() for l in x.strip().split("\n") if not l.strip().endswith(":")]
            s.cost = sum(8 if l.startswith(TRANS) else 4 for l in lines)


def window(items, lo, hi, kind=None):
    out = []
    n = len(items)
    for j, x in enumerate(items):
        it = x if isinstance(x, It) else It(x, kind)
        it.due = lo + (j * (hi - lo + 1)) // max(n, 1)
        it.lo = lo if it.lo is None else max(it.lo, lo)
        it.due = max(it.due, it.lo)
        it.hi = max(hi, it.lo) if it.hi is None else it.hi
        out.append(it)
    return out


def pack(k, mfmas, streams, ahead=3):
    qs = [list(s_) for s_ in streams if s_]
    n = len(mfmas)

    def put(it):
        it.x() if callable(it.x) else k(it.x)

    def head(kinds, g, slack):
        best = None
        for q in qs:
            if q and q[0].kind in kinds and q[0].lo <= g and q[0].due <= g + slack:
                if best is None or q[0].due < best[0].due: best = q
        return best

    for g, (pre, text) in enumerate(mfmas):
        for p in pre:
            p() if callable(p) else k(p)
        k(text); k.clock += 1
        t = 4
        if g + 1 < n:
            m0 = len(k.lines)
            for p in mfmas[g + 1][0]:
                if callable(p): p()
            t += 4 * (len(k.lines) - m0)
        q = head("b", g, 0)
        if q: it = q.pop(0); put(it); t = max(t + 4, 8) + it.cost - 4
        while True:
            q = head("s", g, 0)
            if not q or (t > 4 and q[0].hi > g): break
            it = q.pop(0); put(it); t += it.cost
        q = head("d", g, 0)
        if q and (t <= 8 or q[0].hi <= g):
            put(q.pop(0)); t += 20
        nv = head("v", g, ahead)
        vcost = nv[0].cost if nv else 0
        behind = nv is not None and nv[0].due < g - 1
        q = head("r", g, 1)
        if q and t <= 8 and (q[0].due < g - 1 or q[0].hi <= g or (vcost <= 4 and t == 4) or (vcost == 0)):
            put(q.pop(0)); t += 4
            q = head("r", g, 2 if vcost == 0 else -3)
            if q and t <= 8: put(q.pop(0)); t += 4
            t += 4
        while True:
            q = head("v", g, ahead)
            if not q: break
            st = max(t, 8)
            if st + q[0].cost > 16 and q[0].hi > g and not (q[0].due < g - 2 and st < 16): break
            it = q.pop(0); put(it); t = st + it.cost
        for q in qs:
            while q and q[0].hi <= g: put(q.pop(0))
    for q in qs:
        while q: put(q.pop(0))


def spread(fill, items, lo, hi):
    n = len(items)
    for j, it in enumerate(items):
        idx = lo + (j * (hi - lo + 1)) // max(n, 1)
        fill.setdefault(idx, []).append(it)


def mfma(d, A, B, c):
    return f"v_mfma_f32_16x16x32_bf16 {d}, {A}, {B}, {c}"


def srd(k, n, lo, hi, off, size):
    k(f"s_add_u32 s{n}, s{lo}, {off}\ns_addc_u32 s{n+1}, s{hi}, 0\ns_mov_b32 s{n+2}, {size}\ns_mov_b32 s{n+3}, 0x20000")


MB = 1 << 20
WS_K = 0
WS_V = 16 * MB
WS_XN = 32 * MB
WS_CTX = 34 * MB
WS_WO = 50 * MB
WS_W13 = 54 * MB
WS_CS = 57 * MB
WS_W2 = 58 * MB
WS_H = 60 * MB
WS_ST = 62 * MB
WS_HH = 63 * MB
WS_FL = 69 * MB
WS_TS = 128 * MB

P = dict(x=36, ckv=38, wq=40, wuk=42, wuv=44, wo=46, bx=48, w1=50, w3=52, w2=54, out=56, dbg=58, ws=60)


def load_args(k, nwg=256):
    k(f"""
    s_cmp_ge_u32 s2, {nwg}
    s_cbranch_scc0 {k.name}_go
    s_endpgm
    {k.name}_go:
    s_load_dwordx16 s[36:51], s[0:1], 0
    s_load_dwordx8 s[52:59], s[0:1], 64
    s_load_dwordx2 s[60:61], s[0:1], 96
    v_lshrrev_b32 v1, 6, v0
    v_and_b32 v0, 63, v0
    v_readfirstlane_b32 s3, v1
    """)


def xlane_sum(k, x, t, steps):
    for st in steps:
        if st == "q1": k(f"s_nop 1\nv_add_f32_dpp v{x}, v{x}, v{x} quad_perm:[1,0,3,2] row_mask:0xf bank_mask:0xf")
        if st == "q2": k(f"s_nop 1\nv_add_f32_dpp v{x}, v{x}, v{x} quad_perm:[2,3,0,1] row_mask:0xf bank_mask:0xf")
        if st == "r4": k(f"s_nop 1\nv_add_f32_dpp v{x}, v{x}, v{x} row_ror:4 row_mask:0xf bank_mask:0xf")
        if st == "r8": k(f"s_nop 1\nv_add_f32_dpp v{x}, v{x}, v{x} row_ror:8 row_mask:0xf bank_mask:0xf")
        if st == "p16": k(f"v_mov_b32 v{t}, v{x}\ns_nop 1\nv_permlane16_swap_b32 v{x}, v{t}\nv_add_f32 v{x}, v{x}, v{t}")
        if st == "p32": k(f"v_mov_b32 v{t}, v{x}\ns_nop 1\nv_permlane32_swap_b32 v{x}, v{t}\nv_add_f32 v{x}, v{x}, v{t}")


def stamp(k, idx, on):
    if not on: return
    k(f"""
    s_memtime s[92:93]
    s_memrealtime s[94:95]
    s_waitcnt lgkmcnt(0)
    v_writelane_b32 v1, s92, {2*idx}
    v_writelane_b32 v1, s94, {2*idx+1}
    """)


def stamp_flush(k, kid, on):
    if not on: return
    srd(k, 88, P['ws'], P['ws'] + 1, WS_TS + kid * 262144, 262144)
    k(f"s_lshl_b32 s92, s2, 2\ns_add_u32 s92, s92, s3\ns_lshl_b32 s92, s92, 8\nv_lshlrev_b32 v0, 2, v0\nv_add_u32 v0, s92, v0")
    k("buffer_store_dword v1, v0, s[88:91], 0 offen")


S_FL, S_TAG, S_SPIN = 96, 100, 101
FOFF = {1: 0, 2: 0x8000, 3: 0x10000, 4: 0x18000, 5: 0x20000, 6: 0x28000}
FSTR = {1: 128, 2: 128, 3: 128, 4: 128, 5: 128, 6: 128}
EPOCH = 0x30000
SC = " sc1"


def sync_init(k, vt=2):
    srd(k, S_FL, P['ws'], P['ws'] + 1, WS_FL, 0x40000)
    k(f"v_mov_b32 v{vt}, {EPOCH}")
    k.vmop(f"buffer_load_dword v{vt+1}, v{vt}, s[{S_FL}:{S_FL+3}], 0 offen sc1", "EP")


def sync_tag(k, vt=2):
    k.vmwait("EP")
    k(f"v_readfirstlane_b32 s{S_TAG}, v{vt+1}\ns_nop 0\ns_add_u32 s{S_TAG}, s{S_TAG}, 1")


def publish(k, phase, vt):
    lab = k.label("pub")
    k(f"""
    s_cmp_eq_u32 s3, 0
    s_cbranch_scc0 {lab}
    s_mul_i32 s4, s2, {FSTR[phase]}
    s_add_u32 s4, s4, {FOFF[phase]}
    v_lshl_add_u32 v{vt}, v0, 2, s4
    v_mov_b32 v{vt+1}, s{S_TAG}
    s_mov_b64 exec, 0xffffffff
    buffer_store_dword v{vt+1}, v{vt}, s[{S_FL}:{S_FL+3}], 0 offen sc1
    s_mov_b64 exec, -1
    {lab}:
    """)


def wide_poll(vaddr, vt):
    return "\n".join(f"buffer_load_dword v{vt+j}, v{vaddr}, s[{S_FL}:{S_FL+3}], {'s%d' % (64+j) if j else '0'} offen sc1" for j in range(4))


def await_flags(k, vaddr, vt, wide=False):
    top, done = k.label("spin"), k.label("ok")
    k(f"s_mov_b32 s{S_SPIN}, 0x40000\n{top}:")
    if wide:
        k(f"""
        {wide_poll(vaddr, vt)}
        s_waitcnt vmcnt(0)
        v_xor_b32 v{vt}, s{S_TAG}, v{vt}
        v_xor_b32 v{vt+1}, s{S_TAG}, v{vt+1}
        v_xor_b32 v{vt+2}, s{S_TAG}, v{vt+2}
        v_xor_b32 v{vt+3}, s{S_TAG}, v{vt+3}
        v_or3_b32 v{vt}, v{vt}, v{vt+1}, v{vt+2}
        v_or_b32 v{vt}, v{vt}, v{vt+3}
        v_cmp_ne_u32 vcc, 0, v{vt}
        """)
    else:
        k(f"""
        buffer_load_dword v{vt}, v{vaddr}, s[{S_FL}:{S_FL+3}], 0 offen sc1
        s_waitcnt vmcnt(0)
        v_cmp_ne_u32 vcc, s{S_TAG}, v{vt}
        """)
    k(f"""
    s_nop 0
    s_cbranch_vccz {done}
    s_sleep 1
    s_sub_u32 s{S_SPIN}, s{S_SPIN}, 1
    s_cmp_lg_u32 s{S_SPIN}, 0
    s_cbranch_scc1 {top}
    {done}:
    """)
    k.vm = []


def code_warm(k, start, end, vt, dst, sp=6, back=False):
    here, skip = k.label("cw"), k.label("cs")
    k(f"""
    s_getpc_b64 s[{sp}:{sp+1}]
    {here}:
    {f"s_sub_u32 s{sp}, s{sp}, {here} - {start}" if back else f"s_add_u32 s{sp}, s{sp}, {start} - {here}"}
    {"s_subb_u32" if back else "s_addc_u32"} s{sp+1}, s{sp+1}, 0
    s_lshr_b32 s4, s2, 3
    s_lshl_b32 s4, s4, 2
    s_add_u32 s4, s4, s3
    s_lshl_b32 s4, s4, 7
    v_lshlrev_b32 v{vt}, 14, v0
    v_add_u32 v{vt}, s4, v{vt}
    v_cmp_gt_u32 vcc, {end} - {start}, v{vt}
    s_and_saveexec_b64 s[92:93], vcc
    s_cbranch_execz {skip}
    global_load_dword {dst}, v{vt}, s[{sp}:{sp+1}]
    {skip}:
    s_mov_b64 exec, s[92:93]
    """)
```

```python
from emit import *
from k1 import L, SC1
import os
NT = os.environ.get('JNT', '')

SJ1, SJ2, SD1, SD2, SCS = 8, 20, 24, 28, 88
S_STEP, S_TSTR, S_T = 40, 41, 42
JL = 131072
VJ1, VJ2, VTR, VCS = 4, 5, 6, 7


def setup(k):
    k(f"""
    s_lshl_b32 s43, s2, 2
    s_add_u32 s43, s43, s3
    s_lshr_b32 s44, s43, 3
    s_and_b32 s45, s43, 7
    s_lshl_b32 s6, s44, 15
    s_lshl_b32 s7, s45, 7
    s_add_u32 s6, s6, s7
    s_sub_u32 s7, {4*MB}, s6
    """)
    srd(k, SJ1, P['wo'], P['wo'] + 1, "s6", "s7")
    k(f"s_lshl_b32 s7, s45, 19\ns_lshl_b32 s44, s44, 10\ns_add_u32 s7, s7, s44\ns_add_u32 s7, s7, {WS_WO}")
    srd(k, SD1, P['ws'], P['ws'] + 1, "s7", 3 * 131072 + 1024)
    lw2, ldone = k.label("j2w2"), k.label("j2d")
    k(f"""
    s_cmp_ge_u32 s43, 704
    s_cbranch_scc1 {lw2}
    s_cmp_ge_u32 s43, 352
    s_cselect_b32 s44, 1, 0
    s_cselect_b32 s38, s{P['w3']}, s{P['w1']}
    s_cselect_b32 s39, s{P['w3']+1}, s{P['w1']+1}
    s_mul_i32 s45, s44, 352
    s_sub_u32 s45, s43, s45
    s_mul_i32 s6, s45, 2979
    s_lshr_b32 s6, s6, 16
    s_mul_i32 s7, s6, 22
    s_sub_u32 s7, s45, s7
    s_mul_i32 s48, s6, {32*2752}
    s_lshl_b32 s45, s7, 7
    s_add_u32 s48, s48, s45
    s_sub_u32 s49, {512*2752}, s48
    s_lshl_b32 s45, s7, 17
    s_lshl_b32 s43, s44, 14
    s_add_u32 s45, s45, s43
    s_lshl_b32 s43, s6, 10
    s_add_u32 s45, s45, s43
    s_add_u32 s45, s45, {WS_W13}
    s_mov_b32 s{S_TSTR}, 32768
    s_lshl_b32 s44, s44, 4
    s_add_u32 s44, s44, s6
    s_mul_i32 s44, s44, {1408*4}
    s_lshl_b32 s43, s7, 8
    s_add_u32 s44, s44, s43
    s_add_u32 s44, s44, {WS_CS}
    s_mov_b32 s6, 256
    s_mov_b32 s7, {3*32768+1024}
    s_mov_b32 s43, 2752
    s_branch {ldone}
    {lw2}:
    s_sub_u32 s45, s43, 704
    s_mov_b32 s38, s{P['w2']}
    s_mov_b32 s39, s{P['w2']+1}
    s_lshr_b32 s6, s45, 3
    s_and_b32 s7, s45, 7
    s_lshl_b32 s48, s6, 15
    s_lshl_b32 s43, s7, 7
    s_add_u32 s48, s48, s43
    s_sub_u32 s49, {1376*1024}, s48
    s_mul_i32 s45, s7, {4*43*1024}
    s_lshl_b32 s43, s6, 10
    s_add_u32 s45, s45, s43
    s_add_u32 s45, s45, {WS_W2}
    s_mov_b32 s{S_TSTR}, {43*1024}
    s_mov_b32 s44, {WS_CS}
    s_mov_b32 s6, 0
    s_mov_b32 s7, {3*43*1024+1024}
    s_mov_b32 s43, 1024
    {ldone}:
    """)
    srd(k, SJ2, 38, 39, "s48", "s49")
    srd(k, SD2, P['ws'], P['ws'] + 1, "s45", "s7")
    srd(k, SCS, P['ws'], P['ws'] + 1, "s44", "s6")
    k(f"""
    s_lshl_b32 s{S_STEP}, s43, 3
    s_sub_u32 s{S_STEP}, s{S_STEP}, 1024
    s_lshl_b32 s6, s3, 13
    s_add_u32 s6, s6, {JL}
    v_lshrrev_b32 v2, 3, v0
    v_and_b32 v3, 7, v0
    v_lshlrev_b32 v3, 4, v3
    v_lshl_add_u32 v{VJ1}, v2, 10, v3
    v_mul_lo_u32 v2, v2, s43
    v_add_u32 v{VJ2}, v2, v3
    v_bfe_u32 v2, v0, 2, 4
    v_lshlrev_b32 v2, 7, v2
    v_and_b32 v3, 3, v0
    v_lshl_add_u32 v2, v3, 3, v2
    v_add_u32 v{VTR}, s6, v2
    v_lshrrev_b32 v2, 4, v0
    v_lshlrev_b32 v2, 4, v2
    v_and_b32 v3, 15, v0
    v_lshl_add_u32 v{VCS}, v3, 6, v2
    """)


def issue(k):
    for n in range(2):
        sr = SJ1 if n == 0 else SJ2
        k(f"s_lshl_b32 s6, s3, 13\ns_add_u32 m0, s6, {JL + 4096*n}\ns_mov_b32 s{S_T}, 0")
        for jj in range(4):
            k.vmop(f"buffer_load_dwordx4 v{VJ1+n}, s[{sr}:{sr+3}], s{S_T} offen offset:{jj*1024}{NT} lds", ("J", n))
            if jj < 3: k(f"s_add_u32 s{S_T}, s{S_T}, {'7168' if n == 0 else 's%d' % S_STEP}")


def finish(k, JF, vl16):
    items = []
    for n in range(2):
        F = JF + 16 * n
        items.append(L(lambda n=n: k.vmwait(("J", n)), "s"))
        for t in range(4):
            for half in range(2):
                items.append(L(lambda t=t, half=half, n=n, F=F: k.lgop(
                    f"ds_read_b64_tr_b16 {v(F+4*t+2*half,2)}, v{VTR} offset:{4096*n + 32*t + 2048*half}", ("JF", n, t)), "r"))
    items += [It(f"v_mov_b32 v{8+r}, 0x3f803f80") for r in range(4)]
    for n in range(2):
        F = JF + 16 * n
        ds = SD1 if n == 0 else SD2
        items.append(It(f"s_mov_b32 s{S_T}, 0"))
        for t in range(4):
            items.append(L(lambda t=t, n=n: k.lgwait(("JF", n, t)), "s"))
            items.append(L(lambda t=t, F=F, ds=ds: k.vmop(f"buffer_store_dwordx4 {v(F+4*t,4)}, v{vl16}, s[{ds}:{ds+3}], s{S_T} offen{SC1}", "sw"), "d"))
            if n == 1: items.append(It(mfma(v(JF + 4 * t, 4), v(F + 4 * t, 4), v(8, 4), "0")))
            if t < 3: items.append(It(f"s_add_u32 s{S_T}, s{S_T}, {'131072' if n == 0 else 's%d' % S_TSTR}"))
    items.append(It("v_and_b32 v2, 15, v0"))
    for t in range(1, 4):
        items.append(It(f"v_cmp_eq_u32 vcc, {t}, v2"))
        items += [It(f"v_cndmask_b32 v{JF+r}, v{JF+r}, v{JF+4*t+r}, vcc") for r in range(4)]
    items.append(L(lambda: k.vmop(f"buffer_store_dwordx4 {v(JF,4)}, v{VCS}, s[{SCS}:{SCS+3}], 0 offen{SC1}", "sw"), "d"))
    return items
```

```python
from emit import *

V_WVO = 4
V_TRA = 8
V_WF = 32
V_ACC = 64
S_SOFF = 4
import os
SC1 = " sc1"
NT2 = os.environ.get("NT2", " nt")
WWARM = int(os.environ.get("WWARM", "0"))
WNT = os.environ.get("WNT", "")
KVSC = os.environ.get("KVSC", " sc1")
NT = os.environ.get("NT", " nt")
S_W4K = 58
WSLOT = [0, 1, 2, 3, 0, 1, 2, 3, 0, 4, 5, 6, 7, 8, 1, 2, 3, 0, 4, 5, 6, 7, 8, 9]
WISSUE = {1: [4], 2: [5], 3: [6], 4: [7], 5: [8, 9], 6: [10, 11, 14], 7: [12, 13, 15], 8: [16], 9: [17], 10: [18], 11: [19],
          12: [20], 13: [21], 14: [22], 15: [23]}


def proj_setup(k, wstride=8192):
    k(f"""
    v_lshrrev_b32 v2, 3, v0
    v_mov_b32 v3, {wstride}
    v_mul_lo_u32 v2, v2, v3
    v_lshrrev_b32 v3, 4, v0
    v_and_b32 v3, 1, v3
    v_lshlrev_b32 v3, 1, v3
    v_and_b32 v12, 7, v0
    v_xor_b32 v3, v3, v12
    v_lshl_add_u32 v2, v3, 4, v2
    s_mul_i32 s4, s3, {32*wstride}
    v_add_u32 v{V_WVO}, s4, v2
    v_xor_b32 v{V_WVO+1}, 64, v{V_WVO}
    v_add_u32 v{V_WVO+2}, {2*(8*wstride-1024)}, v{V_WVO}
    v_add_u32 v{V_WVO+3}, {3*(8*wstride-1024)}, v{V_WVO+1}
    v_add_u32 v{V_WVO+1}, {8*wstride-1024}, v{V_WVO+1}
    v_lshrrev_b32 v2, 4, v0
    v_bfe_u32 v3, v0, 2, 2
    v_lshl_add_u32 v12, v2, 3, v3
    v_lshlrev_b32 v12, 7, v12
    v_and_b32 v13, 3, v0
    v_lshl_add_u32 v12, v13, 3, v12
    v_and_b32 v2, 1, v2
    v_lshrrev_b32 v3, 1, v3
    v_lshl_add_u32 v2, v2, 1, v3
    v_lshl_add_u32 v{V_TRA}, v2, 5, v12
    """)
    for t in range(1, 4):
        k(f"v_xor_b32 v{V_TRA+t}, {32*t}, v{V_TRA}")


def seq(k, items):
    def all_():
        for it in items:
            it() if callable(it) else k(it)
    return all_


CFGS = {
    "a": dict(stores={8: 3, 9: 3, 10: 2, 11: 2, 12: 2, 13: 2, 14: 2, 15: 4, 16: 4, 17: 3, 18: 3, 19: 2}, swin={},
              xn={10: [0, 1], 11: [2, 3], 12: [4, 5], 13: [6, 7], 15: [8], 16: [9], 17: [10, 11], 18: [12, 13], 19: [14], 20: [15]}, pub2=21, poll=22),
    "b": dict(stores={8: 3, 9: 3, 10: 2, 11: 2, 12: 2, 13: 2, 14: 2, 15: 4, 16: 4, 17: 4, 18: 4}, swin={},
              xn={10: [0, 1], 11: [2, 3], 12: [4, 5], 13: [6, 7], 15: [8], 16: [9], 17: [10], 18: [11], 19: [12, 13], 20: [14, 15]}, pub2=20, poll=21),
    "c": dict(stores={8: 4, 9: 4, 10: 1, 11: 1, 12: 1, 13: 1, 14: 4, 15: 3, 16: 3, 17: 3, 18: 3, 19: 4}, swin={},
              xn={10: [0, 1], 11: [2, 3], 12: [4, 5], 13: [6, 7], 15: [8, 9], 16: [10, 11], 17: [12, 13], 18: [14, 15]}, pub2=21, poll=22),
}
CFG = CFGS[os.environ.get("CFG", "b")]


_Q = [V_ACC + 4 * i for i in range(48)]
ACC_KL, ACC_KH, ACC_VL = _Q[0:16], _Q[16:32], _Q[32:48]
ACC_VH = _Q[4:8] + _Q[12:16] + _Q[20:24] + _Q[28:32]
ACC_Q0 = _Q[0:4] + _Q[8:12] + _Q[16:20] + _Q[24:28]
ACC_Q1 = ACC_VL[1::2] + ACC_VH[1::2]


def L(f, kind):
    return It(f, kind)


def w_dma(k, step, steps, wstride=8192):
    S = steps[step]
    items = [It(f"s_add_u32 m0, s{S_W4K}, {WSLOT[step]*16384}"), It(f"s_mov_b32 s{S_SOFF}, {S['kc']*128*wstride + S['col']}")]
    for jj in range(4):
        items.append(L(lambda jj=jj: k.vmop(
            f"buffer_load_dwordx4 v{V_WVO+jj}, s[{S['srd']}:{S['srd']+3}], s{S_SOFF} offen offset:{jj*1024}{NT if step < 8 else NT2} lds", ("W", step)), "d"))
    return items


def run(k, items):
    for it in items:
        x = it.x if isinstance(it, It) else it
        x() if callable(x) else k(x)


def tr_items(k, step, t):
    base = V_WF + 16 * (t % 2)
    items = []
    delta = (WSLOT[step] // 4 - WSLOT[step - 1] // 4) * 65536 if step else 0
    if delta: items.append(It(f"v_add_u32 v{V_TRA+t}, {delta & 0xffffffff:#x}, v{V_TRA+t}"))
    for ks in range(4):
        for half in range(2):
            off = (WSLOT[step] % 4) * 16384 + ks * 4096 + half * 512
            items.append(L(lambda ks=ks, half=half, off=off: k.lgop(
                f"ds_read_b64_tr_b16 {v(base+4*ks+2*half,2)}, v{V_TRA+t} offset:{off}", ("F", step, t, ks)), "r"))
    return items


def proj_core(k, steps, res, extra_fill, res_wait, epi, hook=None, at_barrier=None):
    ns = len(steps)
    run(k, tr_items(k, 0, 0))
    pend, pst, wait_st = [], [], []
    for step, S in enumerate(steps):
        kc = S["kc"]
        acc = lambda t, b: v(S["acc"][4 * t + b], 4)
        mf, rd, ctl, mem = [], [], [], []
        for t in range(4):
            for b in range(4):
                for kk in range(4):
                    ks = kk if b % 2 == 0 else 3 - kk
                    pre = []
                    if b == 0:
                        pre.append(lambda t=t, ks=ks: k.lgwait(("F", step, t, ks)))
                    if t == 0:
                        pre += res_wait(step, b, ks)
                    wf = v(V_WF + 16 * (t % 2) + 4 * ks, 4)
                    c = "0" if (kc == 0 and kk == 0) else acc(t, b)
                    A, B = (wf, res(b, 4 * kc + ks)) if S["mode"] != "V" else (res(b, 4 * kc + ks), wf)
                    mf.append((pre, mfma(acc(t, b), A, B, c)))
            if t < 3:
                rd += window(tr_items(k, step, t + 1), 16 * t, 16 * t + 11)
            elif step + 1 < ns:
                def bar(step=step):
                    k.vmwait(("W", step + 1))
                    pre_, post_ = (at_barrier or {}).get(step, (None, None))
                    if pre_: pre_()
                    k("s_barrier")
                    if post_: post_()
                ctl += window([L(bar, "s")], 47, 47)
                rd += window(tr_items(k, step + 1, 0), 48, 59)
        streams = [rd, ctl]
        for e in extra_fill.get(step, []):
            if len(e) == 4: mem += window(e[2], e[0], e[1])
            else: streams.append(window(e[2], e[0], e[1]))
        late, early = [], []
        for w_ in WISSUE.get(step, []):
            if WSLOT[w_] == WSLOT[step - 1] or step in (5, 15): late += w_dma(k, w_, steps)
            else: early += w_dma(k, w_, steps)
        mem += window(early, 4, 46) + window(late, 48, 62)
        streams.append(mem)
        if pend:
            take, pend = pend[:64], pend[64:]
            streams.append(window(take, 8, 63))
        if pst:
            ns_ = CFG["stores"].get(step, 8)
            take, pst = pst[:ns_], pst[ns_:]
            if os.environ.get("NOST"): take = []
            streams.append(window(take, *CFG["swin"].get(step, (4, 60))))
        if not pend:
            pst += wait_st; wait_st = []
        pack(k, mf, streams)
        if hook: hook(step)
        new = epi(step)
        pend += [x for x in new if x.kind != "d"]
        wait_st += [x for x in new if x.kind == "d"]
    k("s_nop 7")
    run(k, pend)
    assert not pst and not wait_st


def kv_phase(k, ts=False):
    SC, SWK, SWV, SKO, SVO, SJ1, SJ2, SD1, SD2 = 8, 12, 16, 20, 24, 28, 32, 76, 80
    SX, SXN, SCS = 84, 88, 72
    V_CVO, V_CRA, V_SVO = 12, 16, 20
    CBASE = 65536
    J0L = 147456
    proj_setup(k)
    k(f"""
    s_and_b32 s70, s2, 7
    s_lshl_b32 s70, s70, 2
    s_bfe_u32 s71, s2, 0x20003
    s_add_u32 s70, s70, s71
    s_lshr_b32 s71, s2, 5
    s_lshl_b32 s69, s2, 2
    s_add_u32 s69, s69, s3
    s_mul_i32 s5, s3, 24576
    s_add_u32 s5, s5, {CBASE}
    v_lshrrev_b32 v2, 4, v0
    v_and_b32 v3, 15, v0
    v_xor_b32 v21, v2, v3
    v_lshlrev_b32 v21, 4, v21
    v_lshl_add_u32 v2, v2, 10, v21
    s_lshl_b32 s4, s3, 16
    v_add_u32 v{V_CVO}, s4, v2
    v_lshl_add_u32 v{V_CRA}, v3, 8, v21
    s_lshl_b32 s4, s3, 14
    v_lshlrev_b32 v2, 4, v0
    v_add_u32 v{V_SVO}, s4, v2
    """)
    for j in range(1, 4):
        k(f"v_xor_b32 v{V_CVO+j}, {64*j}, v{V_CVO}\nv_add_u32 v{V_CVO+j}, {j*3072}, v{V_CVO+j}\nv_xor_b32 v{V_CRA+j}, {64*j}, v{V_CRA}")
    for j in range(4):
        k(f"v_add_u32 v{V_CRA+j}, s5, v{V_CRA+j}")
    k(f"s_waitcnt lgkmcnt(0)\ns_lshl_b32 s{S_W4K}, s3, 12")
    k("s_lshl_b32 s4, s71, 18"); srd(k, SC, P['ckv'], P['ckv'] + 1, "s4", 262144)
    k("s_lshl_b32 s4, s70, 8\ns_sub_u32 s68, 0x400000, s4")
    srd(k, SWK, P['wuk'], P['wuk'] + 1, "s4", "s68")
    srd(k, SWV, P['wuv'], P['wuv'] + 1, "s4", "s68")

    steps = [dict(srd=SWK, col=128 * (s_ % 2), mode="K", kc=s_ // 2, acc=(ACC_KL, ACC_KH)[s_ % 2]) for s_ in range(8)]
    steps += [dict(srd=SWV, col=128 * g_, mode="V", kc=kc_, acc=(ACC_VL, ACC_VH)[g_])
              for g_, kc_ in ((0, 0), (1, 0), (0, 1), (1, 1), (0, 2), (0, 3), (1, 2), (1, 3))]

    def c_dma(j):
        kc, b = divmod(j, 4)
        items = [It(f"s_add_u32 m0, s5, {(j % 6)*4096}"), It(f"s_mov_b32 s{S_SOFF}, {b*16384 + kc*256}")]
        for jj in range(4):
            items.append(L(lambda jj=jj: k.vmop(
                f"buffer_load_dwordx4 v{V_CVO+jj}, s[{SC}:{SC+3}], s{S_SOFF} offen offset:{jj*1024} lds", ("C", j)), "d"))
        return items

    def c_read(j):
        kc, b = divmod(j, 4)
        items = [L(lambda: k.vmwait(("C", j)), "s")]
        for ks in range(4):
            items.append(L(lambda ks=ks: k.lgop(
                f"ds_read_b128 {a(64*b+16*kc+4*ks,4)}, v{V_CRA+ks} offset:{(j % 6)*4096}", ("CR", j)), "r"))
        return items

    def c_next(j):
        return [L(lambda: k.lgwait(("CR", j)), "s")] + c_dma(j + 6)

    run(k, w_dma(k, 0, steps))
    for j in range(4): run(k, c_dma(j))
    run(k, w_dma(k, 1, steps))
    for j in range(4, 6): run(k, c_dma(j))
    run(k, w_dma(k, 2, steps)); run(k, w_dma(k, 3, steps))
    sync_init(k, 30)
    if not os.environ.get("NOCW"): code_warm(k, k.name + "_c0", k.name + "_cend", 28, "v29")
    k(f"s_lshl_b32 s4, s70, 19\ns_lshl_b32 s68, s71, 16\ns_add_u32 s4, s4, s68")
    srd(k, SKO, P['ws'], P['ws'] + 1, "s4", 65536)
    k(f"s_add_u32 s4, s4, {WS_V}")
    srd(k, SVO, P['ws'], P['ws'] + 1, "s4", 65536)
    k(f"s_lshr_b32 s4, s69, 3\ns_lshl_b32 s4, s4, 14\ns_add_u32 s4, s4, {WS_XN}")
    srd(k, SXN, P['ws'], P['ws'] + 1, "s4", 16384)
    k("s_lshl_b32 s4, s69, 11"); srd(k, SX, P['x'], P['x'] + 1, "s4", 2048)
    k(f"""
    s_lshr_b32 s64, s2, 3
    s_add_u32 s64, s64, 40
    s_and_b32 s65, s2, 7
    s_lshl_b32 s66, s64, 15
    s_lshl_b32 s67, s65, 7
    s_add_u32 s66, s66, s67
    s_min_u32 s66, s66, {1376*1024}
    s_sub_u32 s68, {1376*1024}, s66
    """)
    srd(k, SJ1, P['w2'], P['w2'] + 1, "s66", "s68")
    k(f"s_mul_i32 s67, s65, {4*43*1024}\ns_lshl_b32 s64, s64, 10\ns_add_u32 s67, s67, s64\ns_add_u32 s67, s67, {WS_W2}")
    srd(k, SD1, P['ws'], P['ws'] + 1, "s67", 3 * 43 * 1024 + 1024)
    k(f"""
    s_lshl_b32 s62, s3, 8
    s_add_u32 s62, s62, s2
    v_lshrrev_b32 v2, 3, v0
    v_and_b32 v3, 7, v0
    v_lshlrev_b32 v3, 4, v3
    v_lshl_add_u32 v21, v2, 10, v3
    v_bfe_u32 v2, v0, 2, 4
    v_lshlrev_b32 v2, 7, v2
    v_and_b32 v3, 3, v0
    v_lshl_add_u32 v23, v3, 3, v2
    v_add_u32 v23, {J0L}, v23
    v_lshlrev_b32 v24, 4, v0
    v_and_b32 v26, 1, v0
    v_lshlrev_b32 v26, 10, v26
    v_lshrrev_b32 v3, 1, v0
    v_lshl_add_u32 v26, v3, 4, v26
    """)
    k(f"""
    s_cmp_ge_u32 s3, 2
    s_cselect_b32 s6, s{P['wq']}, s{P['wuv']}
    s_cselect_b32 s7, s{P['wq']+1}, s{P['wuv']+1}
    s_lshl_b32 s4, s71, 19
    s_lshl_b32 s68, s70, 8
    s_add_u32 s4, s4, s68
    s_and_b32 s68, s3, 1
    s_lshl_b32 s68, s68, 7
    s_add_u32 s4, s4, s68
    v_lshlrev_b32 v22, 13, v0
    """)
    srd(k, 32, 6, 7, "s4", 63 * 8192 + 128)
    wwarm = [L(lambda j=j: k.vmop(f"buffer_load_dword v25, v22, s[32:35], 0 offen offset:{64*j}{WNT}", "warm"), "d") for j in range(WWARM)]
    k("s_mov_b32 s64, 4096\ns_mov_b32 s65, 8192\ns_mov_b32 s66, 12288")
    stamp(k, 1, ts)
    k.vmop(f"buffer_load_dwordx4 {v(192,4)}, v26, s[{SX}:{SX+3}], 0 offen", "X")
    k.vmop(f"buffer_load_dwordx4 {v(196,4)}, v26, s[{SX}:{SX+3}], 0 offen offset:512", "X")
    for j in range(4): run(k, c_read(j))
    for j in range(4): run(k, c_next(j))
    stamp(k, 2, ts)
    k.vmwait(("W", 0))
    k("s_barrier")
    k(f"{k.name}_c0:")
    stamp(k, 3, ts)

    T = 192
    ln = []
    ln.append(L(lambda: k.vmop(f"buffer_load_dwordx4 {v(T,4)}, v26, s[{SX}:{SX+3}], 0 offen", "X"), "d"))
    ln.append(L(lambda: k.vmop(f"buffer_load_dwordx4 {v(T+4,4)}, v26, s[{SX}:{SX+3}], 0 offen offset:512", "X"), "d"))
    l2 = [L(lambda: k.vmwait("X"), "s")]
    X = T + 8
    class Rec:
        def __init__(s): s.items = []
        def __call__(s, t):
            for l_ in t.split("\n"):
                if not l_.startswith("s_nop"): s.items.append(It(l_))
    R = Rec()
    for j in range(8): R(f"v_lshlrev_b32 v{X+2*j}, 16, v{T+j}\nv_and_b32 v{X+1+2*j}, 0xffff0000, v{T+j}")
    R(f"v_add_f32 v2, v{X}, v{X+1}")
    for j in range(2, 16): R(f"v_add_f32 v2, v2, v{X+j}")
    xlane_sum(R, 2, 3, ["q2", "r4", "r8", "p16", "p32"])
    R(f"v_mul_f32 v2, 0x3b000000, v2")
    R(f"v_sub_f32 v3, v{X}, v2\nv_mul_f32 v27, v3, v3")
    for j in range(1, 16): R(f"v_sub_f32 v3, v{X+j}, v2\nv_fmac_f32 v27, v3, v3")
    xlane_sum(R, 27, 3, ["q2", "r4", "r8", "p16", "p32"])
    for t_ in ["v_mul_f32 v27, 0x3b000000, v27\nv_cvt_pk_bf16_f32 v2, v2, v27", "v_and_b32 v27, 0xffff0000, v2\nv_lshlrev_b32 v2, 16, v2",
               "v_add_f32 v27, 0x3727c5ac, v27\nv_cvt_pk_bf16_f32 v27, v27, v27", "v_lshlrev_b32 v27, 16, v27\nv_sqrt_f32 v27, v27\ns_nop 0",
               "v_cvt_pk_bf16_f32 v27, v27, v27\nv_lshlrev_b32 v27, 16, v27", "v_rcp_f32 v27, v27\ns_nop 0"]: R(t_)
    for j in range(8):
        R(f"v_sub_f32 v{X+2*j}, v{X+2*j}, v2\nv_sub_f32 v{X+2*j+1}, v{X+2*j+1}, v2")
        R(f"v_cvt_pk_bf16_f32 v{T+j}, v{X+2*j}, v{X+1+2*j}\nv_lshlrev_b32 v{X+2*j}, 16, v{T+j}")
        R(f"v_and_b32 v{X+1+2*j}, 0xffff0000, v{T+j}\nv_mul_f32 v{X+2*j}, v{X+2*j}, v27")
        R(f"v_mul_f32 v{X+2*j+1}, v{X+2*j+1}, v27\nv_cvt_pk_bf16_f32 v{T+j}, v{X+2*j}, v{X+1+2*j}")
    l2 += R.items
    XL = 155648
    R = Rec()
    R(f"s_lshl_b32 s68, s3, 5\ns_add_u32 s68, s68, {XL}\nv_and_b32 v2, 1, v0\nv_lshlrev_b32 v2, 4, v2")
    R("v_lshrrev_b32 v3, 1, v0\nv_lshl_add_u32 v2, v3, 7, v2\nv_add_u32 v2, s68, v2")
    l3 = R.items + [L(lambda j=j: k.lgop(f"ds_write_b128 v2, {v(T+4*j,4)} offset:{4096*j}", "xw"), "r") for j in range(2)]
    R = Rec()
    R(f"s_lshl_b32 s68, s3, 11\ns_add_u32 s68, s68, {XL}\nv_add_u32 v2, s68, v24")
    l4 = R.items + [L(lambda j=j: k.lgop(f"ds_read_b128 {v(T+4*j,4)}, v2 offset:{1024*j}", "xr"), "r") for j in range(2)]
    R = Rec()
    R("s_and_b32 s68, s2, 1\ns_lshl_b32 s68, s68, 7\ns_add_u32 s68, s68, s58\nv_lshrrev_b32 v2, 3, v0\nv_lshlrev_b32 v2, 8, v2")
    R("v_and_b32 v3, 7, v0\nv_lshl_add_u32 v2, v3, 4, v2\nv_add_u32 v2, s68, v2")
    l4 += R.items + [L(lambda: k.lgwait("xr"), "s")]
    l4 += [L(lambda j=j: k.vmop(f"buffer_store_dwordx4 {v(T+4*j,4)}, v2, s[{SXN}:{SXN+3}], 0 offen offset:{2048*j}{SC1}", "sj"), "d") for j in range(2)]

    def j0(part):
        def f():
            lab = k.label("j0")
            k(f"s_cmp_lt_u32 s62, 24\ns_cbranch_scc0 {lab}")
            if part == 0:
                k(f"s_mov_b32 m0, {J0L}\ns_mov_b32 s68, 0")
                for jj in range(4):
                    k(f"buffer_load_dwordx4 v21, s[{SJ1}:{SJ1+3}], s68 offen offset:{jj*1024}{NT} lds\ns_add_u32 s68, s68, 7168")
            else:
                JF = ACC_Q1
                for t in range(4):
                    for half in range(2): k(f"ds_read_b64_tr_b16 {v(JF[t]+2*half,2)}, v23 offset:{32*t + 2048*half}")
                k("s_waitcnt lgkmcnt(0)\ns_mov_b32 s68, 0")
                for t in range(4):
                    k(f"buffer_store_dwordx4 {v(JF[t],4)}, v24, s[{SD1}:{SD1+3}], s68 offen{SC1}\ns_add_u32 s68, s68, {43*1024}")
            k(f"{lab}:")
        return [L(f, "s")]

    cc = lambda j: c_read(j) + (c_next(j) if j + 6 < 16 else [])
    n3 = len(l2) // 5
    extra = {0: [(2, 46, cc(4) + cc(5), "mem"), (50, 50, [L(lambda: sync_tag(k, 30), "s")])],
             1: [(2, 46, cc(6) + cc(7), "mem"), (0, 63, l2[:2*n3])],
             2: [(2, 46, cc(8) + cc(9) + wwarm, "mem"), (0, 63, l2[2*n3:4*n3])],
             3: [(2, 30, cc(10) + cc(11)), (0, 44, l2[4*n3:]), (48, 63, l3)],
             4: [(2, 30, cc(12) + cc(13)), (48, 63, l4)],
             5: [(0, 16, cc(14) + cc(15) + [L(lambda: k.lgwait(("CR", 15)), "s")], "mem")],
             6: [(0, 0, j0(0), "mem")],
             15: [(2, 2, j0(1))]}

    def epi(step):
        S = steps[step]
        if S["kc"] != 3: return []
        A = lambda t, b: S["acc"][4 * t + b]
        g = S["col"] // 128
        items = []
        def pk(d, x, y, sr, off):
            if S["mode"] == "V":
                for r in range(4):
                    items.append(It(f"v_mul_f32 v{x+r}, 0x5f800000, v{x+r}\nv_mul_f32 v{y+r}, 0x5f800000, v{y+r}"))
            items.extend(It(t_) for t_ in [f"v_cvt_pk_bf16_f32 v{d}, v{x}, v{x+1}", f"v_cvt_pk_bf16_f32 v{d+1}, v{x+2}, v{x+3}",
                                           f"v_cvt_pk_bf16_f32 v{d+2}, v{y}, v{y+1}", f"v_cvt_pk_bf16_f32 v{d+3}, v{y+2}, v{y+3}"])
            so, im = divmod(off, 4096)
            items.append(L(lambda: k.vmop(
                f"buffer_store_dwordx4 {v(d,4)}, v{V_SVO}, s[{sr}:{sr+3}], {'0' if so == 0 else 's%d' % (63+so)} offen offset:{im}{KVSC}", "kv"), "d"))
        if S["mode"] == "K":
            for b in range(4):
                for j in range(2):
                    pk(A(2 * j, b), A(2 * j, b), A(2 * j + 1, b), SKO, b * 4096 + (2 * g + j) * 1024)
        else:
            for t in range(4):
                for j in range(2):
                    pk(A(t, 2 * j), A(t, 2 * j), A(t, 2 * j + 1), SVO, j * 8192 + (4 * g + t) * 1024)
        return items
    return steps, extra, epi
```

```python
from emit import *
import jobs, os
from k1 import seq, run, L, V_ACC, S_SOFF, S_W4K, SC1, ACC_Q0, ACC_Q1

XNSC = os.environ.get("XNSC", SC1)
NE = int(os.environ.get('NE', '30'))
CW = os.environ.get('CW', 'abg')
BIAS = 102.0
THR_BITS = (127 - 62) << 23
NEG = 0xf149f2ca
QSCALE = 0x3e0293ee
V_L16, V_DVO, V_RA = 12, 13, 14
V_T, V_PS, V_L, V_CT, V_C, V_P, V_S, V_O, V_X = 16, 20, 22, 28, 32, 48, 64, 96, 224
A_Q, A_K, A_V = 0, 64, 128
SWQ, SXN, SK, SV, SCTX = 8, 28, 12, 32, 16
S_MASK, S_RET, S_THR, S_ARM, S_CNT, S_H, S_I, S_RB, S_RD, S_WR, S_DSO = 80, 62, 64, 68, 69, 70, 71, 72, 76, 77, 78
S_NWR, S_PC, S_EV = 79, 68, 59
SM0 = 8
CARRY = 29
FULL = "FFFF"
LASTQ = 2


class Job:
    def __init__(s, q, modes, par, first=False):
        s.q, s.modes, s.par, s.first = q, modes, par, first
        s.S, s.P, s.ps = V_S + 16 * par, V_P + 8 * par, V_PS + par


class Att:
    def __init__(s, k):
        s.k = k
        s.par = 0
        s.stubs = []
        s.pubs = []
        s.slow = set()
        s.tmp = 0

    def qk_block(s, J, kwait):
        k = s.k
        mf = []
        for kvb in range(4):
            m = J.modes[kvb]
            if m == "E": continue
            for ds in range(4):
                pre = []
                if kwait: pre.append(lambda kvb=kvb, ds=ds: k.lgwait(("Kf", 4 * kvb + ds)))
                c = v(J.S + 4 * kvb, 4)
                if ds == 0:
                    c = "0" if J.first else v(V_C + 4 * J.q, 4)
                    if m == "T":
                        pre.append(f"v_mov_b32 v3, {NEG}")
                        for r in range(4):
                            src = "0" if J.first else f"v{V_C+4*J.q+r}"
                            pre.append(f"v_cndmask_b32 v{V_CT+r}, v3, {src}, s[{S_MASK+2*r}:{S_MASK+2*r+1}]")
                        c = v(V_CT, 4)
                mf.append((pre, mfma(v(J.S + 4 * kvb, 4), a(A_K + 16 * kvb + 4 * ds, 4), a(A_Q + 16 * J.q + 4 * ds, 4), c)))
        return mf

    def pv_block(s, J, vwait):
        k = s.k
        mf = []
        kss = [ks for ks in range(2) if J.modes[2 * ks] != "E"]
        for dt in range(8):
            for ks in kss:
                pre = [lambda ks=ks, dt=dt: k.lgwait(("Vf", 2 * dt + ks))] if vwait else []
                o = v(V_O + 32 * J.q + 4 * dt, 4)
                mf.append((pre, mfma(o, a(A_V + 32 * ks + 4 * dt, 4), v(J.P + 4 * ks, 4), "0" if J.first and ks == 0 else o)))
        return mf

    def sm_items(s, J, a0=None):
        items = []
        live = [e for e in range(16) if J.modes[e // 4] != "E"]
        for e in range(16):
            if e not in live: items.append(f"v_mov_b32 v{J.S+e}, {NEG}")
        for kvb in range(4):
            if J.modes[kvb] == "E" and J.modes[kvb & 2] != "E":
                items.append(f"v_mov_b32 v{J.P+2*kvb}, 0\nv_mov_b32 v{J.P+2*kvb+1}, 0")
        t = lambda e: V_T + e % 4
        n = len(live)
        if J.first:
            mx, C = 26, V_C + 4 * J.q
            head = [f"v_max3_f32 v{mx}, v{J.S}, v{J.S+1}, v{J.S+2}"]
            head += [f"v_max3_f32 v{mx}, v{mx}, v{J.S+e}, v{J.S+e+1}" for e in range(3, n - 1, 2)]
            head += [f"v_max_f32 v{mx}, v{mx}, v{J.S+n-1}"]
            for sw in (16, 32):
                head += [f"v_mov_b32 v27, v{mx}", f"v_permlane{sw}_swap_b32 v{mx}, v27", f"v_max_f32 v{mx}, v{mx}, v27"]
            head += [f"v_sub_f32 v{C+r}, 0xc2cc0000, v{mx}" for r in range(4)]
            head += [f"v_add_f32 v{J.S+e}, v{J.S+e}, v{C}" for e in range(n)]
            items += [It(h_, lo=a0 + n + 3) for h_ in head]
        for e in range(n + 1):
            if e < n: items.append(It(f"v_exp_f32 v{t(e)}, v{J.S+e}", lo=None if a0 is None else a0 + 4 * (e // 4) + 7))
            p = e - 1
            if p == 1: items.append(f"v_add_f32 v{J.ps}, v{t(0)}, v{t(1)}")
            elif p > 1: items.append(f"v_add_f32 v{J.ps}, v{J.ps}, v{t(p)}")
            if p >= 1 and p % 2 == 1: items.append(f"v_cvt_pk_bf16_f32 v{J.P+p//2}, v{t(p-1)}, v{t(p)}")
        return [x if isinstance(x, It) else It(x) for x in items]

    def check_items(s, J):
        k = s.k
        out, back = k.label("so"), k.label("sb")
        s.stubs.append((out, back, J.q, J.par))
        s.slow.add((J.q, J.par))
        a1 = f"v_cmp_nge_f32 vcc, s{S_THR}, v{J.ps}"
        a2 = f"s_cbranch_vccnz {out}\n{back}:\nv_add_f32 v{V_L+J.q}, v{V_L+J.q}, v{J.ps}"
        return a1, a2

    def kv_reads(s, which):
        k = s.k
        items = []
        for i in range(16):
            if which == "K":
                items.append(lambda i=i: k.lgop(f"ds_read_b128 {a(A_K+4*i,4)}, v{V_RA} offset:{16384+1024*i}", ("Kf", i)))
            else:
                dt, ks = divmod(i, 2)
                items.append(lambda i=i, dt=dt, ks=ks: k.lgop(
                    f"ds_read_b128 {a(A_V+32*ks+4*dt,4)}, v{V_RA} offset:{8192*ks+1024*dt}", ("Vf", i)))
        return items

    def dma_items(s, gen):
        k = s.k
        items = []
        for part, sr in enumerate((SV, SK)):
            for jj in range(4):
                pre = []
                if jj == 0:
                    pre = [f"s_mov_b32 m0, s{S_WR}"] if part == 0 else [f"s_add_u32 m0, s{S_WR}, 16384", f"s_add_u32 s{S_DSO}, s{S_DSO}, 16384"]
                for x in pre: items.append(It(x))
                items.append(It(lambda sr=sr, jj=jj: k.vmop(
                    f"buffer_load_dwordx4 v{V_DVO}, s[{sr}:{sr+3}], s{S_DSO} offen offset:{jj*1024}{SC1} lds", ("D", gen)), "d"))
        return items

    def period(s, specs, dma=True, nextk=True, extra=None, last=False, first=False, drain=False):
        k = s.k
        jobs = []
        for q, m in specs:
            jobs.append(Job(q, m, s.par, first)); s.par ^= 1
        mf, pos, pvpos = [], [], []
        V, ctl = [], []
        prev, prev_sm, pstart = s.pend, s.psm, 0
        for j, J in enumerate(jobs):
            a0 = len(mf)
            blk = s.qk_block(J, kwait=True)
            mf += blk
            L = len(blk)
            if prev is not None and prev.first and j > 0:
                V += window(prev_sm + [It(f"v_mov_b32 v{V_L+prev.q}, v{prev.ps}")], pstart, a0 + L - 2)
            elif prev is not None:
                e = a0 + min(SM0 - 1, L - 3)
                V += window(prev_sm, pstart, e)
                c1, c2 = s.check_items(prev)
                V += window([c1], e, e + 1)
                ctl += window([c2], min(e + 3, a0 + L - 1), min(e + 4, a0 + L - 1))
            if j == 0:
                bpos = a0 + L - 1
                def bar():
                    k.vmdrain() if drain else k.vmwait(("D", 0))
                    k("s_barrier")
                    if first: stamp(k, 24, getattr(s, "ts", False))
                    if not first:
                        out, back = k.label("fo"), k.label("fb")
                        s.pubs.append((out, back))
                        k(f"s_sub_u32 s{S_PC}, s{S_PC}, 1\ns_cbranch_scc1 {out}\n{back}:")
                ctl += window([It(bar, "s")], bpos, bpos)
            b0 = len(mf)
            blk = s.pv_block(prev, vwait=True) if prev is not None else []
            mf += blk
            pvpos.append((b0, len(blk)))
            pos.append((a0, L))
            pstart = a0 + (L if first else min(SM0, L))
            prev, prev_sm = J, s.sm_items(J, a0)
        n = len(mf)
        if last:
            V += window(prev_sm, pstart, n - 1); prev_sm = []
        else:
            take = len(prev_sm) - (39 - CARRY) if prev.modes == FULL else (len(prev_sm) * (n - pstart)) // (n - pstart + SM0)
            V += window(prev_sm[:take], pstart, n - 1)
            prev_sm = [it.x for it in prev_sm[take:]]
        streams = [V, ctl]
        b0, Lb = pvpos[0]
        vend = pvpos[1][0] - 4 if len(pvpos) > 1 else n - 1
        rv = [It(x, "r", lo=b0 + max(0, min(i, Lb - 1))) for i, x in enumerate(s.kv_reads("V"))]
        streams.append(window(rv, b0, vend))
        if nextk:
            a0, L = pos[-1]
            rk = [It(x, "r", lo=a0 + min(i, L - 1)) for i, x in enumerate(s.kv_reads("K"))]
            streams.append(window(rk, a0, n - 2))
        if dma:
            streams.append(window(s.dma_items(3), bpos + 1, n - 6))
        for lo, hi, items in (extra(pos, pvpos, n) if extra else []):
            streams.append(window(items, lo, hi))
        if not last:
            streams.append(window([f"s_add_u32 s{S_NWR}, s{S_RD}, s{S_W4K}", f"s_add_u32 s{S_RD}, s{S_RD}, 32768",
                                   f"s_and_b32 s{S_RD}, s{S_RD}, 0x1ffff"], n - 12, n - 5))
            streams.append(window([f"s_mov_b32 s{S_WR}, s{S_NWR}", f"v_add_u32 v{V_RA}, s{S_RD}, v{V_L16}"], n - 1, n - 1))
        pack(k, mf, streams)
        k.vm = [("D", t[1] - 1) if isinstance(t, tuple) and t[0] == "D" else t for t in k.vm]
        s.pend, s.psm = Job(prev.q, prev.modes, prev.par), prev_sm

    def loop(s, specs, count_expr):
        k = s.k
        top, end = k.label("lp"), k.label("le")
        k(count_expr)
        k(f"s_cmp_eq_u32 s{S_CNT}, 0\ns_cbranch_scc1 {end}\n{top}:")
        got = [t for t in k.vm if isinstance(t, tuple) and t[0] == "D"]
        k.vm = [("D", g) for g in range(3) for _ in range(8)]
        assert got == k.vm[len(k.vm) - len(got):]
        for i in range(16): k.lgt[("Kf", i)] = k.clock - 32 + 2 * i
        vm0, lg0, par0, psm0, pq = list(k.vm), list(k.lg), s.par, list(s.psm), (s.pend.q, s.pend.par, s.pend.modes)
        s.period(specs)
        k(f"s_sub_u32 s{S_CNT}, s{S_CNT}, 1\ns_cmp_lg_u32 s{S_CNT}, 0\ns_cbranch_scc1 {top}\n{end}:")
        assert k.vm == vm0, (k.vm, vm0)
        assert k.lg == lg0[len(lg0) - len(k.lg):], (k.lg, lg0)
        k.lg = lg0
        assert s.par == par0 and s.psm == psm0 and (s.pend.q, s.pend.par, s.pend.modes) == pq

    def drain(s):
        k = s.k
        J = s.pend
        c1, c2 = s.check_items(J)
        k(c1); k("s_nop 1"); k(c2)
        k.stream(s.pv_block(J, vwait=True), {})

    def out_items(s, q):
        k = s.k
        l, t, O = V_L + q, V_X, V_O + 32 * q
        items = [f"v_mov_b32 v{t}, v{l}\ns_nop 1\nv_permlane16_swap_b32 v{l}, v{t}\nv_add_f32 v{l}, v{l}, v{t}",
                 f"v_mov_b32 v{t}, v{l}\ns_nop 1\nv_permlane32_swap_b32 v{l}, v{t}\nv_add_f32 v{l}, v{l}, v{t}",
                 f"v_rcp_f32 v{l}, v{l}\ns_nop 0\nv_mul_f32 v{l}, 0x1f800000, v{l}"]
        for ds in range(4):
            x = O + 8 * ds
            for r in range(0, 8, 2):
                items.append(f"v_mul_f32 v{x+r}, v{x+r}, v{l}\nv_mul_f32 v{x+r+1}, v{x+r+1}, v{l}")
                items.append(f"v_cvt_pk_bf16_f32 v{x+r//2}, v{x+r}, v{x+r+1}")
            items.append(It(lambda x=x, ds=ds: k.vmop(
                f"buffer_store_dwordx4 {v(x,4)}, v{V_L16}, s[{SCTX}:{SCTX+3}], s{S_RB+q} offen offset:{ds*1024}{SC1}", "st"), "d"))
        return [x if isinstance(x, It) else It(x) for x in items]

    def emit_slow(s):
        k = s.k
        for out, back, q, par in s.stubs:
            k(f"{out}:\ns_call_b64 s[{S_RET}:{S_RET+1}], {k.name}_slow{q}{par}\ns_branch {back}")
        for out, back in s.pubs:
            k(f"{out}:\ns_call_b64 s[{S_RET}:{S_RET+1}], {k.name}_evt\ns_branch {back}")
        e2, e3, e4, ret = (k.label(x) for x in ("e2", "e3", "e4", "er"))
        vt, va = V_X + 24, V_X + 30
        k(f"{k.name}_evt:\ns_add_u32 s{S_EV}, s{S_EV}, 1\ns_cmp_eq_u32 s{S_EV}, 1\ns_cbranch_scc0 {e2}")
        publish(k, 6, V_X + 28)
        srd(k, 24, P['ws'], P['ws'] + 1, WS_WO, 4 * MB)
        k(f"""
        s_lshr_b32 s4, s2, 3
        s_lshl_b32 s4, s4, 2
        s_add_u32 s4, s4, s3
        s_lshl_b32 s4, s4, 15
        v_lshlrev_b32 v{va}, 7, v0
        v_add_u32 v{va}, s4, v{va}
        s_lshl_b32 s4, s{S_I}, 1
        s_sub_u32 s4, 13, s4
        s_max_i32 s{S_PC}, s4, 1
        s_branch {ret}
        {e2}:
        s_cmp_eq_u32 s{S_EV}, 2
        s_cbranch_scc0 {e3}
        {wide_poll(15, vt)}
        s_mov_b32 s{S_PC}, 2
        """)
        if "b" in CW: code_warm(k, k.name + "_cB", k.name + "_cend", V_X + 28, "a255", back=True)
        k(f"""
        s_branch {ret}
        {e3}:
        s_cmp_eq_u32 s{S_EV}, 3
        s_cbranch_scc0 {e4}
        """)
        for j in range(4): k(f"v_xor_b32 v{vt+j}, s{S_TAG}, v{vt+j}")
        k(f"v_or3_b32 v{vt}, v{vt}, v{vt+1}, v{vt+2}\nv_or_b32 v{vt}, v{vt}, v{vt+3}\nv_cmp_ne_u32 vcc, 0, v{vt}\ns_nop 0\ns_cbranch_vccz {e4}")
        await_flags(k, 15, vt, True)
        k(f"""
        {e4}:
        s_cmp_eq_u32 s{S_EV}, 10
        s_cselect_b32 s{S_PC}, 64, 0
        s_xor_b32 s4, s{S_EV}, s3
        s_bitcmp1_b32 s4, 0
        {"s_cbranch_scc1" if os.environ.get("WOWARM") else "s_branch"} {ret}
        buffer_load_dword v{va+1}, v{va}, s[24:27], 0 offen sc1
        v_add_u32 v{va}, 8192, v{va}
        {ret}:
        s_setpc_b64 s[{S_RET}:{S_RET+1}]
        """)
        for q, par in sorted(s.slow):
            J = Job(q, FULL, par)
            mx, t, al = V_X + 1, V_X + 2, V_X + 3
            nf, join = k.label("nf"), k.label("sj")
            k(f"{k.name}_slow{q}{par}:\nv_max3_f32 v{mx}, v{J.S}, v{J.S+1}, v{J.S+2}")
            for e in range(3, 15, 2): k(f"v_max3_f32 v{mx}, v{mx}, v{J.S+e}, v{J.S+e+1}")
            k(f"""
            v_max_f32 v{mx}, v{mx}, v{J.S+15}
            v_mov_b32 v{t}, v{mx}
            s_nop 1
            v_permlane16_swap_b32 v{mx}, v{t}
            v_max_f32 v{mx}, v{mx}, v{t}
            v_mov_b32 v{t}, v{mx}
            s_nop 1
            v_permlane32_swap_b32 v{mx}, v{t}
            v_max_f32 v{mx}, v{mx}, v{t}
            v_add_f32 v{mx}, 0x42cc0000, v{mx}
            v_max_f32 v{mx}, 0, v{mx}
            v_sub_f32 v{al}, 0, v{mx}
            v_exp_f32 v{al}, v{al}
            s_nop 0
            v_mul_f32 v{V_L+q}, v{V_L+q}, v{al}
            """)
            for r in range(32): k(f"v_mul_f32 v{V_O+32*q+r}, v{V_O+32*q+r}, v{al}")
            for r in range(4): k(f"v_sub_f32 v{V_C+4*q+r}, v{V_C+4*q+r}, v{mx}")
            for e in range(16): k(f"v_sub_f32 v{V_X+4+e}, v{J.S+e}, v{mx}")
            for e in range(16): k(f"v_exp_f32 v{V_X+4+e}, v{V_X+4+e}")
            k(f"v_add_f32 v{J.ps}, v{V_X+4}, v{V_X+5}")
            for e in range(2, 16): k(f"v_add_f32 v{J.ps}, v{J.ps}, v{V_X+4+e}")
            for e in range(8): k(f"v_cvt_pk_bf16_f32 v{J.P+e}, v{V_X+4+2*e}, v{V_X+5+2*e}")
            k(f"s_nop 1\ns_setpc_b64 s[{S_RET}:{S_RET+1}]")


def diag_modes(blk):
    return "".join("F" if b < blk else "T" if b == blk else "E" for b in range(4))


QACC = (ACC_Q0, ACC_Q1)


def q_phase(k, A, base):
    steps = [dict(srd=SWQ, col=128 * (s_ % 2), mode="Q", kc=s_ // 2, acc=QACC[s_ % 2]) for s_ in range(8)]
    setup = f"""
    v_lshlrev_b32 v{V_L16}, 4, v0
    v_add_u32 v{V_DVO}, s{S_W4K}, v{V_L16}
    s_lshl_b32 s5, s{S_I}, 3
    s_sub_u32 s6, 120, s5
    s_sub_u32 s7, 7, s3
    s_add_u32 s{S_RB}, s5, s3
    s_add_u32 s{S_RB+1}, s5, s7
    s_add_u32 s{S_RB+2}, s6, s3
    s_add_u32 s{S_RB+3}, s6, s7
    s_lshl_b32 s{S_RB}, s{S_RB}, 14
    s_lshl_b32 s{S_RB+1}, s{S_RB+1}, 14
    s_lshl_b32 s{S_RB+2}, s{S_RB+2}, 14
    s_lshl_b32 s{S_RB+3}, s{S_RB+3}, 14
    """
    su = [It(l_.strip()) for l_ in setup.strip().split("\n")]

    class Rec:
        def __init__(s): s.items = []
        def __call__(s, t): s.items.append(It(t, "s"))
    R = Rec()
    R(f"s_lshl_b32 s5, s{S_H}, 8\ns_sub_u32 s6, 0x400000, s5")
    srd(R, SWQ, P['wq'], P['wq'] + 1, "s5", "s6")
    if os.environ.get("XNSRC"): srd(R, SXN, P['ckv'], P['ckv'] + 1, 0, 2 * MB)
    else: srd(R, SXN, P['ws'], P['ws'] + 1, WS_XN, 2 * MB)
    R(f"s_lshl_b32 s5, s{S_H}, 19\ns_sub_u32 s6, 16, s{S_I}\ns_lshl_b32 s6, s6, 15")
    srd(R, SK, P['ws'], P['ws'] + 1, "s5", "s6")
    R(f"s_add_u32 s5, s5, {WS_V}")
    srd(R, SV, P['ws'], P['ws'] + 1, "s5", "s6")
    su += R.items

    def xn_items(kc, bs):
        out = []
        for b in bs:
            out.append(It(f"s_add_u32 s5, s{S_RB+b}, {kc*4096}"))
            for ks in range(4):
                out.append(L(lambda b=b, ks=ks: k.vmop(
                    f"buffer_load_dwordx4 {a(64*b+16*kc+4*ks,4)}, v{V_L16}, s[{SXN}:{SXN+3}], s5 offen offset:{ks*1024}{XNSC}", ("XN", kc, b)), "d"))
        return out

    def k0_dma():
        return [It(f"s_add_u32 m0, s{S_W4K}, 16384")] + [L(lambda jj=jj: k.vmop(
            f"buffer_load_dwordx4 v{V_DVO}, s[{SK}:{SK+3}], 0 offen offset:{jj*1024}{SC1} lds", "K0"), "d") for jj in range(4)]

    def pair_dma(p):
        return [It(f"s_add_u32 s{S_WR}, s{S_W4K}, {((p+1) % 4)*32768}"), It(f"s_mov_b32 s{S_DSO}, {p*16384}")] + A.dma_items(p)

    def epi(step):
        if step < base + 6: return []
        g = QACC[(step - base) % 2]
        items = []
        for b in range(4):
            for j in range(2):
                x, y = g[8 * j + b], g[8 * j + 4 + b]
                for z in (x, y):
                    for r in range(0, 4, 2):
                        items.append(It(f"v_mul_f32 v{z+r}, {QSCALE}, v{z+r}\nv_mul_f32 v{z+r+1}, {QSCALE}, v{z+r+1}"))
                        items.append(It(f"v_cvt_pk_bf16_f32 v{x + (2 if z == y else 0) + r//2}, v{z+r}, v{z+r+1}"))
        return items
    return steps, su, xn_items, k0_dma, pair_dma, epi


def att_phase(k, A, pair_dma, ts, st0, before_b, early):
    k.vmwait("K0")
    k("s_barrier")
    k(f"v_mov_b32 v{V_RA}, v{V_L16}")
    for it in A.kv_reads("K"): it()
    jobs.issue(k)
    k(f"s_mov_b32 s{S_DSO}, {3*16384}\ns_mov_b32 s{S_WR}, s{S_W4K}\ns_mov_b32 s{S_RD}, 32768")
    k(f"v_add_u32 v{V_RA}, 32768, v{V_L16}")
    k(f"s_lshl_b32 s4, s{S_H}, 12\ns_add_u32 s4, s4, {WS_CTX}")
    srd(k, SCTX, P['ws'], P['ws'] + 1, "s4", 16 * MB)
    k("v_lshrrev_b32 v2, 4, v0\nv_lshlrev_b32 v2, 2, v2\nv_and_b32 v3, 15, v0\nv_sub_u32 v2, v3, v2")
    for r in range(4): k(f"v_cmp_le_i32 s[{S_MASK+2*r}:{S_MASK+2*r+1}], {r}, v2")
    for b in range(4):
        for g in range(2):
            for j in range(2):
                x = QACC[g][8 * j + b]
                for r in range(4): k(f"v_accvgpr_write_b32 a{A_Q+16*b+4*(2*g+j)+r}, v{x+r}")
    k(f"s_mov_b32 s{S_THR}, {THR_BITS}\ns_mov_b32 s{S_PC}, 3\ns_mov_b32 s{S_EV}, 0\ns_mov_b32 s65, 8192\ns_mov_b32 s66, 16384\ns_mov_b32 s67, 24576")
    k(f"v_lshlrev_b32 v15, 7, v0\nv_add_u32 v15, {FOFF[6]}, v15")
    for q in range(4): k(f"s_lshl_b32 s{S_RB+q}, s{S_RB+q}, 3")
    A.pend, A.psm = None, []
    if "a" in CW: code_warm(k, k.name + "_cA", k.name + "_cend", 2, "a255")
    k(f"{k.name}_cA:")
    stamp(k, st0, ts)
    shared = [(0, FULL), (1, FULL), (3, FULL), (2, FULL)]
    single = [(3, FULL), (2, FULL)]
    canon = lambda: [t for t in k.vm if isinstance(t, tuple) and t[0] == "D"]
    snap = lambda: (list(k.vm), list(k.lg), A.par, A.pend, list(A.psm))
    key = lambda: (canon(), list(k.lg), A.par, A.pend.q, A.pend.par, list(A.psm))

    def restore(st):
        k.vm, k.lg, A.par, A.pend, A.psm = list(st[0]), list(st[1]), st[2], st[3], list(st[4])

    def first_period(m0):
        zero = [f"v_mov_b32 v{V_O+32*LASTQ+r}, 0" for r in range(32)] + [f"v_mov_b32 v{V_L+LASTQ}, 0"]
        A.period([(0, m0)] + shared[1:], first=True,
                 extra=lambda pos, pv, n: [(0, 14 if m0 == FULL else n - 1, zero), (n - 60, n - 1, jobs.finish(k, V_X, V_L16))])

    def variants(fn, tail=None):
        labs = [k.label(f"w{w}") for w in range(4)]
        join = k.label("vj")
        st = snap()
        res_ = None
        for w in range(4):
            k(f"{labs[w]}:")
            if w < 3: k(f"s_cmp_eq_u32 s3, {w}\ns_cbranch_scc0 {labs[w+1]}")
            restore(st)
            fn(w)
            k.vm = canon()
            assert res_ is None or res_ == key(), (res_, key())
            res_ = key()
            if tail: k(f"s_branch {tail[w]}")
            elif w < 3: k(f"s_branch {join}")
        k(f"{join}:")
        return res_

    a2 = [k.label(f"a2w{w}") for w in range(4)]
    gen_ = k.label("gen")
    st0_ = snap()
    k(f"s_cmp_eq_u32 s{S_I}, 0\ns_cbranch_scc0 {gen_}")
    key0 = variants(lambda w: first_period(diag_modes(w)), tail=a2)
    k(f"{gen_}:")
    restore(st0_)
    A.ts = ts
    first_period(FULL)
    A.ts = False
    stamp(k, 25, ts)
    A.loop(shared, f"s_lshl_b32 s{S_CNT}, s{S_I}, 1\ns_sub_u32 s{S_CNT}, s{S_CNT}, 1")
    stamp(k, st0 + 1, ts)

    def diagA(w):
        A.period([(0, diag_modes(w)), (1, FULL), (3, FULL), (2, FULL)])
        k.vm = canon()
        full = [("D", g) for g in range(3) for _ in range(8)]
        assert key()[1:] == key0[1:] and key0[0] == full[-len(key0[0]):] and k.vm == full[-len(k.vm):]
        k.vm = full
        k(f"{a2[w]}:")
        A.period([(1, diag_modes(3 - w)), (3, FULL), (2, FULL)],
                 extra=lambda pos, pv, n: [(2, pv[1][0] - 1, A.out_items(0)), (pv[2][0] - 4, n - 1, A.out_items(1))])
    variants(diagA)
    stamp(k, st0 + 2, ts)
    A.loop(single, f"s_lshl_b32 s4, s{S_I}, 2\ns_sub_u32 s{S_CNT}, 28, s4")
    stamp(k, st0 + 3, ts)

    k(f"{k.name}_cB:")
    before_b()

    def diagB(w):
        A.period([(3, FULL), (2, diag_modes(w))], dma=False, drain=True, extra=lambda pos, pv, n: [(pv[0][0], n - 1, early()[:NE])])
        rest = early()[NE:] if NE else []
        A.period([(3, diag_modes(3 - w))], dma=False, nextk=False, last=True, extra=lambda pos, pv, n: [(0, n - 1, rest)])
        o2 = A.out_items(2)
        J = A.pend
        c1, c2 = A.check_items(J)
        k(c1); run(k, o2[:3]); k("s_nop 0"); k(c2)
        blk = A.pv_block(J, vwait=True)
        pack(k, blk, [window(o2[3:], 0, len(blk) - 1)])
        run(k, A.out_items(3))
        k.lg = []
        A.psm = []
    if not NE: k(f"s_mov_b32 s5, s{S_WR}\ns_mov_b32 s38, s5")
    variants(diagB)
```

```python
from emit import *
from k1 import run, L, SC1
from k35 import reduce_write

SA, SB, SR, SO, SS = 8, 20, 28, 24, 88
X0 = 244
S_R, S_C, S_P0, S_WB, S_T, S_L0, S_L1, S_L2 = 40, 41, 42, 43, 44, 45, 48, 49
V_AO, V_LA = 4, 8
V_TMP, V_ACC = 16, 64
NA_AG, NA_LDS, NA_VG, NA_AG2 = 4, 6, 8, 6


def setup(k):
    k(f"""
    s_and_b32 s{S_R}, s2, 7
    s_lshl_b32 s{S_R}, s{S_R}, 2
    s_bfe_u32 s5, s2, 0x20003
    s_add_u32 s{S_R}, s{S_R}, s5
    s_lshr_b32 s{S_C}, s2, 5
    s_lshl_b32 s{S_P0}, s{S_C}, 12
    s_lshl_b32 s{S_WB}, s3, 15
    """)
    k(f"s_lshl_b32 s5, s{S_C}, 19\ns_add_u32 s5, s5, {WS_WO}"); srd(k, SA, P['ws'], P['ws'] + 1, "s5", 4 * 131072)
    k(f"s_lshl_b32 s5, s{S_R}, 19\ns_add_u32 s5, s5, {WS_CTX}"); srd(k, SB, P['ws'], P['ws'] + 1, "s5", 4 * 131072)
    k(f"v_lshlrev_b32 v{V_AO}, 4, v0")
    for t in range(1, 4): k(f"v_add_u32 v{V_AO+t}, {t*131072}, v{V_AO}")
    k(f"""
    s_lshr_b32 s5, s{S_R}, 1
    s_sub_u32 s6, 15, s5
    s_min_u32 s5, s5, s6
    s_lshl_b32 s5, s5, 5
    s_lshl_b32 s6, s3, 1
    s_add_u32 s5, s5, s6
    s_lshl_b32 s5, s5, 7
    s_add_u32 s5, s5, {FOFF[3]}
    v_bfe_u32 v11, v0, 2, 1
    v_and_b32 v2, 3, v0
    v_lshl_add_u32 v11, v2, 3, v11
    v_lshlrev_b32 v11, 7, v11
    v_add_u32 v11, s5, v11
    s_lshl_b32 s5, s{S_R}, 2
    s_add_u32 s5, s5, s3
    s_lshl_b32 s5, s5, 14
    s_lshl_b32 s6, s{S_C}, 7
    s_add_u32 s6, s6, s5
    """)
    srd(k, SR, P['x'], P['x'] + 1, "s6", 15 * 1024 + 128)


def soff(b):
    return It(f"s_add_u32 s{S_T}, s{S_P0}, {b*2048}\ns_and_b32 s{S_T}, s{S_T}, 0x7fff\ns_add_u32 s{S_T}, s{S_T}, s{S_WB}", "s")


def a_reg(p, t):
    if p < NA_AG: return a(192 + 16 * p + 4 * t, 4)
    p -= NA_AG + NA_LDS
    if p < 0: return None
    if p < NA_VG: return v(128 + 16 * p + 4 * t, 4)
    p -= NA_VG
    if p < NA_AG2: return a(96 + 16 * p + 4 * t, 4)
    return "ring"


def a_loads(k, b):
    items = [soff(b)]
    for ks in range(2):
        for t in range(4):
            items.append(L(lambda ks=ks, t=t: k.vmop(
                f"buffer_load_dwordx4 {a_reg(2*b+ks, t)}, v{V_AO+t}, s[{SA}:{SA+3}], s{S_T} offen offset:{ks*1024}{SC1}", ("A", b)), "d"))
    return items


def early_items(k, s_wr, s_w4k):
    items = a_loads(k, 0) + a_loads(k, 1)
    items += [It(f"s_lshl_b32 s{S_L0}, s3, 13\ns_add_u32 s{S_L0}, s{S_L0}, 131072", "s"),
              It(f"s_add_u32 s{S_L1}, s{s_wr}, s{s_w4k}", "s"),
              It(f"s_sub_u32 s{S_L2}, s{S_L1}, 32768\ns_and_b32 s{S_L2}, s{S_L2}, 0x1ffff", "s")]
    for j, sl in enumerate((S_L0, S_L1, S_L2)):
        items.append(It(f"v_add_u32 v{V_LA+j}, s{sl}, v{V_AO}"))
        items.append(soff(2 + j))
        for t in range(4):
            items.append(It(f"s_add_u32 m0, s{sl}, {t*2048}"))
            for ks in range(2):
                items.append(L(lambda ks=ks, t=t, j=j: k.vmop(
                    f"buffer_load_dwordx4 v{V_AO+t}, s[{SA}:{SA+3}], s{S_T} offen offset:{ks*1024}{SC1} lds", ("A", 2 + j)), "d"))
    return items


def o_phase(k, ts, st0):
    X = 56
    k(f"""
    v_lshrrev_b32 v12, 3, v0
    v_and_b32 v13, 7, v0
    v_lshlrev_b32 v13, 4, v13
    v_lshl_add_u32 v12, v12, 10, v13
    v_and_b32 v13, 15, v0
    v_lshlrev_b32 v13, 7, v13
    v_lshrrev_b32 v14, 4, v0
    v_lshl_add_u32 v13, v14, 3, v13
    v_add_u32 v15, s{S_L0}, v13
    """)
    xdma = [It(f"s_mov_b32 m0, s{S_L0}"), It(f"s_mov_b32 s4, 7168")]
    xdma += [L(lambda j=j: k.vmop(f"buffer_load_dwordx4 v12, s[{SR}:{SR+3}], {'s4' if j else '0'} offen offset:{1024*j} lds", "X"), "d") for j in range(2)]
    xrd = [L(lambda: k.vmwait("X"), "s")] + [L(lambda nt=nt: k.lgop(f"ds_read_b64 {v(X+2*nt,2)}, v15 offset:{32*nt}", "XR"), "r") for nt in range(4)]
    for b in range(5, 12): run(k, a_loads(k, b))
    k(f"s_lshl_b32 s5, s{S_R}, 2\ns_add_u32 s5, s5, s3\ns_lshl_b32 s5, s5, 14")
    k(f"s_lshl_b32 s4, s{S_C}, 11\ns_add_u32 s4, s4, s5\ns_add_u32 s4, s4, {WS_H}"); srd(k, SO, P['ws'], P['ws'] + 1, "s4", 2048)
    k(f"s_lshr_b32 s5, s5, 4\ns_lshl_b32 s4, s{S_C}, 7\ns_add_u32 s4, s4, s5\ns_add_u32 s4, s4, {WS_ST}"); srd(k, SS, P['ws'], P['ws'] + 1, "s4", 128)
    await_flags(k, 11, 2)
    stamp(k, st0, ts)

    free = [4 * q for q in range(24)]
    Bq, Aq = {}, {}

    def stream(b):
        items = [soff(b)]
        Bq[b] = [free.pop(0) for _ in range(8)]
        if a_reg(2 * b, 0) == "ring": Aq[b] = [free.pop(0) for _ in range(8)]
        for ks in range(2):
            for t in range(4):
                items.append(L(lambda ks=ks, t=t: k.vmop(
                    f"buffer_load_dwordx4 {a(Bq[b][4*ks+t],4)}, v{V_AO+t}, s[{SB}:{SB+3}], s{S_T} offen offset:{ks*1024}{SC1}", ("B", b)), "d"))
                if b in Aq:
                    items.append(L(lambda ks=ks, t=t: k.vmop(
                        f"buffer_load_dwordx4 {a(Aq[b][4*ks+t],4)}, v{V_AO+t}, s[{SA}:{SA+3}], s{S_T} offen offset:{ks*1024}{SC1}", ("B", b)), "d"))
        return items

    def lds_reads(b):
        j = b - 2
        return [L(lambda ks=ks, t=t: k.lgop(
            f"ds_read_b128 {v(V_TMP + 4*((8*j + 2*t + ks) % 10), 4)}, v{V_LA+j} offset:{t*2048+ks*1024}", ("AL", b, t)), "r")
            for t in range(4) for ks in range(2)]
    tmpq = lambda b, ks, t: v(V_TMP + 4 * ((8 * (b - 2) + 2 * t + ks) % 10), 4)

    nxt = 0
    while len(free) >= 8: run(k, stream(nxt)); nxt += 1
    for b in range(16):
        mf, streams, rd = [], [], []
        lds = 2 <= b <= 4
        for nt in range(4):
            for rr in range(4):
                rb = rr if nt % 2 == 0 else 3 - rr
                for kk in range(2):
                    ks = kk if rr % 2 == 0 else 1 - kk
                    pre = [lambda: k.vmwait([("B", b), ("A", b)])] if not mf else []
                    if lds and rr == 0 and kk == 0: pre.append(lambda nt=nt: k.lgwait(("AL", b, nt)))
                    A = tmpq(b, ks, nt) if lds else a(Aq[b][4 * ks + nt], 4) if b in Aq else a_reg(2 * b + ks, nt)
                    acc = v(V_ACC + 16 * rb + 4 * nt, 4)
                    mf.append((pre, mfma(acc, A, a(Bq[b][4 * ks + rb], 4), "0" if b == 0 and kk == 0 else acc)))
        if 2 <= b + 1 <= 4:
            its = lds_reads(b + 1)
            if b == 1:
                rd = [L(lambda: k.vmwait(("A", 4)), "s")] + its
                streams.append(window(rd, 2, 24))
            else:
                streams.append(window(its[:2], 0, 6) + [x for j_ in range(3) for x in window(its[2 + 2*j_:4 + 2*j_], 8 * j_ + 8, 8 * j_ + 14)])
        its = []
        while nxt < 16 and len(free) >= (16 if a_reg(2 * nxt, 0) == "ring" else 8):
            its += stream(nxt); nxt += 1
        if b == 4: its = xdma + its
        streams.append(window(its, 0, 30))
        if b == 12: streams.append(window(xrd, 0, 12))
        pack(k, mf, streams)
        free += Bq[b] + Aq.get(b, [])
        for p in (2 * b, 2 * b + 1):
            r_ = a_reg(p, 0)
            if r_ and r_.startswith("a["): free += [int(r_[2:r_.index(":")]) + 4 * t for t in range(4)]
    stamp(k, st0 + 1, ts)
    k("s_barrier")
    reduce_write(k, 256, 1024)
    V_T = 128
    k(f"s_lshl_b32 s4, s3, 12\nv_add_u32 v13, s4, v{V_AO}\nv_lshlrev_b32 v14, 3, v0")
    for w in range(4):
        for nt in range(4):
            k.lgop(f"ds_read_b128 {v(V_T+16*w+4*nt,4)}, v13 offset:{w*16384+nt*1024}", ("rr", w))
    k.lgwait(("rr", 1))
    for r in range(16): k(f"v_add_f32 v{V_T+r}, v{V_T+r}, v{V_T+16+r}")
    k.lgwait(("rr", 3))
    for r in range(16): k(f"v_add_f32 v{V_T+32+r}, v{V_T+32+r}, v{V_T+48+r}")
    for r in range(16): k(f"v_add_f32 v{V_T+r}, v{V_T+r}, v{V_T+32+r}")
    H, U = 24, V_T + 16
    for j in range(8):
        k(f"""
        v_cvt_pk_bf16_f32 v{H+j}, v{V_T+2*j}, v{V_T+2*j+1}
        v_lshlrev_b32 v{U+2*j}, 16, v{X+j}
        v_and_b32 v{U+2*j+1}, 0xffff0000, v{X+j}
        v_lshlrev_b32 v{V_T+2*j}, 16, v{H+j}
        v_and_b32 v{V_T+2*j+1}, 0xffff0000, v{H+j}
        v_add_f32 v{U+2*j}, v{U+2*j}, v{V_T+2*j}
        v_add_f32 v{U+2*j+1}, v{U+2*j+1}, v{V_T+2*j+1}
        v_cvt_pk_bf16_f32 v{H+j}, v{U+2*j}, v{U+2*j+1}
        """)
    for j in range(2):
        k.vmop(f"buffer_store_dwordx4 {v(H+4*j,4)}, v{V_AO}, s[{SO}:{SO+3}], 0 offen offset:{1024*j}{SC1}", "st")
    for j in range(8):
        k(f"v_lshlrev_b32 v{U+2*j}, 16, v{H+j}\nv_and_b32 v{U+2*j+1}, 0xffff0000, v{H+j}")
    k(f"v_add_f32 v32, v{U}, v{U+1}")
    for j in range(2, 16): k(f"v_add_f32 v32, v32, v{U+j}")
    xlane_sum(k, 32, 3, ["p16", "p32"])
    k(f"v_mul_f32 v32, 0x3c800000, v32\nv_sub_f32 v3, v{U}, v32\nv_mul_f32 v33, v3, v3")
    for j in range(1, 16): k(f"v_sub_f32 v3, v{U+j}, v32\nv_fmac_f32 v33, v3, v3")
    xlane_sum(k, 33, 3, ["p16", "p32"])
    k.vmop(f"buffer_store_dwordx2 v[32:33], v14, s[{SS}:{SS+3}], 0 offen{SC1}", "st")
```

```python
from emit import *
from k1 import seq, SC1

V_L16, V_WVO, V_HO, V_RA = 2, 4, 7, 9
V_MB, V_RS, V_S2, V_NL = 12, 14, 16, 18
V_WF, V_ACC, V_T = 32, 64, 160
SW, SH, SST, SCS, SO = 8, 12, 16, 20, 24
S_RB, S_PS, S_SO, S_LW = 70, 71, 72, 73
SLOT, NSL, CSL = 24576, 6, 147456


def body(k, np_, ts, st0, extra=None):
    nt = 4 * np_
    tw = np_
    k(f"s_mul_i32 s4, s3, {tw*16384}\nv_add_u32 v{V_WVO}, s4, v{V_L16}\nv_add_u32 v{V_WVO+1}, {16384-2048}, v{V_WVO}\n"
      f"v_add_u32 v{V_WVO+2}, {2*16384}, v{V_WVO}\ns_mul_i32 s{S_LW}, s3, {tw*2048}")

    def wdma(s_):
        items = [It(f"s_add_u32 m0, s{S_LW}, {(s_ % NSL)*SLOT}"), It(f"s_mov_b32 s{S_SO}, {s_*2048}")]
        for tt in range(tw):
            if tt == 2: items.append(It(f"s_add_u32 m0, s{S_LW}, {(s_ % NSL)*SLOT + 4096}"))
            for kk in range(2):
                items.append(It(lambda tt=tt, kk=kk: k.vmop(
                    f"buffer_load_dwordx4 v{V_WVO+tt}, s[{SW}:{SW+3}], s{S_SO} offen offset:{(tt % 2)*2048 + kk*1024}{SC1} lds", ("W", s_)), "d"))
        return items

    def hload(s_):
        items = [It(f"s_mov_b32 s5, {s_*2048}")]
        for rb in range(2):
            for kk in range(2):
                items.append(It(lambda rb=rb, kk=kk: k.vmop(
                    f"buffer_load_dwordx4 {a(16*s_+8*rb+4*kk,4)}, v{V_HO+rb}, s[{SH}:{SH+3}], s5 offen offset:{kk*1024}{SC1}", ("H", s_)), "d"))
        return items
    run = lambda items: seq(k, [it.x for it in items])()
    k(f"""
    s_lshl_b32 s4, s3, 6
    v_add_u32 v10, s4, v0
    v_bfe_u32 v11, v10, 4, 1
    v_mul_u32_u24 v11, {16*5632}, v11
    v_lshrrev_b32 v3, 5, v10
    v_lshlrev_b32 v3, 6, v3
    v_add_u32 v11, v11, v3
    v_and_b32 v3, 15, v0
    v_lshl_add_u32 v11, v3, 2, v11
    v_lshlrev_b32 v10, 2, v10
    s_mov_b32 s4, 0
    """)
    for ks in range(16):
        k.vmop(f"buffer_load_dword v{V_T+8+ks}, v11, s[{SCS}:{SCS+3}], s4 offen{SC1}", "CS")
        if ks < 15: k("s_add_u32 s4, s4, 5632")
    for s_ in range(6): run(wdma(s_))
    k.vmwait("CS")
    for ks in range(1, 16): k(f"v_add_f32 v{V_T+8}, v{V_T+8}, v{V_T+8+ks}")
    k(f"v_add_u32 v10, {CSL}, v10")
    k.lgop(f"ds_write_b32 v10, v{V_T+8}", "csw")
    k(f"v_and_b32 v20, 15, v0\nv_lshlrev_b32 v20, 3, v20\nv_lshrrev_b32 v3, 4, v0\nv_lshl_add_u32 v20, v3, 8, v20")
    k(f"v_lshlrev_b32 v21, 4, v3\nv_add_u32 v21, {CSL}, v21")
    k.lgdrain()
    k(f"v_add_u32 v{V_RA+1}, {2*SLOT}, v{V_L16}\nv_add_u32 v{V_RA+2}, {4*SLOT}, v{V_L16}")
    await_flags(k, 22, 23)
    stamp(k, st0, ts)
    run(hload(0))
    for rb in range(2):
        for c in range(2):
            k.vmop(f"buffer_load_dwordx2 {v(V_T+4*rb+2*c,2)}, v20, s[{SST}:{SST+3}], 0 offen offset:{1024*rb+128*c}{SC1}", "ST")
    for s_ in range(1, 3): run(hload(s_))
    k("s_barrier")

    class Rec:
        def __init__(s): s.items = []
        def __call__(s, t):
            s.items += [It(l_.strip()) for l_ in t.strip().split("\n") if not l_.strip().startswith("s_nop")]
    R = Rec()
    for rb in range(2):
        T = V_T + 4 * rb
        m, q = V_MB + rb, V_RS + rb
        R(f"v_add_f32 v{m}, v{T}, v{T+2}")
        xlane_sum(R, m, 3, ["p16", "p32"])
        R(f"""
        v_mul_f32 v{m}, 0x3e000000, v{m}
        v_sub_f32 v{T}, v{T}, v{m}
        v_sub_f32 v{T+2}, v{T+2}, v{m}
        v_mul_f32 v{T}, v{T}, v{T}
        v_fmac_f32 v{T}, v{T+2}, v{T+2}
        v_add_f32 v{q}, v{T+1}, v{T+3}
        v_fmac_f32 v{q}, 0x42800000, v{T}
        """)
        xlane_sum(R, q, 3, ["p16", "p32"])
        R(f"""
        v_mul_f32 v{q}, 0x3b000000, v{q}
        v_cvt_pk_bf16_f32 v{m}, v{m}, v{q}
        v_and_b32 v{q}, 0xffff0000, v{m}
        v_lshlrev_b32 v{m}, 16, v{m}
        v_xor_b32 v{m}, 0x80000000, v{m}
        v_add_f32 v{q}, 0x3727c5ac, v{q}
        v_cvt_pk_bf16_f32 v{q}, v{q}, v{q}
        v_lshlrev_b32 v{q}, 16, v{q}
        v_sqrt_f32 v{q}, v{q}
        v_cvt_pk_bf16_f32 v{q}, v{q}, v{q}
        v_lshlrev_b32 v{q}, 16, v{q}
        v_mul_f32 v{V_S2+rb}, v{q}, v{q}
        v_rcp_f32 v{q}, v{q}
        v_mul_f32 v{V_NL+rb}, 0xbfb8aa3b, v{q}
        """)
    stats = [It(lambda: k.vmwait("ST"), "s")] + R.items
    CS = V_T + 16
    csrd = [It(lambda t=t: k.lgop(f"ds_read_b128 {v(CS+4*t,4)}, v21 offset:{64*t}", ("cs", t)), "r") for t in range(nt)]

    def wreads(s_, t):
        return [It(lambda kk=kk: k.lgop(
            f"ds_read_b128 {v(V_WF+8*(t % 4)+4*kk,4)}, v{V_RA + (s_ % NSL)//2} offset:{((s_ % NSL) % 2)*SLOT + t*2048 + kk*1024}", ("F", s_, t)), "r") for kk in range(2)]
    for t in range(3): run(wreads(0, t))
    acc = lambda t, rb: V_ACC + 8 * t + 4 * rb
    stamp(k, st0 + 1, ts)
    for s_ in range(8):
        mf, rd = [], []
        for t in range(nt):
            for rr in range(2):
                rb = rr if t % 2 == 0 else 1 - rr
                for q_, kk in enumerate((0, 1) if rr == 0 else (1, 0)):
                    pre = []
                    if len(mf) == 0: pre.append(lambda: k.vmwait(("H", s_)))
                    if rr == 0 and kk == 0: pre.append(lambda t=t: k.lgwait(("F", s_, t)))
                    mf.append((pre, mfma(v(acc(t, rb), 4), v(V_WF + 8 * (t % 4) + 4 * kk, 4), a(16 * s_ + 8 * rb + 4 * kk, 4),
                                         "0" if s_ == 0 and q_ == 0 else v(acc(t, rb), 4))))
            t3 = t + 3
            if t3 < nt: its = wreads(s_, t3)
            elif s_ < 7: its = wreads(s_ + 1, t3 - nt)
            else: its = []
            rd += window(its, 4 * t, 4 * t + 3)
        streams = [rd]
        bpos = 4 * (nt - 3) - 1
        if s_ in (1, 2, 5, 6):
            streams.append(window([It(lambda: (k.vmwait(("W", s_ + 1)), k("s_barrier")), "s")], bpos, bpos))
        if s_ in (1, 2):
            streams.append(window(wdma(s_ + 5), bpos + 1, len(mf) - 1))
        n_ = len(mf)
        if s_ < 3: streams.append(window(hload(3 + 2 * s_) + (hload(4 + 2 * s_) if s_ < 2 else []), 1, bpos - 1))
        if s_ == 1: streams.append(window(stats[:len(stats) // 2], 0, n_ - 1))
        if s_ == 2: streams.append(window(stats[len(stats) // 2:], 0, n_ - 1))
        if s_ == 3: streams.append(window(csrd, 0, n_ - 1))
        if s_ in (4, 5):
            fx = []
            for t in range(nt // 2 * (s_ - 4), nt // 2 * (s_ - 3)):
                its = [It(lambda t=t: k.lgwait(("cs", t)), "s")]
                its += [It(f"v_fmac_f32 v{acc(t, rb)+r}, v{CS+4*t+r}, v{V_MB+rb}") for rb in range(2) for r in range(4)]
                lo = 4 * t + 8 + 2 * (t - nt // 2 * (s_ - 4)) if s_ == 4 else 4 * (t - nt // 2)
                fx += window(its, lo, lo + 5 if s_ == 4 else lo + 3)
            streams.append(fx)
        if extra and s_ in extra: streams.append(window(extra[s_](), 2, n_ - 4))
        pack(k, mf, streams)
    stamp(k, st0 + 2, ts)
    k("s_nop 7")
    for pp in range(np_):
        for rb in range(2):
            T = V_T + 16 * ((2 * pp + rb) % 2)
            el = [(acc(4 * pp + 2 * f, rb) + r, acc(4 * pp + 2 * f + 1, rb) + r) for f in range(2) for r in range(4)]
            for j, (g, u) in enumerate(el): k(f"v_mul_f32 v{T+j}, v{g}, v{V_NL+rb}")
            for j, (g, u) in enumerate(el): k(f"v_exp_f32 v{T+j}, v{T+j}\nv_mul_f32 v{g}, v{g}, v{u}")
            for j, (g, u) in enumerate(el): k(f"v_fma_f32 v{T+j}, v{T+j}, v{V_S2+rb}, v{V_S2+rb}")
            for j, (g, u) in enumerate(el): k(f"v_rcp_f32 v{T+j}, v{T+j}")
            for j, (g, u) in enumerate(el): k(f"v_mul_f32 v{g}, v{g}, v{T+j}")
            for j in range(4): k(f"v_cvt_pk_bf16_f32 v{T+8+j}, v{el[2*j][0]}, v{el[2*j+1][0]}")
            k(f"s_mov_b32 s4, {rb*43*1024}")
            k.vmop(f"buffer_store_dwordx4 {v(T+8,4)}, v{V_L16}, s[{SO}:{SO+3}], s4 offen offset:{pp*1024}{SC1}", "st")


def g_phase(k, ts, st0, extra=None):
    k(f"""
    s_and_b32 s{S_RB}, s2, 3
    s_lshl_b32 s{S_RB}, s{S_RB}, 2
    s_bfe_u32 s4, s2, 0x20003
    s_add_u32 s{S_RB}, s{S_RB}, s4
    s_lshl_b32 s{S_RB}, s{S_RB}, 3
    s_lshl_b32 s4, s3, 1
    s_add_u32 s{S_RB}, s{S_RB}, s4
    s_lshr_b32 s6, s2, 5
    s_and_b32 s4, s2, 4
    s_lshl_b32 s4, s4, 1
    s_add_u32 s6, s6, s4
    s_mul_i32 s4, s6, 3
    s_lshl_b32 s5, s6, 1
    s_add_u32 s5, s5, 11
    s_min_u32 s{S_PS}, s4, s5
    v_lshlrev_b32 v{V_L16}, 4, v0
    v_mov_b32 v{V_HO}, v{V_L16}
    v_add_u32 v{V_HO+1}, 16384, v{V_L16}
    v_mov_b32 v{V_RA}, v{V_L16}
    s_lshr_b32 s5, s{S_RB}, 2
    s_lshr_b32 s4, s5, 2
    s_and_b32 s5, s5, 3
    s_lshl_b32 s5, s5, 3
    s_add_u32 s4, s4, s5
    s_lshl_b32 s4, s4, 7
    s_add_u32 s4, s4, {FOFF[4]}
    v_and_b32 v22, 7, v0
    v_lshlrev_b32 v22, 12, v22
    v_add_u32 v22, s4, v22
    """)
    k(f"s_lshl_b32 s4, s{S_PS}, 16\ns_add_u32 s4, s4, {WS_W13}"); srd(k, SW, P['ws'], P['ws'] + 1, "s4", 12 * 16384)
    k(f"s_lshl_b32 s4, s{S_RB}, 14\ns_add_u32 s4, s4, {WS_H}"); srd(k, SH, P['ws'], P['ws'] + 1, "s4", 32768)
    k(f"s_lshl_b32 s4, s{S_RB}, 10\ns_add_u32 s4, s4, {WS_ST}"); srd(k, SST, P['ws'], P['ws'] + 1, "s4", 2048)
    k(f"s_lshl_b32 s4, s{S_PS}, 7\ns_sub_u32 s5, {32*5632}, s4\ns_add_u32 s4, s4, {WS_CS}"); srd(k, SCS, P['ws'], P['ws'] + 1, "s4", "s5")
    k(f"s_mul_i32 s4, s{S_RB}, {43*1024}\ns_lshl_b32 s5, s{S_PS}, 10\ns_add_u32 s4, s4, s5\ns_add_u32 s4, s4, {WS_HH}")
    srd(k, SO, P['ws'], P['ws'] + 1, "s4", 43 * 1024 + 3072)
    two, join = k.label("two"), k.label("gj")
    k(f"s_cmp_ge_u32 s6, 11\ns_cbranch_scc1 {two}")
    for np_ in (3, 2):
        k.vm, k.lg = [], []
        body(k, np_, ts, st0, extra)
        k(f"s_branch {join}\n{two}:" if np_ == 3 else f"{join}:")
```

```python
from emit import *
from k1 import run, L, SC1
from k3 import S_R, S_C
import k35

SA, SB, SR, SO = 32, 28, 80, 84
S_KO, S_KA, S_T = 42, 43, 44
V_AO, V_ACC, V_T, X = 24, 128, 192, 16
NK = 43
a_reg = lambda p, t: a(128 + 16 * p + 4 * t, 4) if p < 8 else a(16 * (p - 8) + 4 * t, 4)
b_reg = lambda p, t: v(32 + 16 * p + 4 * t, 4) if p < 6 else a(48 + 16 * (p - 6) + 4 * t, 4)


def setup(k):
    k(f"s_mul_i32 s4, s{S_C}, {4*NK*1024}\ns_add_u32 s4, s4, {WS_W2}"); srd(k, SA, P['ws'], P['ws'] + 1, "s4", 4 * NK * 1024)
    k(f"s_mul_i32 s4, s{S_R}, {4*NK*1024}\ns_add_u32 s4, s4, {WS_HH}"); srd(k, SB, P['ws'], P['ws'] + 1, "s4", 4 * NK * 1024)
    k(f"s_lshl_b32 s5, s{S_R}, 2\ns_add_u32 s5, s5, s3\ns_lshl_b32 s5, s5, 14\ns_lshl_b32 s4, s{S_C}, 7\ns_add_u32 s4, s4, s5")
    srd(k, SO, P['out'], P['out'] + 1, "s4", 15 * 1024 + 128)
    k(f"s_lshl_b32 s4, s{S_C}, 11\ns_add_u32 s4, s4, s5\ns_add_u32 s4, s4, {WS_H}"); srd(k, SR, P['ws'], P['ws'] + 1, "s4", 2048)
    k(f"s_mul_i32 s{S_KO}, s3, {11*1024}\ns_add_u32 s{S_KA}, s{S_KO}, 8192\ns_cmp_eq_u32 s3, 3\ns_cselect_b32 s{S_KA}, 0x7000000, s{S_KA}")
    k(f"v_lshlrev_b32 v{V_AO}, 4, v0")
    for t in range(1, 4): k(f"v_add_u32 v{V_AO+t}, {t*NK*1024}, v{V_AO}")


def loads(k, op, ps):
    items = []
    for p in ps:
        if p % 4 == 0 or p == ps[0]: items.append(It(f"s_add_u32 s{S_T}, s{S_KO}, {(p // 4)*4096}"))
        so = S_KA if (op == "A" and p == 10) else S_T
        for t in range(4):
            reg, sr = (a_reg(p, t), SA) if op == "A" else (b_reg(p, t), SB)
            items.append(L(lambda reg=reg, sr=sr, so=so, p=p, t=t: k.vmop(
                f"buffer_load_dwordx4 {reg}, v{V_AO+t}, s[{sr}:{sr+3}], s{so} offen offset:{(p % 4)*1024}{SC1}", (op, p)), "d"))
    return items


def g_extra(k):
    return {3 + j: (lambda j=j: loads(k, "A", [2 * j, 2 * j + 1])) for j in range(4)}


def d_phase(k, ts, st0):
    GS, TS = 320, 1344
    run(k, loads(k, "A", [8, 9, 10]))
    k(f"""
    v_lshrrev_b32 v12, 2, v0
    v_and_b32 v13, 1, v0
    v_bfe_u32 v14, v0, 1, 1
    v_lshlrev_b32 v15, 4, v12
    v_lshl_add_u32 v3, v13, 9, v15
    v_lshl_add_u32 v3, v14, 3, v3
    v_mul_u32_u24 v13, {2*GS}, v13
    v_mul_u32_u24 v14, {TS}, v14
    v_add3_u32 v15, v15, v13, v14
    s_mul_i32 s4, s3, {4*TS}
    v_add_u32 v15, s4, v15
    v_and_b32 v13, 3, v0
    v_lshlrev_b32 v13, 4, v13
    v_lshl_add_u32 v14, v12, 10, v13
    s_lshr_b32 s4, s{S_R}, 3
    s_bfe_u32 s5, s{S_R}, 0x20001
    s_lshl_b32 s5, s5, 3
    s_add_u32 s4, s4, s5
    s_lshl_b32 s4, s4, 7
    s_add_u32 s4, s4, {FOFF[5]}
    v_and_b32 v12, 7, v0
    v_lshlrev_b32 v12, 12, v12
    v_and_b32 v13, 8, v0
    v_lshl_add_u32 v12, v13, 6, v12
    v_add_u32 v12, s4, v12
    """)
    for hh in range(2):
        for gg in range(2):
            k.vmop(f"buffer_load_dwordx2 {v(X+4*hh+2*gg,2)}, v3, s[{SR}:{SR+3}], 0 offen offset:{1024*hh+256*gg}{SC1}", "X")
    await_flags(k, 12, 13)
    stamp(k, st0, ts)
    run(k, loads(k, "B", list(range(11))))
    for b in range(6):
        ps = [p for p in (2 * b, 2 * b + 1) if p < 11]
        mf = []
        for nt in range(4):
            for rr in range(4):
                rb = rr if nt % 2 == 0 else 3 - rr
                for j, p in enumerate(ps if rr % 2 == 0 else ps[::-1]):
                    pre = [lambda: k.vmwait([("B", x) for x in ps])] if not mf else []
                    acc = v(V_ACC + 16 * rb + 4 * nt, 4)
                    mf.append((pre, mfma(acc, a_reg(p, nt), b_reg(p, rb), "0" if b == 0 and j == 0 else acc)))
        pack(k, mf, [])
    stamp(k, st0 + 1, ts)
    k35.V_ACC = V_ACC
    k35.reduce_write(k, GS, TS)
    k35.V_ACC = 64
    k(f"v_add_u32 v13, {32*TS}, v15")
    for w in range(4):
        for hh in range(2):
            for gg in range(2):
                k.lgop(f"ds_read_b128 {v(V_T+16*w+8*hh+4*gg,4)}, v{15 if w < 2 else 13} offset:{(w % 2)*16*TS+2*hh*TS+gg*GS}", ("rr", w))
    k.lgwait(("rr", 1))
    for r in range(16): k(f"v_add_f32 v{V_T+r}, v{V_T+r}, v{V_T+16+r}")
    k.lgwait(("rr", 3))
    for r in range(16): k(f"v_add_f32 v{V_T+32+r}, v{V_T+32+r}, v{V_T+48+r}")
    for r in range(16): k(f"v_add_f32 v{V_T+r}, v{V_T+r}, v{V_T+32+r}")
    H, U = 32, V_T + 16
    for j in range(8):
        k(f"""
        v_cvt_pk_bf16_f32 v{H+j}, v{V_T+2*j}, v{V_T+2*j+1}
        v_lshlrev_b32 v{U+2*j}, 16, v{X+j}
        v_and_b32 v{U+2*j+1}, 0xffff0000, v{X+j}
        v_lshlrev_b32 v{V_T+2*j}, 16, v{H+j}
        v_and_b32 v{V_T+2*j+1}, 0xffff0000, v{H+j}
        v_add_f32 v{U+2*j}, v{U+2*j}, v{V_T+2*j}
        v_add_f32 v{U+2*j+1}, v{U+2*j+1}, v{V_T+2*j+1}
        v_cvt_pk_bf16_f32 v{H+j}, v{U+2*j}, v{U+2*j+1}
        """)
        if j % 4 == 3:
            k.vmop(f"buffer_store_dwordx4 {v(H+j-3,4)}, v14, s[{SO}:{SO+3}], 0 offen offset:{64*(j//4)}", "st")
```

```python
import sys, os, hazard
from emit import *
import k1, k2, k3, k35, k4, k5, jobs
from k1 import run, L

NAME = "sequential_preLN__compressed_kv_cla__glu_gated_swiglu__prompt_kernel"
NSTAMP = 24
PUB2 = k1.CFG['pub2']


def poll_pair(k, vaddr, vt, stubs, wide):
    out, back = k.label("po"), k.label("pb")
    stubs.append((out, back, vaddr, vt, wide))
    tag = ("PL", out)
    if wide: issue = [L(lambda x=x: k.vmop(x, tag), "d") for x in wide_poll(vaddr, vt).split("\n")]
    else: issue = [L(lambda: k.vmop(f"buffer_load_dword v{vt}, v{vaddr}, s[{S_FL}:{S_FL+3}], 0 offen sc1", tag), "d")]
    chk = [L(lambda: k.vmwait(tag), "s")]
    if wide:
        chk += [It(f"v_xor_b32 v{vt+j}, s{S_TAG}, v{vt+j}") for j in range(4)]
        chk += [It(f"v_or3_b32 v{vt}, v{vt}, v{vt+1}, v{vt+2}"), It(f"v_or_b32 v{vt}, v{vt}, v{vt+3}")]
        chk += [It(f"v_cmp_ne_u32 vcc, 0, v{vt}\ns_nop 0\ns_cbranch_vccnz {out}\n{back}:")]
    else:
        chk += [It(f"v_cmp_ne_u32 vcc, s{S_TAG}, v{vt}"), It("s_nop 0"), It(f"s_cbranch_vccnz {out}\n{back}:")]
    return issue, chk


def build(ts=False, name=NAME, steps_ts=False, light=False):
    k = K(name, 256, 256, 163840, vgpr=256, agpr=256)
    load_args(k)
    stamp(k, 0, ts or light)
    stubs = []
    steps, extra, epi_kv = k1.kv_phase(k, ts)
    A = k2.Att(k)
    qsteps, qsetup, xn_items, k0_dma, pair_dma, epi_q = k2.q_phase(k, A, 16)
    steps += qsteps
    f1 = f"""
    s_lshl_b32 s67, s71, 4
    v_mov_b32 v16, s67
    s_sub_u32 s67, 240, s67
    v_mov_b32 v17, s67
    v_and_b32 v18, 16, v0
    v_cmp_eq_u32 vcc, 0, v18
    v_cndmask_b32 v16, v17, v16, vcc
    v_and_b32 v18, 15, v0
    v_add_u32 v18, v16, v18
    v_lshlrev_b32 v18, 7, v18
    s_and_b32 s67, s2, 31
    s_lshl_b32 s67, s67, 7
    s_add_u32 s67, s67, {FOFF[2]}
    v_and_b32 v19, 7, v0
    v_lshlrev_b32 v19, 12, v19
    v_add_u32 v19, s67, v19
    s_bfe_u32 s6, s2, 0x20003
    s_sub_u32 s7, 7, s6
    s_bitcmp1_b32 s3, 0\ns_cselect_b32 s6, s7, s6
    s_lshl_b32 s7, s71, 3
    s_sub_u32 s67, 120, s7
    s_bitcmp1_b32 s3, 1\ns_cselect_b32 s7, s67, s7
    s_add_u32 s6, s6, s7
    s_lshl_b32 s6, s6, 14
    v_lshlrev_b32 v17, 6, v0
    v_add_u32 v17, s6, v17""".replace("\ns_cselect", " @s_cselect")
    fsetup = [It(l_.strip().replace(" @", "\n")) for l_ in f1.strip().split("\n")]
    warm = [L(lambda j_=j_: k.vmop(f"buffer_load_dword v16, v17, s[{k2.SXN}:{k2.SXN+3}], {'0' if j_ == 0 else 's%d' % (63+j_)} offen sc1", "warm"), "d") for j_ in range(4)]
    p1, c1 = poll_pair(k, 18, 16, stubs, False)
    p2, c2 = poll_pair(k, 19, 16, stubs, False)
    extra[6].append((4, 63, fsetup))
    extra[7] = [(0, 63, qsetup)]
    extra[9] = [(0, 0, p1, "mem"), (44, 62, c1)]
    if os.environ.get("WARM"):
        for j_ in range(4): extra.setdefault(9 + j_ // 2, []).append((10 + 24 * (j_ % 2), 10 + 24 * (j_ % 2), [warm[j_]], "mem"))
    for st_, gs in k1.CFG["xn"].items():
        its = []
        for g_ in gs: its += xn_items(g_ // 4, (g_ % 4,))
        if not os.environ.get("NOXN"): extra.setdefault(st_, []).append((4, 46 if st_ <= 15 else 60, its, "mem"))
    extra[21] = [(4, 4, [L(lambda: jobs.setup(k), "s")])]
    if k1.CFG["poll"] == 21:
        extra[21] += [(44, 44, p2, "mem")]
        extra[22] = [(24, 30, c2, "mem"), (31, 62, k0_dma() + pair_dma(0), "mem")]
        extra[23] = [(0, 60, pair_dma(1) + pair_dma(2), "mem")]
    else:
        extra[22] = [(50, 50, p2, "mem")]
        extra[23] = [(24, 30, c2, "mem"), (31, 63, k0_dma() + pair_dma(0) + pair_dma(1) + pair_dma(2), "mem")]
    res = lambda b, ks: a(64 * b + 4 * ks, 4)

    def res_wait(step, b, ks):
        if step < 8: return [lambda: k.lgwait(("CR", 4 * (step // 2) + b))]
        if step >= 16: return [lambda: k.vmwait(("XN", (step - 16) // 2, b))]
        return []
    at_bar = {3: (lambda: k.lgwait(("CR", 11)), None), 4: (lambda: k.lgwait("xw"), None), 6: (lambda: k.vmwait("sj"), lambda: publish(k, 1, 2)), PUB2: (lambda: k.vmwait("kv"), lambda: publish(k, 2, 2))}
    hook = lambda st: stamp(k, {7: 4, 15: 5, 21: 6, 23: 7}[st], ts) if st in (7, 15, 21, 23) else None
    if steps_ts:
        hook = lambda st: stamp(k, 4 + st, True)
        ts = False
    k1.proj_core(k, steps, res, extra, res_wait, lambda st: epi_kv(st) if st < 16 else epi_q(st), hook=hook, at_barrier=at_bar)
    k2.att_phase(k, A, pair_dma, ts, 8, lambda: k3.setup(k), lambda: k3.early_items(k, k2.S_WR, k1.S_W4K))
    stamp(k, 12, ts)

    def hand_off(phase):
        k.vmdrain(); k("s_barrier"); publish(k, phase, 2)
    hand_off(3)
    if not k2.NE: run(k, k3.early_items(k, 38, k1.S_W4K))
    if "g" in k2.CW: code_warm(k, k.name + "_cG", k.name + "_cend", 2, "v3")
    stamp(k, 13, ts)
    k3.o_phase(k, ts, 14)
    stamp(k, 16, ts)
    k(f"{k.name}_cG:")
    hand_off(4)
    k5.setup(k)
    k4.g_phase(k, ts, 17, k5.g_extra(k))
    stamp(k, 20, ts)
    hand_off(5)
    k5.d_phase(k, ts, 21)
    lab = k.label("ep")
    k(f"""
    s_or_b32 s4, s2, s3
    s_cmp_eq_u32 s4, 0
    s_cbranch_scc0 {lab}
    v_mov_b32 v2, {EPOCH}
    v_mov_b32 v3, s{S_TAG}
    s_mov_b64 exec, 1
    buffer_store_dword v3, v2, s[{S_FL}:{S_FL+3}], 0 offen sc1
    s_mov_b64 exec, -1
    {lab}:
    """)
    stamp(k, 23, ts or light)
    stamp_flush(k, 0, ts or steps_ts or light)
    k("s_endpgm")
    A.emit_slow()
    for out, back, vaddr, vt, wide in stubs:
        k(f"{out}:")
        await_flags(k, vaddr, vt, wide)
        k(f"s_branch {back}")
    k(f"{k.name}_cend:\ns_endpgm")
    txt = build_file([k])
    errs = hazard.check(txt)
    for x in errs[:40]: print(x)
    assert not errs
    return txt


if __name__ == "__main__":
    open("t_all.s", "w").write(build(True))
    open("t_steps.s", "w").write(build(True, steps_ts=True))
    open("t_light.s", "w").write(build(False, light=True))
    txt = build(False)
    open("t_nots.s", "w").write(txt)
    txt = txt.replace(f"; @launch kernel={NAME} grid", "; @launch grid")
    open("sequential_preLN__compressed_kv_cla__glu_gated_swiglu__prompt.s", "w").write(txt)
    print(len(txt))
```

```python
from asmlib import *


class K(Kernel):
    def __init__(self, *a, **kw):
        super().__init__(*a, **kw)
        self.vm = []
        self.lg = []
        self.clock = 0
        self.lgt = {}
        self.AGE = 10
        self.beam, self.dry, self.wlog = False, False, []

    def text(self):
        import hazard
        n0 = len(self.lines)
        self.lines = [l for l in hazard.autofix(self.lines) if l.strip()]
        return super().text()

    def vmop(self, text, tag=None):
        self(text); self.vm.append(tag)

    def lgop(self, text, tag=None):
        self(text); self.lg.append(tag); self.lgt[tag] = self.clock

    def _wait(self, q, tags, name, mx):
        if not isinstance(tags, list): tags = [tags]
        idx = max((i for i, t in enumerate(q) if t in tags), default=-1)
        if idx < 0: return
        if name == "lgkmcnt":
            while idx + 1 < len(q) and self.clock - self.lgt.get(q[idx + 1], self.clock) >= self.AGE: idx += 1
        n = min(len(q) - 1 - idx, mx)
        self(f"s_waitcnt {name}({n})")
        del q[:len(q) - n]

    def vmwait(self, tags): self._wait(self.vm, tags, "vmcnt", 63)
    def lgwait(self, tags): self._wait(self.lg, tags, "lgkmcnt", 15)

    def vmdrain(self):
        self("s_waitcnt vmcnt(0)"); self.vm = []

    def lgdrain(self):
        self("s_waitcnt lgkmcnt(0)"); self.lg = []

    def stream(self, mfmas, fill):
        def put(items):
            for it in items:
                if callable(it): it()
                else: self(it)
        put(fill.get(-1, []))
        for i, (pre, text) in enumerate(mfmas):
            put(pre)
            self(text)
            self.clock += 1
            put(fill.get(i, []))
        extra = [i for i in fill if i >= len(mfmas)]
        for i in sorted(extra): put(fill[i])


TRANS = ("v_exp_f32", "v_log_f32", "v_rcp_f32", "v_rsq_f32", "v_sqrt_f32")


class It:
    def __init__(s, x, kind=None, lo=None, hi=None, store=False):
        s.x, s.lo, s.hi = x, lo, hi
        if kind is None:
            assert isinstance(x, str)
            first = x.strip().split()[0]
            kind = "v" if first.startswith("v_") else "b" if first.startswith("s_cbranch") else "s"
        s.kind = kind
        s.store = store
        s.cost = 4
        if isinstance(x, str):
            lines = [l.strip() for l in x.strip().split("\n") if not l.strip().endswith(":")]
            s.cost = sum(8 if l.startswith(TRANS) else 4 for l in lines)


def window(items, lo, hi, kind=None):
    out = []
    n = len(items)
    for j, x in enumerate(items):
        it = x if isinstance(x, It) else It(x, kind)
        it.due = lo + (j * (hi - lo + 1)) // max(n, 1)
        it.lo = lo if it.lo is None else max(it.lo, lo)
        it.due = max(it.due, it.lo)
        it.hi = max(hi, it.lo) if it.hi is None else it.hi
        out.append(it)
    return out


def pack_greedy(k, mfmas, streams, ahead=3):
    qs = [list(s_) for s_ in streams if s_]
    n = len(mfmas)

    def put(it):
        it.x() if callable(it.x) else k(it.x)

    def head(kinds, g, slack):
        best = None
        for q in qs:
            if q and q[0].kind in kinds and q[0].lo <= g and q[0].due <= g + slack:
                if best is None or q[0].due < best[0].due: best = q
        return best

    for g, (pre, text) in enumerate(mfmas):
        for p in pre:
            p() if callable(p) else k(p)
        k(text); k.clock += 1
        t = 4
        if g + 1 < n:
            m0 = len(k.lines)
            for p in mfmas[g + 1][0]:
                if callable(p): p()
            t += 4 * (len(k.lines) - m0)
            k.wlog.append(len(k.lines) - m0)
        q = head("b", g, 0)
        if q: it = q.pop(0); put(it); t = max(t + 4, 8) + it.cost - 4
        while True:
            q = head("s", g, 0)
            if not q or (t > 4 and q[0].hi > g): break
            it = q.pop(0); put(it); t += it.cost
        q = head("d", g, 0)
        if q and (t <= 8 or q[0].hi <= g):
            put(q.pop(0)); t += 20
        nv = head("v", g, ahead)
        vcost = nv[0].cost if nv else 0
        behind = nv is not None and nv[0].due < g - 1
        q = head("r", g, 1)
        if q and t <= 8 and (q[0].due < g - 1 or q[0].hi <= g or (vcost <= 4 and t == 4) or (vcost == 0)):
            put(q.pop(0)); t += 4
            q = head("r", g, 2 if vcost == 0 else -3)
            if q and t <= 8: put(q.pop(0)); t += 4
            t += 4
        while True:
            q = head("v", g, ahead)
            if not q: break
            st = max(t, 8)
            if st + q[0].cost > 16 and q[0].hi > g and not (q[0].due < g - 2 and st < 16): break
            it = q.pop(0); put(it); t = st + it.cost
        for q in qs:
            while q and q[0].hi <= g: put(q.pop(0))
    for q in qs:
        while q: put(q.pop(0))


VAL = {"v": 0.7, "s": 0.4, "b": 0.5, "r": 4.0, "d": 18.0}
AHEAD = {"v": 6, "s": 3, "b": 0, "r": 4, "d": 5}
_plans = {}
import os
RR = int(os.environ.get('RR', '2'))


def _step(t, prev, it):
    kd = it.kind
    if kd == "v": return max(t, 8) + it.cost, "v"
    if kd == "s": return t + it.cost, "s"
    if kd == "b": return t + (14 if prev == "v" else 0) + 2 + it.cost, "s"
    if kd == "r": return t + (4 if prev == "v" else RR if prev == "r" else 0) + 8, "r"
    return t + (12 if prev == "v" else 0) + (44 if it.store else 20), "d"


def _plan(n, qs, wslot, beam=28):
    val = [[VAL[x.kind] * (x.cost if x.kind in "vsb" else 1) for x in q] for q in qs]
    states = {tuple(0 for _ in qs): (0.0, 0.0, None)}
    for g in range(n):
        nxt = {}
        for pos, (T, sc, hist) in states.items():
            stack = [(pos, 4 + 4 * wslot[g], "s", (), 0.0)]
            seen = {}
            while stack:
                p, t, prev, seq_, gain = stack.pop()
                forced = [i for i, q in enumerate(qs) if p[i] < len(q) and q[p[i]].hi <= g]
                if not forced:
                    if p not in seen or t < seen[p]:
                        seen[p] = t
                        T2 = T + max(t, 16)
                        sc2 = sc + max(t, 16) - gain
                        if p not in nxt or sc2 < nxt[p][1]: nxt[p] = (T2, sc2, (hist, seq_))
                    if t >= 20 or len(seq_) >= 4: continue
                big = len(seq_) >= 5
                for i, q in enumerate(qs):
                    if p[i] >= len(q): continue
                    it = q[p[i]]
                    if forced and big and i != forced[0]: continue
                    if it.hi > g and (it.lo > g or it.due > g + AHEAD[it.kind]): continue
                    if forced and it.hi > g and t >= 16: continue
                    t2, k2_ = _step(t, prev, it)
                    if it.hi > g and t2 > 28: continue
                    stack.append((p[:i] + (p[i] + 1,) + p[i + 1:], t2, k2_, seq_ + (i,), gain + val[i][p[i]]))
        states = dict(sorted(nxt.items(), key=lambda kv: kv[1][1])[:beam])
    best = min(states.items(), key=lambda kv: kv[1][1])
    plan, h = [], best[1][2]
    while h is not None:
        plan.append(h[1]); h = h[0]
    return plan[::-1]


def pack(k, mfmas, streams, ahead=3):
    if not k.beam or not any(streams): return pack_greedy(k, mfmas, streams, ahead)
    qs = [list(s_) for s_ in streams if s_]
    n = len(mfmas)
    snap = (list(k.lines), list(k.vm), list(k.lg), dict(k.lgt), k.clock, k._lab)
    k.dry = True; k.wlog = []
    pack_greedy(k, mfmas, streams, ahead)
    wslot = k.wlog + [0]
    k.lines, k.vm, k.lg, k.lgt, k.clock, k._lab = snap
    k.dry = False
    for q in qs:
        for x in q: x.hi = min(x.hi, n + 5) if x.hi >= n else x.hi
    key = (n, tuple(wslot), tuple(tuple((x.kind, x.cost, x.lo, x.hi, x.due, x.store) for x in q) for q in qs))
    if key not in _plans: _plans[key] = _plan(n, qs, wslot)
    for g, (pre, text) in enumerate(mfmas):
        for p in pre:
            p() if callable(p) else k(p)
        k(text); k.clock += 1
        if g + 1 < n:
            for p in mfmas[g + 1][0]:
                if callable(p): p()
        for i in _plans[key][g]:
            it = qs[i].pop(0)
            it.x() if callable(it.x) else k(it.x)
    for q in qs:
        for it in q: it.x() if callable(it.x) else k(it.x)


def spread(fill, items, lo, hi):
    n = len(items)
    for j, it in enumerate(items):
        idx = lo + (j * (hi - lo + 1)) // max(n, 1)
        fill.setdefault(idx, []).append(it)


def mfma(d, A, B, c):
    return f"v_mfma_f32_16x16x32_bf16 {d}, {A}, {B}, {c}"


def srd(k, n, lo, hi, off, size):
    k(f"s_add_u32 s{n}, s{lo}, {off}\ns_addc_u32 s{n+1}, s{hi}, 0\ns_mov_b32 s{n+2}, {size}\ns_mov_b32 s{n+3}, 0x20000")


MB = 1 << 20
import os
KV_TS, KV_HS = {'h': (16384, 524288), 'p': (18432, 32 * 18432 + 1024), 'q': (17408, 32 * 17408 + 4096), 'r': (16384, 524288 + 5120)}[os.environ.get('KVL', 'h')]
WS_K = 96 * MB
WS_V = 72 * MB
WS_XN = 32 * MB
WS_CTX = 34 * MB
WS_WO = 50 * MB
WS_W13 = 54 * MB
WS_CS = 57 * MB
WS_W2 = 58 * MB
WS_H = 60 * MB
WS_ST = 62 * MB
WS_HH = 63 * MB
WS_FL = 69 * MB
WS_TS = 128 * MB

P = dict(x=36, ckv=38, wq=40, wuk=42, wuv=44, wo=46, bx=48, w1=50, w3=52, w2=54, out=56, dbg=58, ws=60)


def load_args(k, nwg=256):
    k(f"""
    s_cmp_ge_u32 s2, {nwg}
    s_cbranch_scc0 {k.name}_go
    s_endpgm
    {k.name}_go:
    s_load_dwordx16 s[36:51], s[0:1], 0
    s_load_dwordx8 s[52:59], s[0:1], 64
    s_load_dwordx2 s[60:61], s[0:1], 96
    v_lshrrev_b32 v1, 6, v0
    v_and_b32 v0, 63, v0
    v_readfirstlane_b32 s3, v1
    """)


def xlane_sum(k, x, t, steps):
    for st in steps:
        if st == "q1": k(f"s_nop 1\nv_add_f32_dpp v{x}, v{x}, v{x} quad_perm:[1,0,3,2] row_mask:0xf bank_mask:0xf")
        if st == "q2": k(f"s_nop 1\nv_add_f32_dpp v{x}, v{x}, v{x} quad_perm:[2,3,0,1] row_mask:0xf bank_mask:0xf")
        if st == "r4": k(f"s_nop 1\nv_add_f32_dpp v{x}, v{x}, v{x} row_ror:4 row_mask:0xf bank_mask:0xf")
        if st == "r8": k(f"s_nop 1\nv_add_f32_dpp v{x}, v{x}, v{x} row_ror:8 row_mask:0xf bank_mask:0xf")
        if st == "p16": k(f"v_mov_b32 v{t}, v{x}\ns_nop 1\nv_permlane16_swap_b32 v{x}, v{t}\nv_add_f32 v{x}, v{x}, v{t}")
        if st == "p32": k(f"v_mov_b32 v{t}, v{x}\ns_nop 1\nv_permlane32_swap_b32 v{x}, v{t}\nv_add_f32 v{x}, v{x}, v{t}")


def stamp(k, idx, on):
    if not on: return
    k(f"""
    s_memtime s[92:93]
    s_memrealtime s[94:95]
    s_waitcnt lgkmcnt(0)
    v_writelane_b32 v1, s92, {2*idx}
    v_writelane_b32 v1, s94, {2*idx+1}
    """)


def stamp_flush(k, kid, on):
    if not on: return
    srd(k, 88, P['ws'], P['ws'] + 1, WS_TS + kid * 262144, 262144)
    k(f"s_lshl_b32 s92, s2, 2\ns_add_u32 s92, s92, s3\ns_lshl_b32 s92, s92, 8\nv_lshlrev_b32 v0, 2, v0\nv_add_u32 v0, s92, v0")
    k("buffer_store_dword v1, v0, s[88:91], 0 offen")


S_FL, S_TAG, S_SPIN = 96, 100, 101
FOFF = {1: 0, 2: 0x8000, 3: 0x10000, 4: 0x18000, 5: 0x20000, 6: 0x28000}
FSTR = {1: 128, 2: 128, 3: 128, 4: 128, 5: 128, 6: 128}
EPOCH = 0x30000
SC = " sc1"


def sync_init(k, vt=2):
    srd(k, S_FL, P['ws'], P['ws'] + 1, WS_FL, 0x40000)
    k(f"v_mov_b32 v{vt}, {EPOCH}")
    k.vmop(f"buffer_load_dword v{vt+1}, v{vt}, s[{S_FL}:{S_FL+3}], 0 offen sc1", "EP")


def sync_tag(k, vt=2):
    k.vmwait("EP")
    k(f"v_readfirstlane_b32 s{S_TAG}, v{vt+1}\ns_nop 0\ns_add_u32 s{S_TAG}, s{S_TAG}, 1")


def publish(k, phase, vt):
    lab = k.label("pub")
    k(f"""
    s_cmp_eq_u32 s3, 0
    s_cbranch_scc0 {lab}
    s_mul_i32 s4, s2, {FSTR[phase]}
    s_add_u32 s4, s4, {FOFF[phase]}
    v_lshl_add_u32 v{vt}, v0, 2, s4
    v_mov_b32 v{vt+1}, s{S_TAG}
    s_mov_b64 exec, 0xffffffff
    buffer_store_dword v{vt+1}, v{vt}, s[{S_FL}:{S_FL+3}], 0 offen sc1
    s_mov_b64 exec, -1
    {lab}:
    """)


def wide_poll(vaddr, vt):
    return "\n".join(f"buffer_load_dword v{vt+j}, v{vaddr}, s[{S_FL}:{S_FL+3}], {'s%d' % (64+j) if j else '0'} offen sc1" for j in range(4))


def await_flags(k, vaddr, vt, wide=False):
    top, done = k.label("spin"), k.label("ok")
    k(f"s_mov_b32 s{S_SPIN}, 0x40000\n{top}:")
    if wide:
        k(f"""
        {wide_poll(vaddr, vt)}
        s_waitcnt vmcnt(0)
        v_xor_b32 v{vt}, s{S_TAG}, v{vt}
        v_xor_b32 v{vt+1}, s{S_TAG}, v{vt+1}
        v_xor_b32 v{vt+2}, s{S_TAG}, v{vt+2}
        v_xor_b32 v{vt+3}, s{S_TAG}, v{vt+3}
        v_or3_b32 v{vt}, v{vt}, v{vt+1}, v{vt+2}
        v_or_b32 v{vt}, v{vt}, v{vt+3}
        v_cmp_ne_u32 vcc, 0, v{vt}
        """)
    else:
        k(f"""
        buffer_load_dword v{vt}, v{vaddr}, s[{S_FL}:{S_FL+3}], 0 offen sc1
        s_waitcnt vmcnt(0)
        v_cmp_ne_u32 vcc, s{S_TAG}, v{vt}
        """)
    k(f"""
    s_nop 0
    s_cbranch_vccz {done}
    s_sleep 1
    s_sub_u32 s{S_SPIN}, s{S_SPIN}, 1
    s_cmp_lg_u32 s{S_SPIN}, 0
    s_cbranch_scc1 {top}
    {done}:
    """)
    k.vm = []


def code_warm(k, start, end, vt, dst, sp=6, back=False):
    here, skip = k.label("cw"), k.label("cs")
    k(f"""
    s_getpc_b64 s[{sp}:{sp+1}]
    {here}:
    {f"s_sub_u32 s{sp}, s{sp}, {here} - {start}" if back else f"s_add_u32 s{sp}, s{sp}, {start} - {here}"}
    {"s_subb_u32" if back else "s_addc_u32"} s{sp+1}, s{sp+1}, 0
    s_lshr_b32 s4, s2, 3
    s_lshl_b32 s4, s4, 2
    s_add_u32 s4, s4, s3
    s_lshl_b32 s4, s4, 7
    v_lshlrev_b32 v{vt}, 14, v0
    v_add_u32 v{vt}, s4, v{vt}
    v_cmp_gt_u32 vcc, {end} - {start}, v{vt}
    s_and_saveexec_b64 s[92:93], vcc
    s_cbranch_execz {skip}
    global_load_dword {dst}, v{vt}, s[{sp}:{sp+1}]
    {skip}:
    s_mov_b64 exec, s[92:93]
    """)
```

```python
from emit import *

V_WVO = 4
V_TRA = 8
V_WF = 32
V_ACC = 64
S_SOFF = 4
import os
SC1 = " sc1"
NT2 = os.environ.get("NT2", " nt")
WWARM = int(os.environ.get("WWARM", "0"))
WNT = os.environ.get("WNT", " nt")
KVSC = os.environ.get("KVSC", " sc1")
NT = os.environ.get("NT", " nt")
S_W4K = 58
WSLOT = [0, 1, 2, 3, 0, 1, 2, 3, 0, 4, 5, 6, 7, 8, 1, 2, 3, 0, 4, 5, 6, 7, 8, 9]
WISSUE = {1: [4], 2: [5], 3: [6], 4: [7], 5: [8, 9], 6: [10, 11, 14], 7: [12, 13, 15], 8: [16], 9: [17], 10: [18], 11: [19],
          12: [20], 13: [21], 14: [22], 15: [23]}


def proj_setup(k, wstride=8192):
    k(f"""
    v_lshrrev_b32 v2, 3, v0
    v_mov_b32 v3, {wstride}
    v_mul_lo_u32 v2, v2, v3
    v_lshrrev_b32 v3, 4, v0
    v_and_b32 v3, 1, v3
    v_lshlrev_b32 v3, 1, v3
    v_and_b32 v12, 7, v0
    v_xor_b32 v3, v3, v12
    v_lshl_add_u32 v2, v3, 4, v2
    s_mul_i32 s4, s3, {32*wstride}
    v_add_u32 v{V_WVO}, s4, v2
    v_xor_b32 v{V_WVO+1}, 64, v{V_WVO}
    v_add_u32 v{V_WVO+2}, {2*(8*wstride-1024)}, v{V_WVO}
    v_add_u32 v{V_WVO+3}, {3*(8*wstride-1024)}, v{V_WVO+1}
    v_add_u32 v{V_WVO+1}, {8*wstride-1024}, v{V_WVO+1}
    v_lshrrev_b32 v2, 4, v0
    v_bfe_u32 v3, v0, 2, 2
    v_lshl_add_u32 v12, v2, 3, v3
    v_lshlrev_b32 v12, 7, v12
    v_and_b32 v13, 3, v0
    v_lshl_add_u32 v12, v13, 3, v12
    v_and_b32 v2, 1, v2
    v_lshrrev_b32 v3, 1, v3
    v_lshl_add_u32 v2, v2, 1, v3
    v_lshl_add_u32 v{V_TRA}, v2, 5, v12
    """)
    for t in range(1, 4):
        k(f"v_xor_b32 v{V_TRA+t}, {32*t}, v{V_TRA}")


def seq(k, items):
    def all_():
        for it in items:
            it() if callable(it) else k(it)
    return all_


CFGS = {
    "b": dict(stores={8: 3, 9: 3, 10: 2, 11: 2, 12: 2, 13: 2, 14: 2, 15: 4, 16: 4, 17: 4, 18: 4}, swin={},
              xn={10: [0, 1], 11: [2, 3], 12: [4, 5], 13: [6, 7], 15: [8], 16: [9], 17: [10], 18: [11], 19: [12, 13], 20: [14, 15]}, pub2=20, poll=21),
    "e": dict(stores={8: 0, 9: 3, 10: 2, 11: 2, 12: 2, 13: 2, 14: 4, 15: 3, 16: 4, 17: 4, 18: 4, 19: 2}, swin={},
              xn={10: [0, 1], 11: [2, 3], 12: [4, 5], 13: [6, 7], 15: [8], 16: [9], 17: [10], 18: [11], 19: [12, 13], 20: [14, 15]}, pub2=21, poll=22),
    "f": dict(stores={8: 0, 9: 4, 10: 1, 11: 1, 12: 2, 13: 2, 14: 5, 15: 5, 16: 4, 17: 4, 18: 4}, swin={},
              xn={10: [0, 1], 11: [2, 3], 12: [4, 5], 13: [6, 7], 15: [], 16: [8], 17: [9], 18: [10, 11], 19: [12, 13], 20: [14, 15]}, pub2=20, poll=21),
    "g": dict(stores={8: 4, 9: 4, 10: 0, 11: 0, 12: 0, 13: 4, 14: 4, 15: 4, 16: 4, 17: 4, 18: 4}, swin={},
              xn={10: [0, 1, 2], 11: [3], 12: [4, 5, 6, 7], 13: [], 15: [], 16: [8], 17: [9], 18: [10, 11], 19: [12, 13], 20: [14, 15]}, pub2=20, poll=21),
}
CFG = CFGS[os.environ.get("CFG", "e")]


_Q = [V_ACC + 4 * i for i in range(48)]
ACC_KL, ACC_KH, ACC_VL = _Q[0:16], _Q[16:32], _Q[32:48]
ACC_VH = _Q[4:8] + _Q[12:16] + _Q[20:24] + _Q[28:32]
ACC_Q0 = _Q[0:4] + _Q[8:12] + _Q[16:20] + _Q[24:28]
ACC_Q1 = ACC_VL[1::2] + ACC_VH[1::2]


def L(f, kind):
    return It(f, kind)


def w_dma(k, step, steps, wstride=8192):
    S = steps[step]
    items = [It(f"s_add_u32 m0, s{S_W4K}, {WSLOT[step]*16384}"), It(f"s_mov_b32 s{S_SOFF}, {S['kc']*128*wstride + S['col']}")]
    for jj in range(4):
        items.append(L(lambda jj=jj: k.vmop(
            f"buffer_load_dwordx4 v{V_WVO+jj}, s[{S['srd']}:{S['srd']+3}], s{S_SOFF} offen offset:{jj*1024}{NT if step < 8 else NT2} lds", ("W", step)), "d"))
    return items


def run(k, items):
    for it in items:
        x = it.x if isinstance(it, It) else it
        x() if callable(x) else k(x)


def tr_items(k, step, t):
    base = V_WF + 16 * (t % 2)
    items = []
    delta = (WSLOT[step] // 4 - WSLOT[step - 1] // 4) * 65536 if step else 0
    if delta: items.append(It(f"v_add_u32 v{V_TRA+t}, {delta & 0xffffffff:#x}, v{V_TRA+t}"))
    for ks in range(4):
        for half in range(2):
            off = (WSLOT[step] % 4) * 16384 + ks * 4096 + half * 512
            items.append(L(lambda ks=ks, half=half, off=off: k.lgop(
                f"ds_read_b64_tr_b16 {v(base+4*ks+2*half,2)}, v{V_TRA+t} offset:{off}", ("F", step, t, ks)), "r"))
    return items


def proj_core(k, steps, res, extra_fill, res_wait, epi, hook=None, at_barrier=None):
    ns = len(steps)
    run(k, tr_items(k, 0, 0))
    pend, pst, wait_st = [], [], []
    for step, S in enumerate(steps):
        kc = S["kc"]
        acc = lambda t, b: v(S["acc"][4 * t + b], 4)
        mf, rd, ctl, mem = [], [], [], []
        for t in range(4):
            for b in range(4):
                for kk in range(4):
                    ks = kk if b % 2 == 0 else 3 - kk
                    pre = []
                    if b == 0:
                        pre.append(lambda t=t, ks=ks: k.lgwait(("F", step, t, ks)))
                    if t == 0:
                        pre += res_wait(step, b, ks)
                    wf = v(V_WF + 16 * (t % 2) + 4 * ks, 4)
                    c = "0" if (kc == 0 and kk == 0) else acc(t, b)
                    A, B = (wf, res(b, 4 * kc + ks)) if S["mode"] != "V" else (res(b, 4 * kc + ks), wf)
                    mf.append((pre, mfma(acc(t, b), A, B, c)))
            if t < 3:
                rd += window(tr_items(k, step, t + 1), 16 * t, 16 * t + 11)
            elif step + 1 < ns:
                def bar(step=step):
                    k.vmwait(("W", step + 1))
                    pre_, post_ = (at_barrier or {}).get(step, (None, None))
                    if pre_: pre_()
                    k("s_barrier")
                    if post_: post_()
                ctl += window([L(bar, "s")], 47, 47)
                rd += window(tr_items(k, step + 1, 0), 48, 59)
        streams = [rd, ctl]
        for e in extra_fill.get(step, []):
            if len(e) == 4: mem += window(e[2], e[0], e[1])
            else: streams.append(window(e[2], e[0], e[1]))
        late, early = [], []
        for w_ in WISSUE.get(step, []):
            if WSLOT[w_] == WSLOT[step - 1] or step in (5, 15): late += w_dma(k, w_, steps)
            else: early += w_dma(k, w_, steps)
        mem += window(early, 4, 46) + window(late, 48, 62)
        streams.append(mem)
        if pend:
            take, pend = pend[:64], pend[64:]
            streams.append(window(take, 8, 63))
        if pst:
            ns_ = CFG["stores"].get(step, 8)
            take, pst = pst[:ns_], pst[ns_:]
            if os.environ.get("NOST"): take = []
            streams.append(window(take, *CFG["swin"].get(step, (4, 60))))
        if not pend:
            pst += wait_st; wait_st = []
        pack(k, mf, streams)
        if hook: hook(step)
        new = epi(step)
        pend += [x for x in new if x.kind != "d"]
        wait_st += [x for x in new if x.kind == "d"]
    k("s_nop 7")
    run(k, pend)
    assert not pst and not wait_st


def kv_phase(k, ts=False):
    SC, SWK, SWV, SKO, SVO, SJ1, SJ2, SD1, SD2 = 8, 12, 16, 20, 24, 28, 32, 76, 80
    SX, SXN, SCS = 84, 88, 72
    V_CVO, V_CRA, V_SVO = 12, 16, 20
    CBASE = 65536
    J0L = 147456
    if not os.environ.get("NOCW"): code_warm(k, k.name + "_c0", k.name + "_cend", 28, "v29")
    proj_setup(k)
    k(f"""
    s_and_b32 s70, s2, 7
    s_lshl_b32 s70, s70, 2
    s_bfe_u32 s71, s2, 0x20003
    s_add_u32 s70, s70, s71
    s_lshr_b32 s71, s2, 5
    s_lshl_b32 s69, s2, 2
    s_add_u32 s69, s69, s3
    s_mul_i32 s5, s3, 24576
    s_add_u32 s5, s5, {CBASE}
    v_lshrrev_b32 v2, 4, v0
    v_and_b32 v3, 15, v0
    v_xor_b32 v21, v2, v3
    v_lshlrev_b32 v21, 4, v21
    v_lshl_add_u32 v2, v2, 10, v21
    s_lshl_b32 s4, s3, 16
    v_add_u32 v{V_CVO}, s4, v2
    v_lshl_add_u32 v{V_CRA}, v3, 8, v21
    s_mul_i32 s4, s3, {KV_TS}
    v_lshlrev_b32 v2, 4, v0
    v_add_u32 v{V_SVO}, s4, v2
    """)
    for j in range(1, 4):
        k(f"v_xor_b32 v{V_CVO+j}, {64*j}, v{V_CVO}\nv_add_u32 v{V_CVO+j}, {j*3072}, v{V_CVO+j}\nv_xor_b32 v{V_CRA+j}, {64*j}, v{V_CRA}")
    for j in range(4):
        k(f"v_add_u32 v{V_CRA+j}, s5, v{V_CRA+j}")
    k(f"s_waitcnt lgkmcnt(0)\ns_lshl_b32 s{S_W4K}, s3, 12")
    k("s_lshl_b32 s4, s71, 18"); srd(k, SC, P['ckv'], P['ckv'] + 1, "s4", 262144)
    k("s_lshl_b32 s4, s70, 8\ns_sub_u32 s68, 0x400000, s4")
    srd(k, SWK, P['wuk'], P['wuk'] + 1, "s4", "s68")
    srd(k, SWV, P['wuv'], P['wuv'] + 1, "s4", "s68")

    steps = [dict(srd=SWK, col=128 * (s_ % 2), mode="K", kc=s_ // 2, acc=(ACC_KL, ACC_KH)[s_ % 2]) for s_ in range(8)]
    steps += [dict(srd=SWV, col=128 * g_, mode="V", kc=kc_, acc=(ACC_VL, ACC_VH)[g_])
              for g_, kc_ in ((0, 0), (1, 0), (0, 1), (1, 1), (0, 2), (0, 3), (1, 2), (1, 3))]

    def c_dma(j):
        kc, b = divmod(j, 4)
        items = [It(f"s_add_u32 m0, s5, {(j % 6)*4096}"), It(f"s_mov_b32 s{S_SOFF}, {b*16384 + kc*256}")]
        for jj in range(4):
            items.append(L(lambda jj=jj: k.vmop(
                f"buffer_load_dwordx4 v{V_CVO+jj}, s[{SC}:{SC+3}], s{S_SOFF} offen offset:{jj*1024} lds", ("C", j)), "d"))
        return items

    def c_read(j):
        kc, b = divmod(j, 4)
        items = [L(lambda: k.vmwait(("C", j)), "s")]
        for ks in range(4):
            items.append(L(lambda ks=ks: k.lgop(
                f"ds_read_b128 {a(64*b+16*kc+4*ks,4)}, v{V_CRA+ks} offset:{(j % 6)*4096}", ("CR", j)), "r"))
        return items

    def c_next(j):
        return [L(lambda: k.lgwait(("CR", j)), "s")] + c_dma(j + 6)

    run(k, w_dma(k, 0, steps))
    for j in range(4): run(k, c_dma(j))
    k("""
    s_lshr_b32 s4, s2, 3
    s_lshl_b32 s4, s4, 2
    s_add_u32 s4, s4, s3
    s_lshl_b32 s4, s4, 15
    s_and_b32 s68, s2, 7
    s_lshl_b32 s68, s68, 10
    s_add_u32 s4, s4, s68
    v_lshrrev_b32 v2, 3, v0
    v_and_b32 v3, 7, v0
    v_lshlrev_b32 v3, 7, v3
    v_lshl_add_u32 v25, v2, 13, v3
    """)
    srd(k, 32, P['wuv'], P['wuv'] + 1, "s4", 3 * 8192 + 1024)
    srd(k, 80, P['wq'], P['wq'] + 1, "s4", 3 * 8192 + 1024)
    WW = os.environ.get("WW", "4")
    wwarm = lambda sr: [L(lambda: k.vmop(f"buffer_load_dword v22, v25, s[{sr}:{sr+3}], 0 offen{WNT}", "warm"), "d")]
    sync_init(k, 30)
    k(f"s_mul_i32 s4, s70, {KV_HS}\ns_mul_i32 s68, s71, {4*KV_TS}\ns_add_u32 s4, s4, s68\ns_add_u32 s4, s4, {WS_K}")
    srd(k, SKO, P['ws'], P['ws'] + 1, "s4", 3 * KV_TS + 16384)
    k(f"s_sub_u32 s4, s4, {WS_K - WS_V}")
    srd(k, SVO, P['ws'], P['ws'] + 1, "s4", 3 * KV_TS + 16384)
    k(f"s_lshr_b32 s4, s69, 3\ns_lshl_b32 s4, s4, 14\ns_add_u32 s4, s4, {WS_XN}")
    srd(k, SXN, P['ws'], P['ws'] + 1, "s4", 16384)
    k("s_lshl_b32 s4, s69, 11"); srd(k, SX, P['x'], P['x'] + 1, "s4", 2048)
    k(f"""
    s_lshr_b32 s64, s2, 3
    s_add_u32 s64, s64, 40
    s_and_b32 s65, s2, 7
    s_lshl_b32 s66, s64, 15
    s_lshl_b32 s67, s65, 7
    s_add_u32 s66, s66, s67
    s_min_u32 s66, s66, {1376*1024}
    s_sub_u32 s68, {1376*1024}, s66
    """)
    srd(k, SJ1, P['w2'], P['w2'] + 1, "s66", "s68")
    k(f"s_mul_i32 s67, s65, {4*43*1024}\ns_lshl_b32 s64, s64, 10\ns_add_u32 s67, s67, s64\ns_add_u32 s67, s67, {WS_W2}")
    srd(k, SD1, P['ws'], P['ws'] + 1, "s67", 3 * 43 * 1024 + 1024)
    k(f"""
    s_lshl_b32 s62, s3, 8
    s_add_u32 s62, s62, s2
    v_lshrrev_b32 v2, 3, v0
    v_and_b32 v3, 7, v0
    v_lshlrev_b32 v3, 4, v3
    v_lshl_add_u32 v21, v2, 10, v3
    v_bfe_u32 v2, v0, 2, 4
    v_lshlrev_b32 v2, 7, v2
    v_and_b32 v3, 3, v0
    v_lshl_add_u32 v23, v3, 3, v2
    v_add_u32 v23, {J0L}, v23
    v_lshlrev_b32 v24, 4, v0
    v_and_b32 v26, 1, v0
    v_lshlrev_b32 v26, 10, v26
    v_lshrrev_b32 v3, 1, v0
    v_lshl_add_u32 v26, v3, 4, v26
    """)
    k("s_mov_b32 s64, 4096\ns_mov_b32 s65, 8192\ns_mov_b32 s66, 12288")
    stamp(k, 1, ts)
    run(k, c_read(0)); run(k, c_dma(4))
    run(k, c_read(1)); run(k, c_dma(5))
    run(k, c_read(2)); run(k, w_dma(k, 1, steps))
    run(k, c_read(3))
    k.vmop(f"buffer_load_dwordx4 {v(192,4)}, v26, s[{SX}:{SX+3}], 0 offen", "X")
    k.vmop(f"buffer_load_dwordx4 {v(196,4)}, v26, s[{SX}:{SX+3}], 0 offen offset:512", "X")
    PS = os.environ.get("PS", "r")
    stamp(k, 2, ts)
    k.vmwait(("W", 0))
    k("s_barrier")
    k(f"{k.name}_c0:")
    stamp(k, 3, ts)

    T = 192
    ln = []
    ln.append(L(lambda: k.vmop(f"buffer_load_dwordx4 {v(T,4)}, v26, s[{SX}:{SX+3}], 0 offen", "X"), "d"))
    ln.append(L(lambda: k.vmop(f"buffer_load_dwordx4 {v(T+4,4)}, v26, s[{SX}:{SX+3}], 0 offen offset:512", "X"), "d"))
    l2 = [L(lambda: k.vmwait("X"), "s")]
    X = T + 8
    class Rec:
        def __init__(s): s.items = []
        def __call__(s, t):
            for l_ in t.split("\n"):
                if not l_.startswith("s_nop"): s.items.append(It(l_))
    R = Rec()
    for j in range(8): R(f"v_lshlrev_b32 v{X+2*j}, 16, v{T+j}\nv_and_b32 v{X+1+2*j}, 0xffff0000, v{T+j}")
    R(f"v_add_f32 v2, v{X}, v{X+1}")
    for j in range(2, 16): R(f"v_add_f32 v2, v2, v{X+j}")
    xlane_sum(R, 2, 3, ["q2", "r4", "r8", "p16", "p32"])
    R(f"v_mul_f32 v2, 0x3b000000, v2")
    R(f"v_sub_f32 v3, v{X}, v2\nv_mul_f32 v27, v3, v3")
    for j in range(1, 16): R(f"v_sub_f32 v3, v{X+j}, v2\nv_fmac_f32 v27, v3, v3")
    xlane_sum(R, 27, 3, ["q2", "r4", "r8", "p16", "p32"])
    for t_ in ["v_mul_f32 v27, 0x3b000000, v27\nv_cvt_pk_bf16_f32 v2, v2, v27", "v_and_b32 v27, 0xffff0000, v2\nv_lshlrev_b32 v2, 16, v2",
               "v_add_f32 v27, 0x3727c5ac, v27\nv_cvt_pk_bf16_f32 v27, v27, v27", "v_lshlrev_b32 v27, 16, v27\nv_sqrt_f32 v27, v27\ns_nop 0",
               "v_cvt_pk_bf16_f32 v27, v27, v27\nv_lshlrev_b32 v27, 16, v27", "v_rcp_f32 v27, v27\ns_nop 0"]: R(t_)
    for j in range(8):
        R(f"v_sub_f32 v{X+2*j}, v{X+2*j}, v2\nv_sub_f32 v{X+2*j+1}, v{X+2*j+1}, v2")
        R(f"v_cvt_pk_bf16_f32 v{T+j}, v{X+2*j}, v{X+1+2*j}\nv_lshlrev_b32 v{X+2*j}, 16, v{T+j}")
        R(f"v_and_b32 v{X+1+2*j}, 0xffff0000, v{T+j}\nv_mul_f32 v{X+2*j}, v{X+2*j}, v27")
        R(f"v_mul_f32 v{X+2*j+1}, v{X+2*j+1}, v27\nv_cvt_pk_bf16_f32 v{T+j}, v{X+2*j}, v{X+1+2*j}")
    l2 += R.items
    XL = 155648
    R = Rec()
    R(f"s_lshl_b32 s68, s3, 5\ns_add_u32 s68, s68, {XL}\nv_and_b32 v2, 1, v0\nv_lshlrev_b32 v2, 4, v2")
    R("v_lshrrev_b32 v3, 1, v0\nv_lshl_add_u32 v2, v3, 7, v2\nv_add_u32 v2, s68, v2")
    l3 = R.items + [L(lambda j=j: k.lgop(f"ds_write_b128 v2, {v(T+4*j,4)} offset:{4096*j}", "xw"), "r") for j in range(2)]
    R = Rec()
    R(f"s_lshl_b32 s68, s3, 11\ns_add_u32 s68, s68, {XL}\nv_add_u32 v2, s68, v24")
    l4 = R.items + [L(lambda j=j: k.lgop(f"ds_read_b128 {v(T+4*j,4)}, v2 offset:{1024*j}", "xr"), "r") for j in range(2)]
    R = Rec()
    R("s_and_b32 s68, s2, 1\ns_lshl_b32 s68, s68, 7\ns_add_u32 s68, s68, s58\nv_lshrrev_b32 v2, 3, v0\nv_lshlrev_b32 v2, 8, v2")
    R("v_and_b32 v3, 7, v0\nv_lshl_add_u32 v2, v3, 4, v2\nv_add_u32 v2, s68, v2")
    l4 += R.items + [L(lambda: k.lgwait("xr"), "s")]
    l4 += [L(lambda j=j: k.vmop(f"buffer_store_dwordx4 {v(T+4*j,4)}, v2, s[{SXN}:{SXN+3}], 0 offen offset:{2048*j}{SC1}", "sj"), "d") for j in range(2)]

    def j0(part):
        def f():
            lab = k.label("j0")
            k(f"s_cmp_lt_u32 s62, 24\ns_cbranch_scc0 {lab}")
            if part == 0:
                k(f"s_mov_b32 m0, {J0L}\ns_mov_b32 s68, 0")
                for jj in range(4):
                    k(f"buffer_load_dwordx4 v21, s[{SJ1}:{SJ1+3}], s68 offen offset:{jj*1024}{NT} lds\ns_add_u32 s68, s68, 7168")
            else:
                JF = ACC_Q1
                for t in range(4):
                    for half in range(2): k(f"ds_read_b64_tr_b16 {v(JF[t]+2*half,2)}, v23 offset:{32*t + 2048*half}")
                k("s_waitcnt lgkmcnt(0)\ns_mov_b32 s68, 0")
                for t in range(4):
                    k(f"buffer_store_dwordx4 {v(JF[t],4)}, v24, s[{SD1}:{SD1+3}], s68 offen{SC1}\ns_add_u32 s68, s68, {43*1024}")
            k(f"{lab}:")
        return [L(f, "s")]

    cc = lambda j: c_read(j) + (c_next(j) if j + 6 < 16 else [])
    n3 = len(l2) // 5
    if PS == "f":
        e0 = c_next(0) + c_next(1) + w_dma(k, 2, steps) + c_next(2) + c_next(3) + cc(4)
        e1 = w_dma(k, 3, steps) + cc(5) + cc(6) + cc(7)
        e2, e3, e4 = cc(8) + cc(9), cc(10) + cc(11), cc(12) + cc(13)
    else:
        e0 = c_next(0) + c_next(1) + w_dma(k, 2, steps) + c_read(4)
        e1 = c_next(2) + c_next(3) + w_dma(k, 3, steps) + c_read(5) + c_read(6) + c_read(7)
        e2 = c_next(4) + c_next(5) + c_next(6) + c_read(8)
        e3 = c_next(7) + c_read(9) + c_next(8) + c_read(10) + c_read(11)
        e4 = c_next(9) + c_read(12) + c_read(13)
    if WW == "4": e4 = e4 + wwarm(32) + wwarm(80)
    if WW == "3": e3 = e3 + wwarm(32); e4 = e4 + wwarm(80)
    if WW == "1": e1 = e1 + wwarm(32); e3 = e3 + wwarm(80)
    extra = {0: [(0, 62, e0, "mem"), (50, 50, [L(lambda: sync_tag(k, 30), "s")])],
             1: [(0, 46, e1, "mem"), (8, 63, l2[:2*n3])],
             2: [(2, 46, e2, "mem"), (0, 63, l2[2*n3:4*n3])],
             3: [(2, 44, e3, "mem"), (0, 44, l2[4*n3:]), (48, 63, l3)],
             4: [(2, 44, e4, "mem"), (48, 63, l4)],
             5: [(20, 44, cc(14) + cc(15) + [L(lambda: k.lgwait(("CR", 15)), "s")], "mem")],
             6: [(0, 0, j0(0), "mem")],
             15: [(2, 2, j0(1))]}

    def epi(step):
        S = steps[step]
        if S["kc"] != 3: return []
        A = lambda t, b: S["acc"][4 * t + b]
        g = S["col"] // 128
        items = []
        def pk(d, x, y, sr, off):
            if S["mode"] == "V":
                for r in range(4):
                    items.append(It(f"v_mul_f32 v{x+r}, 0x5f800000, v{x+r}\nv_mul_f32 v{y+r}, 0x5f800000, v{y+r}"))
            items.extend(It(t_) for t_ in [f"v_cvt_pk_bf16_f32 v{d}, v{x}, v{x+1}", f"v_cvt_pk_bf16_f32 v{d+1}, v{x+2}, v{x+3}",
                                           f"v_cvt_pk_bf16_f32 v{d+2}, v{y}, v{y+1}", f"v_cvt_pk_bf16_f32 v{d+3}, v{y+2}, v{y+3}"])
            so, im = divmod(off, 4096)
            items.append(L(lambda: k.vmop(
                f"buffer_store_dwordx4 {v(d,4)}, v{V_SVO}, s[{sr}:{sr+3}], {'0' if so == 0 else 's%d' % (63+so)} offen offset:{im}{KVSC}", "kv"), "d"))
        if S["mode"] == "K":
            for b in range(4):
                for j in range(2):
                    pk(A(2 * j, b), A(2 * j, b), A(2 * j + 1, b), SKO, b * 4096 + (2 * g + j) * 1024)
        else:
            for t in range(4):
                for j in range(2):
                    pk(A(t, 2 * j), A(t, 2 * j), A(t, 2 * j + 1), SVO, j * 8192 + (4 * g + t) * 1024)
        return items
    return steps, extra, epi
```

```python
from emit import *
import jobs, os
from k1 import seq, run, L, V_ACC, S_SOFF, S_W4K, SC1, ACC_Q0, ACC_Q1

XNSC = os.environ.get("XNSC", SC1)
NE = int(os.environ.get('NE', '30'))
CW = os.environ.get('CW', 'abg')
JEV = int(os.environ.get('JEV', '1'))
SNAKE = int(os.environ.get('SNAKE', '1'))
ONEV = int(os.environ.get('ONEV', '1'))
LPOS = os.environ.get('LPOS', 'end')
BIAS = 102.0
NEG = 0xf149f2ca
QSCALE = 0x3e0293ee
V_L16, V_DVO, V_RA = 12, 13, 14
V_T, V_PS, V_L, V_CT, V_C, V_P, V_S, V_O, V_X = 16, 20, 22, 28, 32, 48, 64, 96, 224
A_Q, A_K, A_V, A_L, A_ONE = 0, 64, 128, 192, 208
SWQ, SXN, SK, SV, SCTX = 8, 28, 12, 32, 16
S_MASK, S_RET, S_THR, S_ARM, S_CNT, S_H, S_I, S_RB, S_RD, S_WR, S_DSO = 80, 62, 64, 68, 69, 70, 71, 72, 76, 77, 78
S_NWR, S_PC, S_EV = 79, 68, 59
SME = int(os.environ.get('SME', '9'))
BPOS = int(os.environ.get('BPOS', '6'))
SM0 = 8
CARRY = int(os.environ.get('CARRY', '10'))
FULL = "FFFF"
LASTQ = 2


class Job:
    def __init__(s, q, modes, par, first=False):
        s.q, s.modes, s.par, s.first = q, modes, par, first
        s.S, s.P, s.ps = V_S + 16 * par, V_P + 8 * par, V_PS + par


class Att:
    def __init__(s, k):
        s.k = k
        s.par = 0
        s.stubs = []
        s.pubs = []
        s.slow = set()
        s.tmp = 0

    def qk_block(s, J, kwait):
        k = s.k
        mf = []
        for kvb in range(4):
            m = J.modes[kvb]
            if m == "E": continue
            for dd in range(4):
                ds = 3 - dd if SNAKE and kvb % 2 else dd
                pre = []
                if kwait: pre.append(lambda kvb=kvb, dd=dd: k.lgwait(("Kf", 4 * kvb + dd)))
                c = v(J.S + 4 * kvb, 4)
                if dd == 0:
                    c = "0" if J.first else v(V_C + 4 * J.q, 4)
                    if m == "T":
                        pre.append(f"v_mov_b32 v3, {NEG}")
                        for r in range(4):
                            src = "0" if J.first else f"v{V_C+4*J.q+r}"
                            pre.append(f"v_cndmask_b32 v{V_CT+r}, v3, {src}, s[{S_MASK+2*r}:{S_MASK+2*r+1}]")
                        c = v(V_CT, 4)
                mf.append((pre, mfma(v(J.S + 4 * kvb, 4), a(A_K + 16 * kvb + 4 * ds, 4), a(A_Q + 16 * J.q + 4 * ds, 4), c)))
        return mf

    def pv_block(s, J, vwait):
        k = s.k
        mf = []
        kss = [ks for ks in range(2) if J.modes[2 * ks] != "E"]
        for dt in range(8):
            for ks in (kss[::-1] if SNAKE and dt % 2 else kss):
                pre = [lambda ks=ks, dt=dt: k.lgwait(("Vf", 2 * dt + (ks ^ (dt & SNAKE))))] if vwait else []
                o = v(V_O + 32 * J.q + 4 * dt, 4)
                mf.append((pre, mfma(o, a(A_V + 32 * ks + 4 * dt, 4), v(J.P + 4 * ks, 4), "0" if J.first and (len(kss) == 1 or ks == (dt & SNAKE)) else o)))
        for ks in kss:
            l_ = a(A_L + 4 * J.q, 4)
            mf.append(([], mfma(l_, v(V_L, 4) if ONEV else a(A_ONE, 4), v(J.P + 4 * ks, 4), "0" if J.first and ks == 0 else l_)))
        return mf

    def sm_items(s, J, a0=None):
        items = []
        live = [e for e in range(16) if J.modes[e // 4] != "E"]
        for e in range(16):
            if e not in live: items.append(f"v_mov_b32 v{J.S+e}, {NEG}")
        for kvb in range(4):
            if J.modes[kvb] == "E" and J.modes[kvb & 2] != "E":
                items.append(f"v_mov_b32 v{J.P+2*kvb}, 0\nv_mov_b32 v{J.P+2*kvb+1}, 0")
        t = lambda e: V_T + e % 4
        n = len(live)
        if J.first:
            mx, C = 26, V_C + 4 * J.q
            head = [f"v_max3_f32 v{mx}, v{J.S}, v{J.S+1}, v{J.S+2}"]
            head += [f"v_max3_f32 v{mx}, v{mx}, v{J.S+e}, v{J.S+e+1}" for e in range(3, n - 1, 2)]
            head += [f"v_max_f32 v{mx}, v{mx}, v{J.S+n-1}"]
            for sw in (16, 32):
                head += [f"v_mov_b32 v27, v{mx}", f"v_permlane{sw}_swap_b32 v{mx}, v27", f"v_max_f32 v{mx}, v{mx}, v27"]
            head += [f"v_sub_f32 v{C+r}, 0xc2cc0000, v{mx}" for r in range(4)]
            head += [f"v_add_f32 v{J.S+e}, v{J.S+e}, v{C}" for e in range(n)]
            items += [It(h_, lo=a0 + n + 3) for h_ in head]
        done, checked = [], not J.first or J.q == LASTQ
        for e in range(n + 1):
            if e < n: items.append(It(f"v_exp_f32 v{t(e)}, v{J.S+e}", lo=None if a0 is None else a0 + 4 * (e // 4) + 7))
            if e >= 2 and e % 2 == 0:
                p = e - 2
                items.append(f"v_cvt_pk_bf16_f32 v{J.P+p//2}, v{t(p)}, v{t(p+1)}")
                done.append(J.P + p // 2)
                if checked and p == 4: items.append(f"v_or3_b32 v{J.ps}, v{done[0]}, v{done[1]}, v{done[2]}"); done = []
                elif checked and p > 4 and len(done) == 2: items.append(f"v_or3_b32 v{J.ps}, v{J.ps}, v{done[0]}, v{done[1]}"); done = []
        if checked:
            items.append(f"v_or_b32 v{J.ps}, v{done[0]}, v{done[1]}" if n == 4 else f"v_or_b32 v{J.ps}, v{J.ps}, v{done[0]}")
            items.append(f"v_and_b32 v{J.ps}, s{S_THR}, v{J.ps}")
        return [x if isinstance(x, It) else It(x) for x in items]

    def check_items(s, J):
        k = s.k
        out, back = k.label("so"), k.label("sb")
        s.stubs.append((out, back, J.q, J.par))
        s.slow.add((J.q, J.par))
        a1 = f"v_cmp_ne_u32 vcc, 0, v{J.ps}"
        a2 = f"s_cbranch_vccnz {out}\n{back}:"
        return a1, a2

    def kv_reads(s, which):
        k = s.k
        items = []
        for i in range(16):
            if which == "K":
                f = i ^ 3 if SNAKE and i & 4 else i
                items.append(lambda i=i, f=f: k.lgop(f"ds_read_b128 {a(A_K+4*f,4)}, v{V_RA} offset:{16384+1024*f}", ("Kf", i)))
            else:
                dt, ks = divmod(i, 2)
                ks ^= dt & SNAKE
                items.append(lambda i=i, dt=dt, ks=ks: k.lgop(
                    f"ds_read_b128 {a(A_V+32*ks+4*dt,4)}, v{V_RA} offset:{8192*ks+1024*dt}", ("Vf", i)))
        return items

    def dma_items(s, gen):
        k = s.k
        items = []
        for part, sr in enumerate((SV, SK)):
            for jj in range(4):
                pre = []
                if jj == 0:
                    pre = [f"s_mov_b32 m0, s{S_WR}"] if part == 0 else [f"s_add_u32 m0, s{S_WR}, 16384", f"s_add_u32 s{S_DSO}, s{S_DSO}, {KV_TS}"]
                for x in pre: items.append(It(x))
                items.append(It(lambda sr=sr, jj=jj: k.vmop(
                    f"buffer_load_dwordx4 v{V_DVO}, s[{sr}:{sr+3}], s{S_DSO} offen offset:{jj*1024}{SC1} lds", ("D", gen)), "d"))
        return items

    def period(s, specs, dma=True, nextk=True, extra=None, last=False, first=False, drain=False):
        k = s.k
        jobs = []
        for q, m in specs:
            jobs.append(Job(q, m, s.par, first)); s.par ^= 1
        mf, pos, pvpos = [], [], []
        V, ctl = [], []
        prev, prev_sm, pstart = s.pend, s.psm, 0
        for j, J in enumerate(jobs):
            a0 = len(mf)
            blk = s.qk_block(J, kwait=True)
            mf += blk
            L = len(blk)
            if prev is not None and prev.first and j > 0:
                V += window(prev_sm, pstart, a0 + L - 2)
            elif prev is not None:
                e = a0 + min(SME, L - 3)
                V += window(prev_sm, pstart, e)
                c1, c2 = s.check_items(prev)
                V += window([c1], e, e + 1)
                ctl2 = window([c2], min(e + 2, a0 + L - 1), min(e + 4, a0 + L - 1))
                ctl += ctl2
            if j == 0:
                bpos = a0 + (BPOS if BPOS < min(SME, L - 3) else L - 1)
                def bar():
                    k.lgwait([("Kf", i_) for i_ in range(16)])
                    k.vmdrain() if drain else k.vmwait(("D", 0))
                    k("s_barrier")
                    if first: stamp(k, 24, getattr(s, "ts", False))
                    if not first:
                        out, back = k.label("fo"), k.label("fb")
                        if not k.dry: s.pubs.append((out, back))
                        k(f"s_sub_u32 s{S_PC}, s{S_PC}, 1\ns_cbranch_scc1 {out}\n{back}:")
                bi = It(bar, "s"); bi.cost = 28 if first else 38
                bw = window([bi], bpos, bpos)
                if prev is not None and bpos < e: ctl[:0] = bw
                else: ctl += bw
            b0 = len(mf)
            blk = s.pv_block(prev, vwait=True) if prev is not None else []
            mf += blk
            pvpos.append((b0, len(blk)))
            pos.append((a0, L))
            pstart = a0 + (L if first else min(SM0, L))
            prev, prev_sm = J, s.sm_items(J, a0)
        n = len(mf)
        if last:
            V += window(prev_sm, pstart, n - 1); prev_sm = []
        else:
            take = len(prev_sm) - CARRY if prev.modes == FULL else (len(prev_sm) * (n - pstart)) // (n - pstart + SM0)
            V += window(prev_sm[:take], pstart, n - 1)
            prev_sm = [it.x for it in prev_sm[take:]]
        streams = [V, ctl]
        b0, Lb = pvpos[0]
        vend = pvpos[1][0] - 4 if len(pvpos) > 1 else n - 1
        rv = [It(x, "r", lo=max(bpos + 1, b0 + max(0, min(i, Lb - 1)))) for i, x in enumerate(s.kv_reads("V"))]
        streams.append(window(rv, b0 if Lb else bpos + 1, vend))
        if nextk:
            a0, L = pos[-1]
            rk = [It(x, "r", lo=a0 + min(i, L - 1)) for i, x in enumerate(s.kv_reads("K"))]
            streams.append(window(rk, a0, n - 2))
        if dma:
            streams.append(window(s.dma_items(3), bpos + 1, n - 6))
        for lo, hi, items in (extra(pos, pvpos, n) if extra else []):
            streams.append(window(items, lo, hi))
        if not last:
            streams.append(window([f"s_add_u32 s{S_NWR}, s{S_RD}, s{S_W4K}", f"s_add_u32 s{S_RD}, s{S_RD}, 32768",
                                   f"s_and_b32 s{S_RD}, s{S_RD}, 0x1ffff"], n - 12, n - 5))
            streams.append(window([f"s_mov_b32 s{S_WR}, s{S_NWR}", f"v_add_u32 v{V_RA}, s{S_RD}, v{V_L16}"], n - 1, n - 1))
        pack(k, mf, streams)
        k.vm = [("D", t[1] - 1) if isinstance(t, tuple) and t[0] == "D" else t for t in k.vm]
        s.pend, s.psm = Job(prev.q, prev.modes, prev.par), prev_sm

    def loop(s, specs, count_expr):
        k = s.k
        top, end = k.label("lp"), k.label("le")
        k(count_expr)
        k(f"s_cmp_eq_u32 s{S_CNT}, 0\ns_cbranch_scc1 {end}\n{top}:")
        got = [t for t in k.vm if isinstance(t, tuple) and t[0] == "D"]
        k.vm = [("D", g) for g in range(3) for _ in range(8)]
        assert got == k.vm[len(k.vm) - len(got):]
        for i in range(16): k.lgt[("Kf", i)] = k.clock - 32 + 2 * i
        vm0, lg0, par0, psm0, pq = list(k.vm), list(k.lg), s.par, list(s.psm), (s.pend.q, s.pend.par, s.pend.modes)
        s.period(specs)
        k(f"s_sub_u32 s{S_CNT}, s{S_CNT}, 1\ns_cmp_lg_u32 s{S_CNT}, 0\ns_cbranch_scc1 {top}\n{end}:")
        assert k.vm == vm0, (k.vm, vm0)
        assert k.lg == lg0[len(lg0) - len(k.lg):], (k.lg, lg0)
        k.lg = lg0
        assert s.par == par0 and s.psm == psm0 and (s.pend.q, s.pend.par, s.pend.modes) == pq

    def drain(s):
        k = s.k
        J = s.pend
        c1, c2 = s.check_items(J)
        k(c1); k("s_nop 1"); k(c2)
        k.stream(s.pv_block(J, vwait=True), {})

    def out_items(s, q):
        k = s.k
        l, O = 26 + q % 2, V_O + 32 * q
        items = [f"v_accvgpr_read_b32 v{l}, a{A_L+4*q}", f"v_rcp_f32 v{l}, v{l}", f"v_mul_f32 v{l}, 0x1f800000, v{l}"]
        for ds in range(4):
            x = O + 8 * ds
            for r in range(0, 8, 2):
                items.append(f"v_mul_f32 v{x+r}, v{x+r}, v{l}\nv_mul_f32 v{x+r+1}, v{x+r+1}, v{l}")
                items.append(f"v_cvt_pk_bf16_f32 v{x+r//2}, v{x+r}, v{x+r+1}")
            items.append(It(lambda x=x, ds=ds: k.vmop(
                f"buffer_store_dwordx4 {v(x,4)}, v{V_L16}, s[{SCTX}:{SCTX+3}], s{S_RB+q} offen offset:{ds*1024}{SC1}", "st"), "d", store=True))
        return [x if isinstance(x, It) else It(x) for x in items]

    def emit_slow(s):
        k = s.k
        for out, back, q, par in s.stubs:
            k(f"{out}:\ns_call_b64 s[{S_RET}:{S_RET+1}], {k.name}_slow{q}{par}\ns_branch {back}")
        for out, back in s.pubs:
            k(f"{out}:\ns_call_b64 s[{S_RET}:{S_RET+1}], {k.name}_evt\ns_branch {back}")
        e2, e3, e4, ret = (k.label(x) for x in ("e2", "e3", "e4", "er"))
        vt = V_X + 24
        k(f"{k.name}_evt:\ns_add_u32 s{S_EV}, s{S_EV}, 1\ns_cmp_eq_u32 s{S_EV}, 1\ns_cbranch_scc0 {e2}")
        if JEV:
            k.vm, k.lg = [], []
            k("s_waitcnt lgkmcnt(0)")
            run(k, jobs.finish(k, V_X, V_L16))
        k(f"s_mov_b32 s{S_PC}, {3 if JEV else 0}\ns_branch {ret}\n{e2}:\ns_cmp_eq_u32 s{S_EV}, 2\ns_cbranch_scc0 {e3}")
        publish(k, 6, V_X + 28)
        k(f"""
        s_lshl_b32 s4, s{S_I}, 1
        s_sub_u32 s4, 14, s4
        s_max_i32 s{S_PC}, s4, 2
        s_branch {ret}
        {e3}:
        s_cmp_eq_u32 s{S_EV}, 3
        s_cbranch_scc0 {e4}
        buffer_load_dword v{vt}, v15, s[{S_FL}:{S_FL+3}], 0 offen sc1
        s_mov_b32 s{S_PC}, 2
        """)
        if "b" in CW: code_warm(k, k.name + "_cB", k.name + "_cend", V_X + 28, "a255", back=True)
        k(f"""
        s_branch {ret}
        {e4}:
        s_mov_b32 s{S_PC}, 64
        v_cmp_ne_u32 vcc, s{S_TAG}, v{vt}
        s_nop 0
        s_cbranch_vccz {ret}
        """)
        await_flags(k, 15, vt)
        k(f"{ret}:\ns_setpc_b64 s[{S_RET}:{S_RET+1}]")
        for q, par in sorted(s.slow):
            J = Job(q, FULL, par)
            mx, t, al = V_X + 1, V_X + 2, V_X + 3
            nf, join = k.label("nf"), k.label("sj")
            k(f"{k.name}_slow{q}{par}:\nv_max3_f32 v{mx}, v{J.S}, v{J.S+1}, v{J.S+2}")
            for e in range(3, 15, 2): k(f"v_max3_f32 v{mx}, v{mx}, v{J.S+e}, v{J.S+e+1}")
            k(f"""
            v_max_f32 v{mx}, v{mx}, v{J.S+15}
            v_mov_b32 v{t}, v{mx}
            s_nop 1
            v_permlane16_swap_b32 v{mx}, v{t}
            v_max_f32 v{mx}, v{mx}, v{t}
            v_mov_b32 v{t}, v{mx}
            s_nop 1
            v_permlane32_swap_b32 v{mx}, v{t}
            v_max_f32 v{mx}, v{mx}, v{t}
            v_add_f32 v{mx}, 0x42cc0000, v{mx}
            v_max_f32 v{mx}, 0, v{mx}
            v_sub_f32 v{al}, 0, v{mx}
            v_exp_f32 v{al}, v{al}
            v_accvgpr_read_b32 v{t}, a{A_L+4*q}
            v_mul_f32 v{t}, v{t}, v{al}
            v_accvgpr_write_b32 a{A_L+4*q}, v{t}
            """)
            for r in range(32): k(f"v_mul_f32 v{V_O+32*q+r}, v{V_O+32*q+r}, v{al}")
            for r in range(4): k(f"v_sub_f32 v{V_C+4*q+r}, v{V_C+4*q+r}, v{mx}")
            for e in range(16): k(f"v_sub_f32 v{V_X+4+e}, v{J.S+e}, v{mx}")
            for e in range(16): k(f"v_exp_f32 v{V_X+4+e}, v{V_X+4+e}")
            for e in range(8): k(f"v_cvt_pk_bf16_f32 v{J.P+e}, v{V_X+4+2*e}, v{V_X+5+2*e}")
            k(f"s_nop 1\ns_setpc_b64 s[{S_RET}:{S_RET+1}]")


def diag_modes(blk):
    return "".join("F" if b < blk else "T" if b == blk else "E" for b in range(4))


QACC = (ACC_Q0, ACC_Q1)


def q_phase(k, A, base):
    steps = [dict(srd=SWQ, col=128 * (s_ % 2), mode="Q", kc=s_ // 2, acc=QACC[s_ % 2]) for s_ in range(8)]
    setup = f"""
    v_lshlrev_b32 v{V_L16}, 4, v0
    v_add_u32 v{V_DVO}, s{S_W4K}, v{V_L16}
    s_lshl_b32 s5, s{S_I}, 3
    s_sub_u32 s6, 120, s5
    s_sub_u32 s7, 7, s3
    s_add_u32 s{S_RB}, s5, s3
    s_add_u32 s{S_RB+1}, s5, s7
    s_add_u32 s{S_RB+2}, s6, s3
    s_add_u32 s{S_RB+3}, s6, s7
    s_lshl_b32 s{S_RB}, s{S_RB}, 14
    s_lshl_b32 s{S_RB+1}, s{S_RB+1}, 14
    s_lshl_b32 s{S_RB+2}, s{S_RB+2}, 14
    s_lshl_b32 s{S_RB+3}, s{S_RB+3}, 14
    """
    su = [It(l_.strip()) for l_ in setup.strip().split("\n")]

    class Rec:
        def __init__(s): s.items = []
        def __call__(s, t): s.items.append(It(t, "s"))
    R = Rec()
    R(f"s_lshl_b32 s5, s{S_H}, 8\ns_sub_u32 s6, 0x400000, s5")
    srd(R, SWQ, P['wq'], P['wq'] + 1, "s5", "s6")
    if os.environ.get("XNSRC"): srd(R, SXN, P['ckv'], P['ckv'] + 1, 0, 2 * MB)
    else: srd(R, SXN, P['ws'], P['ws'] + 1, WS_XN, 2 * MB)
    R(f"s_mul_i32 s5, s{S_H}, {KV_HS}\ns_add_u32 s5, s5, {WS_K}\ns_sub_u32 s6, 16, s{S_I}\ns_mul_i32 s6, s6, {2*KV_TS}")
    srd(R, SK, P['ws'], P['ws'] + 1, "s5", "s6")
    R(f"s_sub_u32 s5, s5, {WS_K - WS_V}")
    srd(R, SV, P['ws'], P['ws'] + 1, "s5", "s6")
    su += R.items

    def xn_items(kc, bs):
        out = []
        for b in bs:
            out.append(It(f"s_add_u32 s5, s{S_RB+b}, {kc*4096}"))
            for ks in range(4):
                out.append(L(lambda b=b, ks=ks: k.vmop(
                    f"buffer_load_dwordx4 {a(64*b+16*kc+4*ks,4)}, v{V_L16}, s[{SXN}:{SXN+3}], s5 offen offset:{ks*1024}{XNSC}", ("XN", kc, b)), "d"))
        return out

    def k0_dma():
        return [It(f"s_add_u32 m0, s{S_W4K}, 16384")] + [L(lambda jj=jj: k.vmop(
            f"buffer_load_dwordx4 v{V_DVO}, s[{SK}:{SK+3}], 0 offen offset:{jj*1024}{SC1} lds", "K0"), "d") for jj in range(4)]

    def pair_dma(p):
        return [It(f"s_add_u32 s{S_WR}, s{S_W4K}, {((p+1) % 4)*32768}"), It(f"s_mov_b32 s{S_DSO}, {p * KV_TS}")] + A.dma_items(p)

    def epi(step):
        if step < base + 6: return []
        g = QACC[(step - base) % 2]
        items = []
        for b in range(4):
            for j in range(2):
                x, y = g[8 * j + b], g[8 * j + 4 + b]
                for z in (x, y):
                    for r in range(0, 4, 2):
                        items.append(It(f"v_mul_f32 v{z+r}, {QSCALE}, v{z+r}\nv_mul_f32 v{z+r+1}, {QSCALE}, v{z+r+1}"))
                        items.append(It(f"v_cvt_pk_bf16_f32 v{x + (2 if z == y else 0) + r//2}, v{z+r}, v{z+r+1}"))
        return items
    return steps, su, xn_items, k0_dma, pair_dma, epi


def att_phase(k, A, pair_dma, ts, st0, before_b, early):
    k.vmwait("K0")
    k("s_barrier")
    k(f"v_mov_b32 v{V_RA}, v{V_L16}")
    for it in A.kv_reads("K"): it()
    jobs.issue(k)
    k(f"s_mov_b32 s{S_DSO}, {3 * KV_TS}\ns_mov_b32 s{S_WR}, s{S_W4K}\ns_mov_b32 s{S_RD}, 32768")
    k(f"v_add_u32 v{V_RA}, 32768, v{V_L16}")
    k(f"s_lshl_b32 s4, s{S_H}, 12\ns_add_u32 s4, s4, {WS_CTX}")
    srd(k, SCTX, P['ws'], P['ws'] + 1, "s4", 16 * MB)
    k("v_lshrrev_b32 v2, 4, v0\nv_lshlrev_b32 v2, 2, v2\nv_and_b32 v3, 15, v0\nv_sub_u32 v2, v3, v2")
    for r in range(4): k(f"v_cmp_le_i32 s[{S_MASK+2*r}:{S_MASK+2*r+1}], {r}, v2")
    for b in range(4):
        for g in range(2):
            for j in range(2):
                x = QACC[g][8 * j + b]
                for r in range(4): k(f"v_accvgpr_write_b32 a{A_Q+16*b+4*(2*g+j)+r}, v{x+r}")
    k("v_mov_b32 v3, 0x3f803f80")
    for r in range(4): k(f"v_mov_b32 v{V_L+r}, v3" if ONEV else f"v_accvgpr_write_b32 a{A_ONE+r}, v3")
    k(f"s_mov_b32 s{S_THR}, 0x60006000\ns_mov_b32 s{S_PC}, 2\ns_mov_b32 s{S_EV}, 0")
    k(f"s_lshl_b32 s4, s3, 13\ns_add_u32 s4, s4, {FOFF[6]}\nv_lshlrev_b32 v15, 7, v0\nv_add_u32 v15, s4, v15")
    for q in range(4): k(f"s_lshl_b32 s{S_RB+q}, s{S_RB+q}, 3")
    A.pend, A.psm = None, []
    k.beam = not os.environ.get("NOBEAM")
    if "a" in CW: code_warm(k, k.name + "_cA", k.name + "_cend", 2, "a255")
    k(f"{k.name}_cA:")
    stamp(k, st0, ts)
    shared = [(0, FULL), (1, FULL), (3, FULL), (2, FULL)]
    single = [(3, FULL), (2, FULL)]
    canon = lambda: [t for t in k.vm if isinstance(t, tuple) and t[0] == "D"]
    snap = lambda: (list(k.vm), list(k.lg), A.par, A.pend, list(A.psm))
    key = lambda: (canon(), list(k.lg), A.par, A.pend.q, A.pend.par, list(A.psm))

    def restore(st):
        k.vm, k.lg, A.par, A.pend, A.psm = list(st[0]), list(st[1]), st[2], st[3], list(st[4])

    def first_period(m0):
        zero = [f"v_mov_b32 v{V_O+32*LASTQ+r}, 0" for r in range(32)] + [f"v_accvgpr_write_b32 a{A_L+4*LASTQ+r}, 0" for r in range(4)]
        A.period([(0, m0)] + shared[1:], first=True,
                 extra=lambda pos, pv, n: [(0, 14 if m0 == FULL else n - 1, zero)] + ([] if JEV else [(n - 60, n - 1, jobs.finish(k, V_X, V_L16))]))

    def variants(fn, tail=None):
        labs = [k.label(f"w{w}") for w in range(4)]
        join = k.label("vj")
        st = snap()
        res_ = None
        for w in range(4):
            k(f"{labs[w]}:")
            if w < 3: k(f"s_cmp_eq_u32 s3, {w}\ns_cbranch_scc0 {labs[w+1]}")
            restore(st)
            fn(w)
            k.vm = canon()
            assert res_ is None or res_ == key(), (res_, key())
            res_ = key()
            if tail: k(f"s_branch {tail[w]}")
            elif w < 3: k(f"s_branch {join}")
        k(f"{join}:")
        return res_

    a2 = [k.label(f"a2w{w}") for w in range(4)]
    gen_ = k.label("gen")
    st0_ = snap()
    k(f"s_cmp_eq_u32 s{S_I}, 0\ns_cbranch_scc0 {gen_}")
    key0 = variants(lambda w: first_period(diag_modes(w)), tail=a2)
    k(f"{gen_}:")
    restore(st0_)
    A.ts = ts
    first_period(FULL)
    A.ts = False
    stamp(k, 25, ts)
    A.loop(shared, f"s_lshl_b32 s{S_CNT}, s{S_I}, 1\ns_sub_u32 s{S_CNT}, s{S_CNT}, 1")
    stamp(k, st0 + 1, ts)

    def diagA(w):
        A.period([(0, diag_modes(w)), (1, FULL), (3, FULL), (2, FULL)])
        k.vm = canon()
        full = [("D", g) for g in range(3) for _ in range(8)]
        assert key()[1:] == key0[1:] and key0[0] == full[-len(key0[0]):] and k.vm == full[-len(k.vm):]
        k.vm = full
        k(f"{a2[w]}:")
        A.period([(1, diag_modes(3 - w)), (3, FULL), (2, FULL)],
                 extra=lambda pos, pv, n: [(2, pv[1][0] - 1, A.out_items(0)), (pv[2][0] - 4, n - 1, A.out_items(1))])
    variants(diagA)
    stamp(k, st0 + 2, ts)
    A.loop(single, f"s_lshl_b32 s4, s{S_I}, 2\ns_sub_u32 s{S_CNT}, 28, s4")
    stamp(k, st0 + 3, ts)

    k(f"{k.name}_cB:")
    before_b()

    def diagB(w):
        A.period([(3, FULL), (2, diag_modes(w))], dma=False, drain=True, extra=lambda pos, pv, n: [(pv[0][0], n - 1, early()[:NE])])
        rest = early()[NE:] if NE else []
        A.period([(3, diag_modes(3 - w))], dma=False, nextk=False, last=True, extra=lambda pos, pv, n: [(0, n - 1, rest)])
        o2 = A.out_items(2)
        J = A.pend
        c1, c2 = A.check_items(J)
        k(c1); run(k, o2[:3]); k("s_nop 0"); k(c2)
        blk = A.pv_block(J, vwait=True)
        pack(k, blk, [window(o2[3:], 0, len(blk) - 1)])
        run(k, A.out_items(3))
        k.lg = []
        A.psm = []
    if not NE: k(f"s_mov_b32 s5, s{S_WR}\ns_mov_b32 s38, s5")
    variants(diagB)
    k.beam = os.environ.get("BEAM", "att") == "all"
```

```python
from emit import *
from k1 import run, L, SC1
from k35 import reduce_addr, reduce_items

SA, SB, SR, SO, SS = 8, 20, 28, 24, 88
X0 = 244
S_R, S_C, S_P0, S_WB, S_T, S_L0, S_L1, S_L2 = 40, 41, 42, 43, 44, 45, 48, 49
V_AO, V_LA = 4, 8
V_TMP, V_ACC = 16, 64
import os
NA_AG, NA_LDS, NA_VG, NA_AG2 = 4, 6, 8, int(os.environ.get('NA2', '6'))


def setup(k):
    k(f"""
    s_and_b32 s{S_R}, s2, 7
    s_lshl_b32 s{S_R}, s{S_R}, 2
    s_bfe_u32 s5, s2, 0x20003
    s_add_u32 s{S_R}, s{S_R}, s5
    s_lshr_b32 s{S_C}, s2, 5
    s_lshl_b32 s{S_P0}, s{S_C}, 12
    s_lshl_b32 s{S_WB}, s3, 15
    """)
    k(f"s_lshl_b32 s5, s{S_C}, 19\ns_add_u32 s5, s5, {WS_WO}"); srd(k, SA, P['ws'], P['ws'] + 1, "s5", 4 * 131072)
    k(f"s_lshl_b32 s5, s{S_R}, 19\ns_add_u32 s5, s5, {WS_CTX}"); srd(k, SB, P['ws'], P['ws'] + 1, "s5", 4 * 131072)
    k(f"v_lshlrev_b32 v{V_AO}, 4, v0")
    for t in range(1, 4): k(f"v_add_u32 v{V_AO+t}, {t*131072}, v{V_AO}")
    k(f"""
    s_lshr_b32 s5, s{S_R}, 1
    s_sub_u32 s6, 15, s5
    s_min_u32 s5, s5, s6
    s_lshl_b32 s5, s5, 5
    s_lshl_b32 s6, s3, 1
    s_add_u32 s5, s5, s6
    s_lshl_b32 s5, s5, 7
    s_add_u32 s5, s5, {FOFF[3]}
    v_bfe_u32 v11, v0, 2, 1
    v_and_b32 v2, 3, v0
    v_lshl_add_u32 v11, v2, 3, v11
    v_lshlrev_b32 v11, 7, v11
    v_add_u32 v11, s5, v11
    s_lshl_b32 s5, s{S_R}, 2
    s_add_u32 s5, s5, s3
    s_lshl_b32 s5, s5, 14
    s_lshl_b32 s6, s{S_C}, 7
    s_add_u32 s6, s6, s5
    """)
    srd(k, SR, P['x'], P['x'] + 1, "s6", 15 * 1024 + 128)


def soff(b):
    return It(f"s_add_u32 s{S_T}, s{S_P0}, {b*2048}\ns_and_b32 s{S_T}, s{S_T}, 0x7fff\ns_add_u32 s{S_T}, s{S_T}, s{S_WB}", "s")


def a_reg(p, t):
    if p < NA_AG: return a((16 * p if p < 2 else 192 + 16 * p) + 4 * t, 4)
    p -= NA_AG + NA_LDS
    if p < 0: return None
    if p < NA_VG: return v(128 + 16 * p + 4 * t, 4)
    p -= NA_VG
    if p < NA_AG2: return a(96 + 16 * p + 4 * t, 4)
    return "ring"


def a_loads(k, b):
    items = [soff(b)]
    for ks in range(2):
        for t in range(4):
            items.append(L(lambda ks=ks, t=t: k.vmop(
                f"buffer_load_dwordx4 {a_reg(2*b+ks, t)}, v{V_AO+t}, s[{SA}:{SA+3}], s{S_T} offen offset:{ks*1024}{SC1}", ("A", b)), "d"))
    return items


def early_items(k, s_wr, s_w4k):
    items = a_loads(k, 0) + a_loads(k, 1)
    items += [It(f"s_lshl_b32 s{S_L0}, s3, 13\ns_add_u32 s{S_L0}, s{S_L0}, 131072", "s"),
              It(f"s_add_u32 s{S_L1}, s{s_wr}, s{s_w4k}", "s"),
              It(f"s_sub_u32 s{S_L2}, s{S_L1}, 32768\ns_and_b32 s{S_L2}, s{S_L2}, 0x1ffff", "s")]
    for j, sl in enumerate((S_L0, S_L1, S_L2)):
        items.append(It(f"v_add_u32 v{V_LA+j}, s{sl}, v{V_AO}"))
        items.append(soff(2 + j))
        for t in range(4):
            items.append(It(f"s_add_u32 m0, s{sl}, {t*2048}"))
            for ks in range(2):
                items.append(L(lambda ks=ks, t=t, j=j: k.vmop(
                    f"buffer_load_dwordx4 v{V_AO+t}, s[{SA}:{SA+3}], s{S_T} offen offset:{ks*1024}{SC1} lds", ("A", 2 + j)), "d"))
    return items


def o_phase(k, ts, st0):
    X = 56
    k(f"""
    v_lshrrev_b32 v12, 3, v0
    v_and_b32 v13, 7, v0
    v_lshlrev_b32 v13, 4, v13
    v_lshl_add_u32 v12, v12, 10, v13
    v_and_b32 v13, 15, v0
    v_lshlrev_b32 v13, 7, v13
    v_lshrrev_b32 v14, 4, v0
    v_lshl_add_u32 v13, v14, 3, v13
    v_add_u32 v15, s{S_L0}, v13
    """)
    xdma = [It(f"s_mov_b32 m0, s{S_L0}"), It(f"s_mov_b32 s4, 7168")]
    xdma += [L(lambda j=j: k.vmop(f"buffer_load_dwordx4 v12, s[{SR}:{SR+3}], {'s4' if j else '0'} offen offset:{1024*j} lds", "X"), "d") for j in range(2)]
    xrd = [L(lambda: k.vmwait("X"), "s")] + [L(lambda nt=nt: k.lgop(f"ds_read_b64 {v(X+2*nt,2)}, v15 offset:{32*nt}", "XR"), "r") for nt in range(4)]
    for b in range(5, 9 + NA_AG2 // 2): run(k, a_loads(k, b))
    k(f"s_lshl_b32 s5, s{S_R}, 2\ns_add_u32 s5, s5, s3\ns_lshl_b32 s5, s5, 14")
    k(f"s_lshl_b32 s4, s{S_C}, 11\ns_add_u32 s4, s4, s5\ns_add_u32 s4, s4, {WS_H}"); srd(k, SO, P['ws'], P['ws'] + 1, "s4", 2048)
    k(f"s_lshr_b32 s5, s5, 4\ns_lshl_b32 s4, s{S_C}, 7\ns_add_u32 s4, s4, s5\ns_add_u32 s4, s4, {WS_ST}"); srd(k, SS, P['ws'], P['ws'] + 1, "s4", 128)
    await_flags(k, 11, 2)
    stamp(k, st0, ts)

    free = [32 + 4 * q for q in range(16)] + [192 + 4 * q for q in range(8)] + [96 + 16 * NA_AG2 + 4 * q for q in range(4 * (6 - NA_AG2))]
    Bq, Aq = {}, {}

    def stream(b):
        items = [soff(b)]
        Bq[b] = [free.pop(0) for _ in range(8)]
        if a_reg(2 * b, 0) == "ring": Aq[b] = [free.pop(0) for _ in range(8)]
        for ks in range(2):
            for t in range(4):
                items.append(L(lambda ks=ks, t=t: k.vmop(
                    f"buffer_load_dwordx4 {a(Bq[b][4*ks+t],4)}, v{V_AO+t}, s[{SB}:{SB+3}], s{S_T} offen offset:{ks*1024}{SC1}", ("B", b)), "d"))
                if b in Aq:
                    items.append(L(lambda ks=ks, t=t: k.vmop(
                        f"buffer_load_dwordx4 {a(Aq[b][4*ks+t],4)}, v{V_AO+t}, s[{SA}:{SA+3}], s{S_T} offen offset:{ks*1024}{SC1}", ("B", b)), "d"))
        return items

    def lds_reads(b):
        j = b - 2
        return [L(lambda ks=ks, t=t: k.lgop(
            f"ds_read_b128 {v(V_TMP + 4*((8*j + 2*t + ks) % 10), 4)}, v{V_LA+j} offset:{t*2048+ks*1024}", ("AL", b, t)), "r")
            for t in range(4) for ks in range(2)]
    tmpq = lambda b, ks, t: v(V_TMP + 4 * ((8 * (b - 2) + 2 * t + ks) % 10), 4)

    nxt = 0
    while len(free) >= 8: run(k, stream(nxt)); nxt += 1
    for b in range(16):
        mf, streams, rd = [], [], []
        lds = 2 <= b <= 4
        for nt in range(4):
            for rr in range(4):
                rb = rr if nt % 2 == 0 else 3 - rr
                for kk in range(2):
                    ks = kk if rr % 2 == 0 else 1 - kk
                    pre = [lambda: k.vmwait([("B", b), ("A", b)])] if not mf else []
                    if lds and rr == 0 and kk == 0: pre.append(lambda nt=nt: k.lgwait(("AL", b, nt)))
                    A = tmpq(b, ks, nt) if lds else a(Aq[b][4 * ks + nt], 4) if b in Aq else a_reg(2 * b + ks, nt)
                    acc = v(V_ACC + 16 * rb + 4 * nt, 4)
                    mf.append((pre, mfma(acc, A, a(Bq[b][4 * ks + rb], 4), "0" if b == 0 and kk == 0 else acc)))
        if 2 <= b + 1 <= 4:
            its = lds_reads(b + 1)
            if b == 1:
                rd = [L(lambda: k.vmwait(("A", 4)), "s")] + its
                streams.append(window(rd, 2, 24))
            else:
                streams.append(window(its[:2], 0, 6) + [x for j_ in range(3) for x in window(its[2 + 2*j_:4 + 2*j_], 8 * j_ + 8, 8 * j_ + 14)])
        its = []
        while nxt < 16 and len(free) >= (16 if a_reg(2 * nxt, 0) == "ring" else 8):
            its += stream(nxt); nxt += 1
        if b == 4: its = xdma + its
        streams.append(window(its, 0, 30))
        if b == 12: streams.append(window(xrd, 0, 12))
        if b == 6:
            streams.append(window([It("s_barrier")] + reduce_addr(k, 256, 1024, 12), 4, 24))
        if b == 15: streams.append(reduce_items(k, [(rr if nt % 2 == 0 else 3 - rr, nt) for nt in range(4) for rr in range(4)], 2, V_ACC, 1024, 12))
        pack(k, mf, streams)
        free += Bq[b] + Aq.get(b, [])
        for p in (2 * b, 2 * b + 1):
            r_ = a_reg(p, 0)
            if r_ and r_.startswith("a["): free += [int(r_[2:r_.index(":")]) + 4 * t for t in range(4)]
    stamp(k, st0 + 1, ts)
    V_T = 128
    k(f"s_lshl_b32 s4, s3, 12\nv_add_u32 v13, s4, v{V_AO}\nv_lshlrev_b32 v14, 3, v0")
    k.lgdrain()
    k("s_barrier")
    for w in range(4):
        for nt in range(4):
            k.lgop(f"ds_read_b128 {v(V_T+16*w+4*nt,4)}, v13 offset:{w*16384+nt*1024}", ("rr", w))
    k.lgwait(("rr", 1))
    for r in range(16): k(f"v_add_f32 v{V_T+r}, v{V_T+r}, v{V_T+16+r}")
    k.lgwait(("rr", 3))
    for r in range(16): k(f"v_add_f32 v{V_T+32+r}, v{V_T+32+r}, v{V_T+48+r}")
    for r in range(16): k(f"v_add_f32 v{V_T+r}, v{V_T+r}, v{V_T+32+r}")
    H, U = 24, V_T + 16
    for j in range(8):
        k(f"""
        v_cvt_pk_bf16_f32 v{H+j}, v{V_T+2*j}, v{V_T+2*j+1}
        v_lshlrev_b32 v{U+2*j}, 16, v{X+j}
        v_and_b32 v{U+2*j+1}, 0xffff0000, v{X+j}
        v_lshlrev_b32 v{V_T+2*j}, 16, v{H+j}
        v_and_b32 v{V_T+2*j+1}, 0xffff0000, v{H+j}
        v_add_f32 v{U+2*j}, v{U+2*j}, v{V_T+2*j}
        v_add_f32 v{U+2*j+1}, v{U+2*j+1}, v{V_T+2*j+1}
        v_cvt_pk_bf16_f32 v{H+j}, v{U+2*j}, v{U+2*j+1}
        """)
    for j in range(2):
        k.vmop(f"buffer_store_dwordx4 {v(H+4*j,4)}, v{V_AO}, s[{SO}:{SO+3}], 0 offen offset:{1024*j}{SC1}", "st")
    for j in range(8):
        k(f"v_lshlrev_b32 v{U+2*j}, 16, v{H+j}\nv_and_b32 v{U+2*j+1}, 0xffff0000, v{H+j}")
    k(f"v_add_f32 v32, v{U}, v{U+1}")
    for j in range(2, 16): k(f"v_add_f32 v32, v32, v{U+j}")
    xlane_sum(k, 32, 3, ["p16", "p32"])
    k(f"v_mul_f32 v32, 0x3c800000, v32\nv_sub_f32 v3, v{U}, v32\nv_mul_f32 v33, v3, v3")
    for j in range(1, 16): k(f"v_sub_f32 v3, v{U+j}, v32\nv_fmac_f32 v33, v3, v3")
    xlane_sum(k, 33, 3, ["p16", "p32"])
    k.vmop(f"buffer_store_dwordx2 v[32:33], v14, s[{SS}:{SS+3}], 0 offen{SC1}", "st")
```

```python
from emit import *
from k1 import seq, SC1

V_L16, V_AO, V_BO, V_ACC, V_T = 2, 4, 8, 64, 128
SA, SB, SR, SO, SS = 8, 12, 16, 20, 24
S_R, S_C, S_KO, S_KA, S_CNT = 70, 71, 72, 73, 74


def gemm_main(k, nk, per_wave, ts):
    for t in range(4):
        k(f"v_add_u32 v{V_AO+t}, {t*nk*1024}, v{V_L16}")
    k(f"s_mul_i32 s{S_KO}, s3, {per_wave*1024}")
    nb = (per_wave + 1) // 2
    short = 4 * per_wave > nk

    def loads(b):
        items = []
        kss = range(min(2, per_wave - 2 * b))
        for ks in kss:
            lastk = short and 2 * b + ks == per_wave - 1
            for t in range(4):
                for op, sr in ((0, SA), (1, SB)):
                    so = S_KA if (lastk and op == 0) else S_KO
                    items.append(It(lambda t=t, ks=ks, op=op, sr=sr, so=so: k.vmop(
                        f"buffer_load_dwordx4 {a(64*(b%4)+32*op+8*t+4*ks,4)}, v{V_AO+t}, s[{sr}:{sr+3}], s{so} offen offset:{ks*1024}{SC1}", ("L", b % 4, ks)), "d"))
        items.append(It(f"s_add_u32 s{S_KO}, s{S_KO}, 2048"))
        return items

    def batch(b, nxt):
        mf = []
        kss = list(range(min(2, per_wave - 2 * b)))
        first = True
        for nt in range(4):
            for rr in range(4):
                rb = rr if nt % 2 == 0 else 3 - rr
                for ks in (kss if rr % 2 == 0 else kss[::-1]):
                    pre = [lambda: k.vmwait([("L", b % 4, x) for x in kss])] if first else []
                    first = False
                    acc = v(V_ACC + 16 * rb + 4 * nt, 4)
                    mf.append((pre, mfma(acc, a(64 * (b % 4) + 8 * nt + 4 * ks, 4), a(64 * (b % 4) + 32 + 8 * rb + 4 * ks, 4), acc)))
        pack(k, mf, [window(loads(b + 3), 0, len(mf) - 1)] if nxt else [])

    if short:
        k(f"s_add_u32 s{S_KA}, s{S_KO}, {(per_wave-1)//2*2048}\ns_cmp_eq_u32 s3, 3\ns_cselect_b32 s{S_KA}, 0x7000000, s{S_KA}")
    for b in range(3):
        seq(k, [it.x for it in loads(b)])()
    return nb, batch


def reduce_addr(k, gs, tsz, vr):
    return [It(x) for x in (f"v_and_b32 v{vr}, 15, v0", f"v_lshlrev_b32 v{vr}, 4, v{vr}", f"v_lshrrev_b32 v3, 4, v0", f"v_mul_u32_u24 v3, {gs}, v3",
                            f"v_add_u32 v{vr}, v{vr}, v3", f"s_mul_i32 s4, s3, {16*tsz}", f"v_add_u32 v{vr}, s4, v{vr}")]


def reduce_items(k, order, per, vacc, tsz, vr):
    out = []
    for j, (rb, nt) in enumerate(order):
        it = It(lambda rb=rb, nt=nt: k.lgop(f"ds_write_b128 v{vr}, {v(vacc+16*rb+4*nt,4)} offset:{(4*rb+nt)*tsz}", "rw"), "r")
        out += window([it], per * (j + 1) + 4, 1000)
    return out


def tile_ids(k):
    k(f"""
    s_and_b32 s{S_R}, s2, 7
    s_lshl_b32 s{S_R}, s{S_R}, 2
    s_bfe_u32 s4, s2, 0x20003
    s_add_u32 s{S_R}, s{S_R}, s4
    s_lshr_b32 s{S_C}, s2, 5
    v_lshlrev_b32 v{V_L16}, 4, v0
    """)


def o_phase(k, ts, st0):
    tile_ids(k)
    k(f"""
    s_lshr_b32 s4, s{S_R}, 1
    s_sub_u32 s5, 15, s4
    s_min_u32 s4, s4, s5
    s_lshl_b32 s4, s4, 5
    s_lshl_b32 s5, s3, 1
    s_add_u32 s4, s4, s5
    s_lshl_b32 s4, s4, 7
    s_add_u32 s4, s4, {FOFF[3]}
    v_bfe_u32 v12, v0, 2, 1
    v_and_b32 v13, 3, v0
    v_lshl_add_u32 v12, v13, 3, v12
    v_lshlrev_b32 v12, 7, v12
    v_add_u32 v12, s4, v12
    """)
    await_flags(k, 12, 13)
    stamp(k, st0, ts)
    k(f"s_lshl_b32 s4, s{S_C}, 19\ns_add_u32 s4, s4, {WS_WO}"); srd(k, SA, P['ws'], P['ws'] + 1, "s4", 4 * 131072)
    k(f"s_lshl_b32 s4, s{S_R}, 19\ns_add_u32 s4, s4, {WS_CTX}"); srd(k, SB, P['ws'], P['ws'] + 1, "s4", 4 * 131072)
    nb, batch = gemm_main(k, 128, 32, ts)
    k(f"s_lshl_b32 s5, s{S_R}, 2\ns_add_u32 s5, s5, s3\ns_lshl_b32 s5, s5, 14\ns_lshl_b32 s4, s{S_C}, 7\ns_add_u32 s4, s4, s5")
    srd(k, SR, P['x'], P['x'] + 1, "s4", 15 * 1024 + 128)
    k(f"s_lshl_b32 s4, s{S_C}, 11\ns_add_u32 s4, s4, s5\ns_add_u32 s4, s4, {WS_H}"); srd(k, SO, P['ws'], P['ws'] + 1, "s4", 2048)
    k(f"s_lshr_b32 s5, s5, 4\ns_lshl_b32 s4, s{S_C}, 7\ns_add_u32 s4, s4, s5\ns_add_u32 s4, s4, {WS_ST}"); srd(k, SS, P['ws'], P['ws'] + 1, "s4", 128)
    k("v_and_b32 v12, 15, v0\nv_lshlrev_b32 v14, 3, v0\nv_lshlrev_b32 v12, 10, v12\nv_lshrrev_b32 v13, 4, v0\nv_lshl_add_u32 v12, v13, 3, v12")
    X = 16
    for nt in range(4):
        k.vmop(f"buffer_load_dwordx2 {v(X+2*nt,2)}, v12, s[{SR}:{SR+3}], 0 offen offset:{32*nt}", "X")
    for r in range(64): k(f"v_mov_b32 v{V_ACC+r}, 0")
    top = k.label("lp")
    k(f"s_mov_b32 s{S_CNT}, 3\n{top}:")
    k.vm = [t for t in k.vm if t != "X"]
    vm0 = list(k.vm)
    for b in range(4): batch(b, True)
    assert k.vm == vm0
    k(f"s_sub_u32 s{S_CNT}, s{S_CNT}, 1\ns_cmp_lg_u32 s{S_CNT}, 0\ns_cbranch_scc1 {top}")
    batch(12, True)
    for b in range(13, 16): batch(b, False)
    stamp(k, st0 + 1, ts)
    reduce_write(k, 256, 1024)
    k(f"s_lshl_b32 s4, s3, 12\nv_add_u32 v13, s4, v{V_L16}")
    for w in range(4):
        for nt in range(4):
            k.lgop(f"ds_read_b128 {v(V_T+16*w+4*nt,4)}, v13 offset:{w*16384+nt*1024}", ("rr", w))
    k.lgwait(("rr", 1))
    for r in range(16): k(f"v_add_f32 v{V_T+r}, v{V_T+r}, v{V_T+16+r}")
    k.lgwait(("rr", 3))
    for r in range(16): k(f"v_add_f32 v{V_T+32+r}, v{V_T+32+r}, v{V_T+48+r}")
    for r in range(16): k(f"v_add_f32 v{V_T+r}, v{V_T+r}, v{V_T+32+r}")
    H, U = 24, V_T + 16
    for j in range(8):
        k(f"""
        v_cvt_pk_bf16_f32 v{H+j}, v{V_T+2*j}, v{V_T+2*j+1}
        v_lshlrev_b32 v{U+2*j}, 16, v{X+j}
        v_and_b32 v{U+2*j+1}, 0xffff0000, v{X+j}
        v_lshlrev_b32 v{V_T+2*j}, 16, v{H+j}
        v_and_b32 v{V_T+2*j+1}, 0xffff0000, v{H+j}
        v_add_f32 v{U+2*j}, v{U+2*j}, v{V_T+2*j}
        v_add_f32 v{U+2*j+1}, v{U+2*j+1}, v{V_T+2*j+1}
        v_cvt_pk_bf16_f32 v{H+j}, v{U+2*j}, v{U+2*j+1}
        """)
    for j in range(2):
        k.vmop(f"buffer_store_dwordx4 {v(H+4*j,4)}, v{V_L16}, s[{SO}:{SO+3}], 0 offen offset:{1024*j}{SC1}", "st")
    for j in range(8):
        k(f"v_lshlrev_b32 v{U+2*j}, 16, v{H+j}\nv_and_b32 v{U+2*j+1}, 0xffff0000, v{H+j}")
    k(f"v_add_f32 v32, v{U}, v{U+1}")
    for j in range(2, 16): k(f"v_add_f32 v32, v32, v{U+j}")
    xlane_sum(k, 32, 3, ["p16", "p32"])
    k(f"v_mul_f32 v32, 0x3c800000, v32\nv_sub_f32 v3, v{U}, v32\nv_mul_f32 v33, v3, v3")
    for j in range(1, 16): k(f"v_sub_f32 v3, v{U+j}, v32\nv_fmac_f32 v33, v3, v3")
    xlane_sum(k, 33, 3, ["p16", "p32"])
    k.vmop(f"buffer_store_dwordx2 v[32:33], v14, s[{SS}:{SS+3}], 0 offen{SC1}", "st")


def d_phase(k, ts, st0):
    GS, TS = 320, 1344
    tile_ids(k)
    k(f"""
    s_lshr_b32 s4, s{S_R}, 2
    s_bfe_u32 s5, s{S_R}, 0x10001
    s_lshl_b32 s5, s5, 3
    s_add_u32 s4, s4, s5
    s_lshl_b32 s4, s4, 7
    s_add_u32 s4, s4, {FOFF[5]}
    v_and_b32 v12, 15, v0
    v_lshlrev_b32 v12, 11, v12
    v_add_u32 v12, s4, v12
    """)
    await_flags(k, 12, 13)
    stamp(k, st0, ts)
    k(f"s_mul_i32 s4, s{S_C}, {4*43*1024}\ns_add_u32 s4, s4, {WS_W2}"); srd(k, SA, P['ws'], P['ws'] + 1, "s4", 4 * 43 * 1024)
    k(f"s_mul_i32 s4, s{S_R}, {4*43*1024}\ns_add_u32 s4, s4, {WS_HH}"); srd(k, SB, P['ws'], P['ws'] + 1, "s4", 4 * 43 * 1024)
    nb, batch = gemm_main(k, 43, 11, ts)
    k(f"s_lshl_b32 s5, s{S_R}, 2\ns_add_u32 s5, s5, s3\ns_lshl_b32 s5, s5, 14\ns_lshl_b32 s4, s{S_C}, 7\ns_add_u32 s4, s4, s5")
    srd(k, SO, P['out'], P['out'] + 1, "s4", 15 * 1024 + 128)
    k(f"s_lshl_b32 s4, s{S_C}, 11\ns_add_u32 s4, s4, s5\ns_add_u32 s4, s4, {WS_H}"); srd(k, SR, P['ws'], P['ws'] + 1, "s4", 2048)
    k(f"""
    v_lshrrev_b32 v12, 2, v0
    v_and_b32 v13, 1, v0
    v_bfe_u32 v14, v0, 1, 1
    v_lshlrev_b32 v15, 4, v12
    v_lshl_add_u32 v3, v13, 9, v15
    v_lshl_add_u32 v3, v14, 3, v3
    v_mul_u32_u24 v13, {2*GS}, v13
    v_mul_u32_u24 v14, {TS}, v14
    v_add3_u32 v15, v15, v13, v14
    s_mul_i32 s4, s3, {4*TS}
    v_add_u32 v15, s4, v15
    v_and_b32 v13, 3, v0
    v_lshlrev_b32 v13, 4, v13
    v_lshl_add_u32 v14, v12, 10, v13
    """)
    X = 16
    for hh in range(2):
        for gg in range(2):
            k.vmop(f"buffer_load_dwordx2 {v(X+4*hh+2*gg,2)}, v3, s[{SR}:{SR+3}], 0 offen offset:{1024*hh+256*gg}{SC1}", "X")
    for r in range(64): k(f"v_mov_b32 v{V_ACC+r}, 0")
    for b in range(nb): batch(b, b + 3 < nb)
    stamp(k, st0 + 1, ts)
    reduce_write(k, GS, TS)
    k(f"v_add_u32 v13, {32*TS}, v15")
    for w in range(4):
        for hh in range(2):
            for gg in range(2):
                k.lgop(f"ds_read_b128 {v(V_T+16*w+8*hh+4*gg,4)}, v{15 if w < 2 else 13} offset:{(w % 2)*16*TS+2*hh*TS+gg*GS}", ("rr", w))
    k.lgwait(("rr", 1))
    for r in range(16): k(f"v_add_f32 v{V_T+r}, v{V_T+r}, v{V_T+16+r}")
    k.lgwait(("rr", 3))
    for r in range(16): k(f"v_add_f32 v{V_T+32+r}, v{V_T+32+r}, v{V_T+48+r}")
    for r in range(16): k(f"v_add_f32 v{V_T+r}, v{V_T+r}, v{V_T+32+r}")
    k.vmwait("X")
    H, U = 24, V_T + 16
    for j in range(8):
        k(f"""
        v_cvt_pk_bf16_f32 v{H+j}, v{V_T+2*j}, v{V_T+2*j+1}
        v_lshlrev_b32 v{U+2*j}, 16, v{X+j}
        v_and_b32 v{U+2*j+1}, 0xffff0000, v{X+j}
        v_lshlrev_b32 v{V_T+2*j}, 16, v{H+j}
        v_and_b32 v{V_T+2*j+1}, 0xffff0000, v{H+j}
        v_add_f32 v{U+2*j}, v{U+2*j}, v{V_T+2*j}
        v_add_f32 v{U+2*j+1}, v{U+2*j+1}, v{V_T+2*j+1}
        v_cvt_pk_bf16_f32 v{H+j}, v{U+2*j}, v{U+2*j+1}
        """)
        if j % 4 == 3:
            k.vmop(f"buffer_store_dwordx4 {v(H+j-3,4)}, v14, s[{SO}:{SO+3}], 0 offen offset:{64*(j//4)}", "st")
```

```python
from emit import *
from k1 import seq, SC1

V_L16, V_WVO, V_HO, V_RA = 2, 4, 7, 9
V_MB, V_RS, V_S2, V_NL = 12, 14, 16, 18
V_WF, V_ACC, V_T = 32, 64, 160
SW, SH, SST, SCS, SO = 8, 12, 16, 20, 24
S_RB, S_PS, S_SO, S_LW = 70, 71, 72, 73
SLOT, NSL, CSL = 24576, 6, 147456


def body(k, np_, ts, st0, extra=None):
    nt = 4 * np_
    tw = np_
    k(f"s_mul_i32 s4, s3, {tw*16384}\nv_add_u32 v{V_WVO}, s4, v{V_L16}\nv_add_u32 v{V_WVO+1}, {16384-2048}, v{V_WVO}\n"
      f"v_add_u32 v{V_WVO+2}, {2*16384}, v{V_WVO}\ns_mul_i32 s{S_LW}, s3, {tw*2048}")

    def wdma(s_):
        items = [It(f"s_add_u32 m0, s{S_LW}, {(s_ % NSL)*SLOT}"), It(f"s_mov_b32 s{S_SO}, {s_*2048}")]
        for tt in range(tw):
            if tt == 2: items.append(It(f"s_add_u32 m0, s{S_LW}, {(s_ % NSL)*SLOT + 4096}"))
            for kk in range(2):
                items.append(It(lambda tt=tt, kk=kk: k.vmop(
                    f"buffer_load_dwordx4 v{V_WVO+tt}, s[{SW}:{SW+3}], s{S_SO} offen offset:{(tt % 2)*2048 + kk*1024}{SC1} lds", ("W", s_)), "d"))
        return items

    def hload(s_):
        items = [It(f"s_mov_b32 s5, {s_*2048}")]
        for rb in range(2):
            for kk in range(2):
                items.append(It(lambda rb=rb, kk=kk: k.vmop(
                    f"buffer_load_dwordx4 {a(16*s_+8*rb+4*kk,4)}, v{V_HO+rb}, s[{SH}:{SH+3}], s5 offen offset:{kk*1024}{SC1}", ("H", s_)), "d"))
        return items
    run = lambda items: seq(k, [it.x for it in items])()
    k(f"""
    s_lshl_b32 s4, s3, 6
    v_add_u32 v10, s4, v0
    v_bfe_u32 v11, v10, 4, 1
    v_mul_u32_u24 v11, {16*5632}, v11
    v_lshrrev_b32 v3, 5, v10
    v_lshlrev_b32 v3, 6, v3
    v_add_u32 v11, v11, v3
    v_and_b32 v3, 15, v0
    v_lshl_add_u32 v11, v3, 2, v11
    v_lshlrev_b32 v10, 2, v10
    s_mov_b32 s4, 0
    """)
    for ks in range(16):
        k.vmop(f"buffer_load_dword v{V_T+8+ks}, v11, s[{SCS}:{SCS+3}], s4 offen{SC1}", "CS")
        if ks < 15: k("s_add_u32 s4, s4, 5632")
    for s_ in range(6): run(wdma(s_))
    k.vmwait("CS")
    for ks in range(1, 16): k(f"v_add_f32 v{V_T+8}, v{V_T+8}, v{V_T+8+ks}")
    k(f"v_add_u32 v10, {CSL}, v10")
    k.lgop(f"ds_write_b32 v10, v{V_T+8}", "csw")
    k(f"v_and_b32 v20, 15, v0\nv_lshlrev_b32 v20, 3, v20\nv_lshrrev_b32 v3, 4, v0\nv_lshl_add_u32 v20, v3, 8, v20")
    k(f"v_lshlrev_b32 v21, 4, v3\nv_add_u32 v21, {CSL}, v21")
    k.lgdrain()
    k(f"v_add_u32 v{V_RA+1}, {2*SLOT}, v{V_L16}\nv_add_u32 v{V_RA+2}, {4*SLOT}, v{V_L16}")
    await_flags(k, 22, 23)
    stamp(k, st0, ts)
    run(hload(0))
    for rb in range(2):
        for c in range(2):
            k.vmop(f"buffer_load_dwordx2 {v(V_T+4*rb+2*c,2)}, v20, s[{SST}:{SST+3}], 0 offen offset:{1024*rb+128*c}{SC1}", "ST")
    for s_ in range(1, 3): run(hload(s_))
    k("s_barrier")

    class Rec:
        def __init__(s): s.items = []
        def __call__(s, t):
            s.items += [It(l_.strip()) for l_ in t.strip().split("\n") if not l_.strip().startswith("s_nop")]
    R = Rec()
    for rb in range(2):
        T = V_T + 4 * rb
        m, q = V_MB + rb, V_RS + rb
        R(f"v_add_f32 v{m}, v{T}, v{T+2}")
        xlane_sum(R, m, 3, ["p16", "p32"])
        R(f"""
        v_mul_f32 v{m}, 0x3e000000, v{m}
        v_sub_f32 v{T}, v{T}, v{m}
        v_sub_f32 v{T+2}, v{T+2}, v{m}
        v_mul_f32 v{T}, v{T}, v{T}
        v_fmac_f32 v{T}, v{T+2}, v{T+2}
        v_add_f32 v{q}, v{T+1}, v{T+3}
        v_fmac_f32 v{q}, 0x42800000, v{T}
        """)
        xlane_sum(R, q, 3, ["p16", "p32"])
        R(f"""
        v_mul_f32 v{q}, 0x3b000000, v{q}
        v_cvt_pk_bf16_f32 v{m}, v{m}, v{q}
        v_and_b32 v{q}, 0xffff0000, v{m}
        v_lshlrev_b32 v{m}, 16, v{m}
        v_xor_b32 v{m}, 0x80000000, v{m}
        v_add_f32 v{q}, 0x3727c5ac, v{q}
        v_cvt_pk_bf16_f32 v{q}, v{q}, v{q}
        v_lshlrev_b32 v{q}, 16, v{q}
        v_sqrt_f32 v{q}, v{q}
        v_cvt_pk_bf16_f32 v{q}, v{q}, v{q}
        v_lshlrev_b32 v{q}, 16, v{q}
        v_mul_f32 v{V_S2+rb}, v{q}, v{q}
        v_rcp_f32 v{q}, v{q}
        v_mul_f32 v{V_NL+rb}, 0xbfb8aa3b, v{q}
        """)
    stats = [It(lambda: k.vmwait("ST"), "s")] + R.items
    CS = V_T + 16
    csrd = [It(lambda t=t: k.lgop(f"ds_read_b128 {v(CS+4*t,4)}, v21 offset:{64*t}", ("cs", t)), "r") for t in range(nt)]

    def wreads(s_, t, slot=None):
        slot = t % 4 if slot is None else slot
        return [It(lambda kk=kk: k.lgop(
            f"ds_read_b128 {v(V_WF+8*slot+4*kk,4)}, v{V_RA + (s_ % NSL)//2} offset:{((s_ % NSL) % 2)*SLOT + t*2048 + kk*1024}", ("F", s_, t)), "r") for kk in range(2)]
    for t in range(3): run(wreads(0, t))
    acc = lambda t, rb: V_ACC + 8 * t + 4 * rb
    stamp(k, st0 + 1, ts)
    for s_ in range(6):
        mf, rd = [], []
        for t in range(nt):
            for rr in range(2):
                rb = rr if t % 2 == 0 else 1 - rr
                for q_, kk in enumerate((0, 1) if rr == 0 else (1, 0)):
                    pre = []
                    if len(mf) == 0: pre.append(lambda: k.vmwait(("H", s_)))
                    if rr == 0 and kk == 0: pre.append(lambda t=t: k.lgwait(("F", s_, t)))
                    mf.append((pre, mfma(v(acc(t, rb), 4), v(V_WF + 8 * (t % 4) + 4 * kk, 4), a(16 * s_ + 8 * rb + 4 * kk, 4),
                                         "0" if s_ == 0 and q_ == 0 else v(acc(t, rb), 4))))
            t3 = t + 3
            if t3 < nt: its = wreads(s_, t3)
            elif s_ < 5: its = wreads(s_ + 1, t3 - nt)
            else: its = wreads(6 + t3 - nt, 0, t3 - nt) if t3 - nt < 2 else []
            rd += window(its, 4 * t, 4 * t + 3)
        streams = [rd]
        bpos = 4 * (nt - 3) - 1
        if s_ in (1, 2, 5):
            streams.append(window([It(lambda: (k.vmwait([("W", 6), ("W", 7)] if s_ == 5 else []), k("s_barrier")), "s")], bpos, bpos))
        if s_ in (1, 2):
            streams.append(window(wdma(s_ + 5), bpos + 1, len(mf) - 1))
        n_ = len(mf)
        if s_ < 3: streams.append(window(hload(3 + 2 * s_) + (hload(4 + 2 * s_) if s_ < 2 else []), 1, bpos - 1))
        if s_ == 1: streams.append(window(stats[:len(stats) // 2], 0, n_ - 1))
        if s_ == 2: streams.append(window(stats[len(stats) // 2:], 0, n_ - 1))
        if s_ == 3: streams.append(window(csrd, 0, n_ - 1))
        if s_ in (4, 5):
            fx = []
            for t in range(nt // 2 * (s_ - 4), nt // 2 * (s_ - 3)):
                its = [It(lambda t=t: k.lgwait(("cs", t)), "s")]
                its += [It(f"v_fmac_f32 v{acc(t, rb)+r}, v{CS+4*t+r}, v{V_MB+rb}") for rb in range(2) for r in range(4)]
                lo = 4 * t + 8 + 2 * (t - nt // 2 * (s_ - 4)) if s_ == 4 else 4 * (t - nt // 2)
                fx += window(its, lo, lo + 5 if s_ == 4 else lo + 3)
            streams.append(fx)
        if extra and s_ in extra: streams.append(window(extra[s_](), 2, n_ - 4))
        pack(k, mf, streams)
    def swiglu(pp):
        its = []
        for rb in range(2):
            T = V_T + 16 * rb
            el = [(acc(4 * pp + 2 * f, rb) + r, acc(4 * pp + 2 * f + 1, rb) + r) for f in range(2) for r in range(4)]
            its += [It(f"v_mul_f32 v{T+j}, v{g}, v{V_NL+rb}") for j, (g, u) in enumerate(el)]
            for j, (g, u) in enumerate(el): its += [It(f"v_exp_f32 v{T+j}, v{T+j}"), It(f"v_mul_f32 v{g}, v{g}, v{u}")]
            its += [It(f"v_fma_f32 v{T+j}, v{T+j}, v{V_S2+rb}, v{V_S2+rb}") for j in range(8)]
            its += [It(f"v_rcp_f32 v{T+j}, v{T+j}") for j in range(8)]
            its += [It(f"v_mul_f32 v{g}, v{g}, v{T+j}") for j, (g, u) in enumerate(el)]
            its += [It(f"v_cvt_pk_bf16_f32 v{T+8+j}, v{el[2*j][0]}, v{el[2*j+1][0]}") for j in range(4)]
            its.append(It(lambda T=T, rb=rb: k.vmop(
                f"buffer_store_dwordx4 {v(T+8,4)}, v{V_L16}, s[{SO}:{SO+3}], {'s5' if rb else '0'} offen offset:{pp*1024}{SC1}", "st"), "d"))
        return its
    k(f"s_mov_b32 s5, {43*1024}")
    for pp in range(np_):
        mf, rd = [], []
        for t in range(4 * pp, 4 * pp + 4):
            seq_ = [(6, 0), (6, 1), (7, 0), (7, 1)]
            for rr in range(2):
                rb = rr if t % 2 == 0 else 1 - rr
                for q_, (s_, kk) in enumerate(seq_ if rr == 0 else seq_[::-1]):
                    pre = [lambda t=t, s_=s_: k.lgwait(("F", s_, t))] if rr == 0 and kk == 0 else []
                    if t == 0 and rr == 0 and kk == 0: pre.append(lambda s_=s_: k.vmwait(("H", s_)))
                    mf.append((pre, mfma(v(acc(t, rb), 4), v(V_WF + 8 * (2 * (t % 2) + s_ - 6) + 4 * kk, 4), a(16 * s_ + 8 * rb + 4 * kk, 4), v(acc(t, rb), 4))))
            if t + 1 < nt:
                o = 8 * (t % 4)
                rd += window(wreads(6, t + 1, 2 * ((t + 1) % 2)) + wreads(7, t + 1, 2 * ((t + 1) % 2) + 1), o, o + 4)
        streams = [rd]
        if pp: streams.append(window(swiglu(pp - 1), 4, 31))
        if extra and 6 + pp in extra: streams.append(window(extra[6 + pp](), 2, 28))
        pack(k, mf, streams)
    stamp(k, st0 + 2, ts)
    run(swiglu(np_ - 1))


def g_phase(k, ts, st0, extra=None):
    k(f"""
    s_and_b32 s{S_RB}, s2, 3
    s_lshl_b32 s{S_RB}, s{S_RB}, 2
    s_bfe_u32 s4, s2, 0x20003
    s_add_u32 s{S_RB}, s{S_RB}, s4
    s_lshl_b32 s{S_RB}, s{S_RB}, 3
    s_lshl_b32 s4, s3, 1
    s_add_u32 s{S_RB}, s{S_RB}, s4
    s_lshr_b32 s6, s2, 5
    s_and_b32 s4, s2, 4
    s_lshl_b32 s4, s4, 1
    s_add_u32 s6, s6, s4
    s_mul_i32 s4, s6, 3
    s_lshl_b32 s5, s6, 1
    s_add_u32 s5, s5, 11
    s_min_u32 s{S_PS}, s4, s5
    v_lshlrev_b32 v{V_L16}, 4, v0
    v_mov_b32 v{V_HO}, v{V_L16}
    v_add_u32 v{V_HO+1}, 16384, v{V_L16}
    v_mov_b32 v{V_RA}, v{V_L16}
    s_lshr_b32 s5, s{S_RB}, 2
    s_lshr_b32 s4, s5, 2
    s_and_b32 s5, s5, 3
    s_lshl_b32 s5, s5, 3
    s_add_u32 s4, s4, s5
    s_lshl_b32 s4, s4, 7
    s_add_u32 s4, s4, {FOFF[4]}
    v_and_b32 v22, 7, v0
    v_lshlrev_b32 v22, 12, v22
    v_add_u32 v22, s4, v22
    """)
    k(f"s_lshl_b32 s4, s{S_PS}, 16\ns_add_u32 s4, s4, {WS_W13}"); srd(k, SW, P['ws'], P['ws'] + 1, "s4", 12 * 16384)
    k(f"s_lshl_b32 s4, s{S_RB}, 14\ns_add_u32 s4, s4, {WS_H}"); srd(k, SH, P['ws'], P['ws'] + 1, "s4", 32768)
    k(f"s_lshl_b32 s4, s{S_RB}, 10\ns_add_u32 s4, s4, {WS_ST}"); srd(k, SST, P['ws'], P['ws'] + 1, "s4", 2048)
    k(f"s_lshl_b32 s4, s{S_PS}, 7\ns_sub_u32 s5, {32*5632}, s4\ns_add_u32 s4, s4, {WS_CS}"); srd(k, SCS, P['ws'], P['ws'] + 1, "s4", "s5")
    k(f"s_mul_i32 s4, s{S_RB}, {43*1024}\ns_lshl_b32 s5, s{S_PS}, 10\ns_add_u32 s4, s4, s5\ns_add_u32 s4, s4, {WS_HH}")
    srd(k, SO, P['ws'], P['ws'] + 1, "s4", 43 * 1024 + 3072)
    two, join = k.label("two"), k.label("gj")
    k(f"s_cmp_ge_u32 s6, 11\ns_cbranch_scc1 {two}")
    for np_ in (3, 2):
        k.vm, k.lg = [], []
        body(k, np_, ts, st0, extra)
        k(f"s_branch {join}\n{two}:" if np_ == 3 else f"{join}:")
```

```python
from emit import *
from k1 import run, L, SC1
from k3 import S_R, S_C
import k35

SA, SB, SR, SO = 32, 28, 80, 84
import os
ROT = int(os.environ.get('DROT', '1'))
S_KO, S_KA, S_T, S_ROT = 42, 43, 44, 45
V_AO, V_ACC, V_T, X = 24, 128, 192, 16
NK = 43
a_reg = lambda p, t: a(128 + 16 * p + 4 * t, 4) if p < 8 else a(16 * (p - 8) + 4 * t, 4)
b_reg = lambda p, t: v(32 + 16 * p + 4 * t, 4) if p < 6 else a(48 + 16 * (p - 6) + 4 * t, 4)


def setup(k):
    k(f"s_mul_i32 s4, s{S_C}, {4*NK*1024}\ns_add_u32 s4, s4, {WS_W2}"); srd(k, SA, P['ws'], P['ws'] + 1, "s4", 4 * NK * 1024)
    k(f"s_mul_i32 s4, s{S_R}, {4*NK*1024}\ns_add_u32 s4, s4, {WS_HH}"); srd(k, SB, P['ws'], P['ws'] + 1, "s4", 4 * NK * 1024)
    k(f"s_lshl_b32 s5, s{S_R}, 2\ns_add_u32 s5, s5, s3\ns_lshl_b32 s5, s5, 14\ns_lshl_b32 s4, s{S_C}, 7\ns_add_u32 s4, s4, s5")
    srd(k, SO, P['out'], P['out'] + 1, "s4", 15 * 1024 + 128)
    k(f"s_lshl_b32 s4, s{S_C}, 11\ns_add_u32 s4, s4, s5\ns_add_u32 s4, s4, {WS_H}"); srd(k, SR, P['ws'], P['ws'] + 1, "s4", 2048)
    k(f"s_mul_i32 s{S_KO}, s3, {11*1024}\ns_cmp_eq_u32 s3, 3\ns_cselect_b32 s{S_KA}, 10240, -1")
    k(f"s_mul_i32 s{S_ROT}, s{S_C}, {11 if ROT else 0}\ns_lshr_b32 s{S_ROT}, s{S_ROT}, 3\ns_lshl_b32 s{S_ROT}, s{S_ROT}, 10")
    k(f"v_lshlrev_b32 v{V_AO}, 4, v0")
    for t in range(1, 4): k(f"v_add_u32 v{V_AO+t}, {t*NK*1024}, v{V_AO}")


def loads(k, op, ps):
    items = []
    for p in ps:
        t_ = f"s_add_u32 s{S_T}, s{S_ROT}, {p*1024}\ns_cmp_ge_u32 s{S_T}, 11264\ns_cselect_b32 s4, 11264, 0\ns_sub_u32 s{S_T}, s{S_T}, s4"
        if op == "A": t_ += f"\ns_cmp_eq_u32 s{S_T}, s{S_KA}\ns_cselect_b32 s{S_T}, 0x7000000, s{S_T}"
        items += [It(t_, "s"), It(f"s_add_u32 s{S_T}, s{S_T}, s{S_KO}")]
        for t in range(4):
            reg, sr = (a_reg(p, t), SA) if op == "A" else (b_reg(p, t), SB)
            items.append(L(lambda reg=reg, sr=sr, p=p, t=t: k.vmop(
                f"buffer_load_dwordx4 {reg}, v{V_AO+t}, s[{sr}:{sr+3}], s{S_T} offen{SC1}", (op, p)), "d"))
    return items


def g_extra(k):
    return {2 + j: (lambda j=j: loads(k, "A", [2 * j, 2 * j + 1])) for j in range(4)}


def d_phase(k, ts, st0):
    GS, TS = 320, 1344
    run(k, loads(k, "A", [8, 9, 10]))
    k(f"""
    v_lshrrev_b32 v12, 2, v0
    v_and_b32 v13, 1, v0
    v_bfe_u32 v14, v0, 1, 1
    v_lshlrev_b32 v15, 4, v12
    v_lshl_add_u32 v3, v13, 9, v15
    v_lshl_add_u32 v3, v14, 3, v3
    v_mul_u32_u24 v13, {2*GS}, v13
    v_mul_u32_u24 v14, {TS}, v14
    v_add3_u32 v15, v15, v13, v14
    s_mul_i32 s4, s3, {4*TS}
    v_add_u32 v15, s4, v15
    v_and_b32 v13, 3, v0
    v_lshlrev_b32 v13, 4, v13
    v_lshl_add_u32 v14, v12, 10, v13
    s_lshr_b32 s4, s{S_R}, 3
    s_bfe_u32 s5, s{S_R}, 0x20001
    s_lshl_b32 s5, s5, 3
    s_add_u32 s4, s4, s5
    s_lshl_b32 s4, s4, 7
    s_add_u32 s4, s4, {FOFF[5]}
    v_and_b32 v12, 7, v0
    v_lshlrev_b32 v12, 12, v12
    v_and_b32 v13, 8, v0
    v_lshl_add_u32 v12, v13, 6, v12
    v_add_u32 v12, s4, v12
    """)
    for hh in range(2):
        for gg in range(2):
            k.vmop(f"buffer_load_dwordx2 {v(X+4*hh+2*gg,2)}, v3, s[{SR}:{SR+3}], 0 offen offset:{1024*hh+256*gg}{SC1}", "X")
    await_flags(k, 12, 13)
    stamp(k, st0, ts)
    run(k, loads(k, "B", list(range(11))))
    batches = [[0], [1, 2], [3, 4], [5, 6], [7, 8], [9, 10]]
    for b, ps in enumerate(batches):
        mf = []
        for nt in range(4):
            for rr in range(4):
                rb = rr if nt % 2 == 0 else 3 - rr
                for j, p in enumerate(ps if rr % 2 == 0 else ps[::-1]):
                    pre = [lambda: k.vmwait([("B", x) for x in ps])] if not mf else []
                    acc = v(V_ACC + 16 * rb + 4 * nt, 4)
                    mf.append((pre, mfma(acc, a_reg(p, nt), b_reg(p, rb), "0" if b == 0 and j == 0 else acc)))
        streams = []
        if b == 0: streams.append(window(k35.reduce_addr(k, GS, TS, 12) + [It(f"v_add_u32 v13, {32*TS}, v15")], 0, 20))
        if b == len(batches) - 1:
            streams.append(k35.reduce_items(k, [(rr if nt % 2 == 0 else 3 - rr, nt) for nt in range(4) for rr in range(4)], len(ps), V_ACC, TS, 12))
        pack(k, mf, streams)
    stamp(k, st0 + 1, ts)
    k.lgdrain()
    k("s_barrier")
    for w in range(4):
        for hh in range(2):
            for gg in range(2):
                k.lgop(f"ds_read_b128 {v(V_T+16*w+8*hh+4*gg,4)}, v{15 if w < 2 else 13} offset:{(w % 2)*16*TS+2*hh*TS+gg*GS}", ("rr", w))
    k.lgwait(("rr", 1))
    for r in range(16): k(f"v_add_f32 v{V_T+r}, v{V_T+r}, v{V_T+16+r}")
    k.lgwait(("rr", 3))
    for r in range(16): k(f"v_add_f32 v{V_T+32+r}, v{V_T+32+r}, v{V_T+48+r}")
    for r in range(16): k(f"v_add_f32 v{V_T+r}, v{V_T+r}, v{V_T+32+r}")
    H, U = 32, V_T + 16
    for j in range(8):
        k(f"""
        v_cvt_pk_bf16_f32 v{H+j}, v{V_T+2*j}, v{V_T+2*j+1}
        v_lshlrev_b32 v{U+2*j}, 16, v{X+j}
        v_and_b32 v{U+2*j+1}, 0xffff0000, v{X+j}
        v_lshlrev_b32 v{V_T+2*j}, 16, v{H+j}
        v_and_b32 v{V_T+2*j+1}, 0xffff0000, v{H+j}
        v_add_f32 v{U+2*j}, v{U+2*j}, v{V_T+2*j}
        v_add_f32 v{U+2*j+1}, v{U+2*j+1}, v{V_T+2*j+1}
        v_cvt_pk_bf16_f32 v{H+j}, v{U+2*j}, v{U+2*j+1}
        """)
        if j % 4 == 3:
            k.vmop(f"buffer_store_dwordx4 {v(H+j-3,4)}, v14, s[{SO}:{SO+3}], 0 offen offset:{64*(j//4)}", "st")
```

```python
from asmlib import *


class K(Kernel):
    def __init__(self, *a, **kw):
        super().__init__(*a, **kw)
        self.vm = []
        self.lg = []
        self.clock = 0
        self.lgt = {}
        self.AGE = 10
        self.beam, self.dry, self.wlog = False, False, []

    def text(self):
        import hazard
        n0 = len(self.lines)
        self.lines = [l for l in hazard.autofix(self.lines) if l.strip()]
        return super().text()

    def vmop(self, text, tag=None):
        self(text); self.vm.append(tag)

    def lgop(self, text, tag=None):
        self(text); self.lg.append(tag); self.lgt[tag] = self.clock

    def _wait(self, q, tags, name, mx):
        if not isinstance(tags, list): tags = [tags]
        idx = max((i for i, t in enumerate(q) if t in tags), default=-1)
        if idx < 0: return
        if name == "lgkmcnt":
            while idx + 1 < len(q) and self.clock - self.lgt.get(q[idx + 1], self.clock) >= self.AGE: idx += 1
        n = min(len(q) - 1 - idx, mx)
        self(f"s_waitcnt {name}({n})")
        del q[:len(q) - n]

    def vmwait(self, tags): self._wait(self.vm, tags, "vmcnt", 63)
    def lgwait(self, tags): self._wait(self.lg, tags, "lgkmcnt", 15)

    def vmdrain(self):
        self("s_waitcnt vmcnt(0)"); self.vm = []

    def lgdrain(self):
        self("s_waitcnt lgkmcnt(0)"); self.lg = []

    def stream(self, mfmas, fill):
        def put(items):
            for it in items:
                if callable(it): it()
                else: self(it)
        put(fill.get(-1, []))
        for i, (pre, text) in enumerate(mfmas):
            put(pre)
            self(text)
            self.clock += 1
            put(fill.get(i, []))
        extra = [i for i in fill if i >= len(mfmas)]
        for i in sorted(extra): put(fill[i])


TRANS = ("v_exp_f32", "v_log_f32", "v_rcp_f32", "v_rsq_f32", "v_sqrt_f32")


class It:
    def __init__(s, x, kind=None, lo=None, hi=None, store=False):
        s.x, s.lo, s.hi = x, lo, hi
        if kind is None:
            assert isinstance(x, str)
            first = x.strip().split()[0]
            kind = "v" if first.startswith("v_") else "b" if first.startswith("s_cbranch") else "s"
        s.kind = kind
        s.store = store
        s.cost = 4
        if isinstance(x, str):
            lines = [l.strip() for l in x.strip().split("\n") if not l.strip().endswith(":")]
            s.cost = sum(8 if l.startswith(TRANS) else 4 for l in lines)


def window(items, lo, hi, kind=None):
    out = []
    n = len(items)
    for j, x in enumerate(items):
        it = x if isinstance(x, It) else It(x, kind)
        it.due = lo + (j * (hi - lo + 1)) // max(n, 1)
        it.lo = lo if it.lo is None else max(it.lo, lo)
        it.due = max(it.due, it.lo)
        it.hi = max(hi, it.lo) if it.hi is None else it.hi
        out.append(it)
    return out


def pack_greedy(k, mfmas, streams, ahead=3):
    qs = [list(s_) for s_ in streams if s_]
    n = len(mfmas)

    def put(it):
        it.x() if callable(it.x) else k(it.x)

    def head(kinds, g, slack):
        best = None
        for q in qs:
            if q and q[0].kind in kinds and q[0].lo <= g and q[0].due <= g + slack:
                if best is None or q[0].due < best[0].due: best = q
        return best

    for g, (pre, text) in enumerate(mfmas):
        for p in pre:
            p() if callable(p) else k(p)
        k(text); k.clock += 1
        t = 4
        if g + 1 < n:
            m0 = len(k.lines)
            for p in mfmas[g + 1][0]:
                if callable(p): p()
            t += 4 * (len(k.lines) - m0)
            k.wlog.append(len(k.lines) - m0)
        q = head("b", g, 0)
        if q: it = q.pop(0); put(it); t = max(t + 4, 8) + it.cost - 4
        while True:
            q = head("s", g, 0)
            if not q or (t > 4 and q[0].hi > g): break
            it = q.pop(0); put(it); t += it.cost
        q = head("d", g, 0)
        if q and (t <= 8 or q[0].hi <= g):
            put(q.pop(0)); t += 20
        nv = head("v", g, ahead)
        vcost = nv[0].cost if nv else 0
        behind = nv is not None and nv[0].due < g - 1
        q = head("r", g, 1)
        if q and t <= 8 and (q[0].due < g - 1 or q[0].hi <= g or (vcost <= 4 and t == 4) or (vcost == 0)):
            put(q.pop(0)); t += 4
            q = head("r", g, 2 if vcost == 0 else -3)
            if q and t <= 8: put(q.pop(0)); t += 4
            t += 4
        while True:
            q = head("v", g, ahead)
            if not q: break
            st = max(t, 8)
            if st + q[0].cost > 16 and q[0].hi > g and not (q[0].due < g - 2 and st < 16): break
            it = q.pop(0); put(it); t = st + it.cost
        for q in qs:
            while q and q[0].hi <= g: put(q.pop(0))
    for q in qs:
        while q: put(q.pop(0))


VAL = {"v": 0.7, "s": 0.4, "b": 0.5, "r": 4.0, "d": 18.0}
AHEAD = {"v": 6, "s": 3, "b": 0, "r": 4, "d": 5}
_plans = {}
import os
RR = int(os.environ.get('RR', '2'))


def _step(t, prev, it):
    kd = it.kind
    if kd == "v": return max(t, 8) + it.cost, "v"
    if kd == "s": return t + it.cost, "s"
    if kd == "b": return t + (14 if prev == "v" else 0) + 2 + it.cost, "s"
    if kd == "r": return t + (4 if prev == "v" else RR if prev == "r" else 0) + 8, "r"
    return t + (12 if prev == "v" else 0) + (44 if it.store else 20), "d"


def _plan(n, qs, wslot, beam=28):
    val = [[VAL[x.kind] * (x.cost if x.kind in "vsb" else 1) for x in q] for q in qs]
    states = {tuple(0 for _ in qs): (0.0, 0.0, None)}
    for g in range(n):
        nxt = {}
        for pos, (T, sc, hist) in states.items():
            stack = [(pos, 4 + 4 * wslot[g], "s", (), 0.0)]
            seen = {}
            while stack:
                p, t, prev, seq_, gain = stack.pop()
                forced = [i for i, q in enumerate(qs) if p[i] < len(q) and q[p[i]].hi <= g]
                if not forced:
                    if p not in seen or t < seen[p]:
                        seen[p] = t
                        T2 = T + max(t, 16)
                        sc2 = sc + max(t, 16) - gain
                        if p not in nxt or sc2 < nxt[p][1]: nxt[p] = (T2, sc2, (hist, seq_))
                    if t >= 20 or len(seq_) >= 4: continue
                big = len(seq_) >= 5
                for i, q in enumerate(qs):
                    if p[i] >= len(q): continue
                    it = q[p[i]]
                    if forced and big and i != forced[0]: continue
                    if it.hi > g and (it.lo > g or it.due > g + AHEAD[it.kind]): continue
                    if forced and it.hi > g and t >= 16: continue
                    t2, k2_ = _step(t, prev, it)
                    if it.hi > g and t2 > 28: continue
                    stack.append((p[:i] + (p[i] + 1,) + p[i + 1:], t2, k2_, seq_ + (i,), gain + val[i][p[i]]))
        states = dict(sorted(nxt.items(), key=lambda kv: kv[1][1])[:beam])
    best = min(states.items(), key=lambda kv: kv[1][1])
    plan, h = [], best[1][2]
    while h is not None:
        plan.append(h[1]); h = h[0]
    return plan[::-1]


def pack(k, mfmas, streams, ahead=3):
    if not k.beam or not any(streams): return pack_greedy(k, mfmas, streams, ahead)
    qs = [list(s_) for s_ in streams if s_]
    n = len(mfmas)
    snap = (list(k.lines), list(k.vm), list(k.lg), dict(k.lgt), k.clock, k._lab)
    k.dry = True; k.wlog = []
    pack_greedy(k, mfmas, streams, ahead)
    wslot = k.wlog + [0]
    k.lines, k.vm, k.lg, k.lgt, k.clock, k._lab = snap
    k.dry = False
    for q in qs:
        for x in q: x.hi = min(x.hi, n + 5) if x.hi >= n else x.hi
    key = (n, tuple(wslot), tuple(tuple((x.kind, x.cost, x.lo, x.hi, x.due, x.store) for x in q) for q in qs))
    if key not in _plans: _plans[key] = _plan(n, qs, wslot)
    for g, (pre, text) in enumerate(mfmas):
        for p in pre:
            p() if callable(p) else k(p)
        k(text); k.clock += 1
        if g + 1 < n:
            for p in mfmas[g + 1][0]:
                if callable(p): p()
        for i in _plans[key][g]:
            it = qs[i].pop(0)
            it.x() if callable(it.x) else k(it.x)
    for q in qs:
        for it in q: it.x() if callable(it.x) else k(it.x)


def spread(fill, items, lo, hi):
    n = len(items)
    for j, it in enumerate(items):
        idx = lo + (j * (hi - lo + 1)) // max(n, 1)
        fill.setdefault(idx, []).append(it)


def mfma(d, A, B, c):
    return f"v_mfma_f32_16x16x32_bf16 {d}, {A}, {B}, {c}"


def srd(k, n, lo, hi, off, size):
    k(f"s_add_u32 s{n}, s{lo}, {off}\ns_addc_u32 s{n+1}, s{hi}, 0\ns_mov_b32 s{n+2}, {size}\ns_mov_b32 s{n+3}, 0x20000")


MB = 1 << 20
import os
KV_TS, KV_HS = {'h': (16384, 524288), 'p': (18432, 32 * 18432 + 1024), 'q': (17408, 32 * 17408 + 4096), 'r': (16384, 524288 + 5120)}[os.environ.get('KVL', 'h')]
WS0 = int(os.environ.get("WS0", "0")) * MB
WS_V = WS0
WS_K = WS0 + 16 * MB
WS_XN = WS0 + 32 * MB
WS_CTX = WS0 + 34 * MB
WS_WO = WS0 + 50 * MB
WS_W13 = WS0 + 54 * MB
WS_CS = WS0 + 57 * MB
WS_W2 = WS0 + 58 * MB
WS_H = WS0 + 60 * MB
WS_ST = WS0 + 62 * MB
WS_HH = WS0 + 63 * MB
WS_FL = WS0 + 69 * MB
WS_TS = 128 * MB

P = dict(x=36, ckv=38, wq=40, wuk=42, wuv=44, wo=46, bx=48, w1=50, w3=52, w2=54, out=56, dbg=58, ws=60)


def load_args(k, nwg=256):
    k(f"""
    s_cmp_ge_u32 s2, {nwg}
    s_cbranch_scc0 {k.name}_go
    s_endpgm
    {k.name}_go:
    s_load_dwordx16 s[36:51], s[0:1], 0
    s_load_dwordx8 s[52:59], s[0:1], 64
    s_load_dwordx2 s[60:61], s[0:1], 96
    v_lshrrev_b32 v1, 6, v0
    v_and_b32 v0, 63, v0
    v_readfirstlane_b32 s3, v1
    """)


def xlane_sum(k, x, t, steps):
    for st in steps:
        if st == "q1": k(f"s_nop 1\nv_add_f32_dpp v{x}, v{x}, v{x} quad_perm:[1,0,3,2] row_mask:0xf bank_mask:0xf")
        if st == "q2": k(f"s_nop 1\nv_add_f32_dpp v{x}, v{x}, v{x} quad_perm:[2,3,0,1] row_mask:0xf bank_mask:0xf")
        if st == "r4": k(f"s_nop 1\nv_add_f32_dpp v{x}, v{x}, v{x} row_ror:4 row_mask:0xf bank_mask:0xf")
        if st == "r8": k(f"s_nop 1\nv_add_f32_dpp v{x}, v{x}, v{x} row_ror:8 row_mask:0xf bank_mask:0xf")
        if st == "p16": k(f"v_mov_b32 v{t}, v{x}\ns_nop 1\nv_permlane16_swap_b32 v{x}, v{t}\nv_add_f32 v{x}, v{x}, v{t}")
        if st == "p32": k(f"v_mov_b32 v{t}, v{x}\ns_nop 1\nv_permlane32_swap_b32 v{x}, v{t}\nv_add_f32 v{x}, v{x}, v{t}")


def stamp(k, idx, on):
    if not on: return
    k(f"""
    s_memtime s[92:93]
    s_memrealtime s[94:95]
    s_waitcnt lgkmcnt(0)
    v_writelane_b32 v1, s92, {2*idx}
    v_writelane_b32 v1, s94, {2*idx+1}
    """)


def stamp_flush(k, kid, on):
    if not on: return
    srd(k, 88, P['ws'], P['ws'] + 1, WS_TS + kid * 262144, 262144)
    k(f"s_lshl_b32 s92, s2, 2\ns_add_u32 s92, s92, s3\ns_lshl_b32 s92, s92, 8\nv_lshlrev_b32 v0, 2, v0\nv_add_u32 v0, s92, v0")
    k("buffer_store_dword v1, v0, s[88:91], 0 offen")


S_FL, S_TAG, S_SPIN = 96, 100, 101
FOFF = {1: 0, 2: 0x8000, 3: 0x10000, 4: 0x18000, 5: 0x20000, 6: 0x28000}
FSTR = {1: 128, 2: 128, 3: 128, 4: 128, 5: 128, 6: 128}
EPOCH = 0x30000
SC = " sc1"


def sync_init(k, vt=2):
    srd(k, S_FL, P['ws'], P['ws'] + 1, WS_FL, 0x40000)
    k(f"v_mov_b32 v{vt}, {EPOCH}")
    k.vmop(f"buffer_load_dword v{vt+1}, v{vt}, s[{S_FL}:{S_FL+3}], 0 offen sc1", "EP")


def sync_tag(k, vt=2):
    k.vmwait("EP")
    k(f"v_readfirstlane_b32 s{S_TAG}, v{vt+1}\ns_nop 0\ns_add_u32 s{S_TAG}, s{S_TAG}, 1")


def publish(k, phase, vt):
    lab = k.label("pub")
    k(f"""
    s_cmp_eq_u32 s3, 0
    s_cbranch_scc0 {lab}
    s_mul_i32 s4, s2, {FSTR[phase]}
    s_add_u32 s4, s4, {FOFF[phase]}
    v_lshl_add_u32 v{vt}, v0, 2, s4
    v_mov_b32 v{vt+1}, s{S_TAG}
    s_mov_b64 exec, 0xffffffff
    buffer_store_dword v{vt+1}, v{vt}, s[{S_FL}:{S_FL+3}], 0 offen sc1
    s_mov_b64 exec, -1
    {lab}:
    """)


def wide_poll(vaddr, vt):
    return "\n".join(f"buffer_load_dword v{vt+j}, v{vaddr}, s[{S_FL}:{S_FL+3}], {'s%d' % (64+j) if j else '0'} offen sc1" for j in range(4))


def await_flags(k, vaddr, vt, wide=False):
    top, done = k.label("spin"), k.label("ok")
    k(f"s_mov_b32 s{S_SPIN}, 0x40000\n{top}:")
    if wide:
        k(f"""
        {wide_poll(vaddr, vt)}
        s_waitcnt vmcnt(0)
        v_xor_b32 v{vt}, s{S_TAG}, v{vt}
        v_xor_b32 v{vt+1}, s{S_TAG}, v{vt+1}
        v_xor_b32 v{vt+2}, s{S_TAG}, v{vt+2}
        v_xor_b32 v{vt+3}, s{S_TAG}, v{vt+3}
        v_or3_b32 v{vt}, v{vt}, v{vt+1}, v{vt+2}
        v_or_b32 v{vt}, v{vt}, v{vt+3}
        v_cmp_ne_u32 vcc, 0, v{vt}
        """)
    else:
        k(f"""
        buffer_load_dword v{vt}, v{vaddr}, s[{S_FL}:{S_FL+3}], 0 offen sc1
        s_waitcnt vmcnt(0)
        v_cmp_ne_u32 vcc, s{S_TAG}, v{vt}
        """)
    k(f"""
    s_nop 0
    s_cbranch_vccz {done}
    s_sleep 1
    s_sub_u32 s{S_SPIN}, s{S_SPIN}, 1
    s_cmp_lg_u32 s{S_SPIN}, 0
    s_cbranch_scc1 {top}
    {done}:
    """)
    k.vm = []


def code_warm(k, start, end, vt, dst, sp=6, back=False):
    here, skip = k.label("cw"), k.label("cs")
    k(f"""
    s_getpc_b64 s[{sp}:{sp+1}]
    {here}:
    {f"s_sub_u32 s{sp}, s{sp}, {here} - {start}" if back else f"s_add_u32 s{sp}, s{sp}, {start} - {here}"}
    {"s_subb_u32" if back else "s_addc_u32"} s{sp+1}, s{sp+1}, 0
    s_lshr_b32 s4, s2, 3
    s_lshl_b32 s4, s4, 2
    s_add_u32 s4, s4, s3
    s_lshl_b32 s4, s4, 7
    v_lshlrev_b32 v{vt}, 14, v0
    v_add_u32 v{vt}, s4, v{vt}
    v_cmp_gt_u32 vcc, {end} - {start}, v{vt}
    s_and_saveexec_b64 s[92:93], vcc
    s_cbranch_execz {skip}
    global_load_dword {dst}, v{vt}, s[{sp}:{sp+1}]
    {skip}:
    s_mov_b64 exec, s[92:93]
    """)
```

```python
from emit import *

V_WVO = 4
V_TRA = 8
V_WF = 32
V_ACC = 64
S_SOFF = 4
import os
SC1 = " sc1"
NT2 = os.environ.get("NT2", "")
WWARM = int(os.environ.get("WWARM", "0"))
WNT = os.environ.get("WNT", "")
KVSC = os.environ.get("KVSC", " sc1")
NT = os.environ.get("NT", "")
S_W4K = 58
WSLOT = [0, 1, 2, 3, 0, 1, 2, 3, 0, 4, 5, 6, 7, 8, 1, 2, 3, 0, 4, 5, 6, 7, 8, 9]
WISSUE = {1: [4], 2: [5], 3: [6], 4: [7], 5: [8, 9], 6: [10, 11, 14], 7: [12, 13, 15], 8: [16], 9: [17], 10: [18], 11: [19],
          12: [20], 13: [21], 14: [22], 15: [23]}


def proj_setup(k, wstride=8192):
    k(f"""
    v_lshrrev_b32 v2, 3, v0
    v_mov_b32 v3, {wstride}
    v_mul_lo_u32 v2, v2, v3
    v_lshrrev_b32 v3, 4, v0
    v_and_b32 v3, 1, v3
    v_lshlrev_b32 v3, 1, v3
    v_and_b32 v12, 7, v0
    v_xor_b32 v3, v3, v12
    v_lshl_add_u32 v2, v3, 4, v2
    s_mul_i32 s4, s3, {32*wstride}
    v_add_u32 v{V_WVO}, s4, v2
    v_xor_b32 v{V_WVO+1}, 64, v{V_WVO}
    v_add_u32 v{V_WVO+2}, {2*(8*wstride-1024)}, v{V_WVO}
    v_add_u32 v{V_WVO+3}, {3*(8*wstride-1024)}, v{V_WVO+1}
    v_add_u32 v{V_WVO+1}, {8*wstride-1024}, v{V_WVO+1}
    v_lshrrev_b32 v2, 4, v0
    v_bfe_u32 v3, v0, 2, 2
    v_lshl_add_u32 v12, v2, 3, v3
    v_lshlrev_b32 v12, 7, v12
    v_and_b32 v13, 3, v0
    v_lshl_add_u32 v12, v13, 3, v12
    v_and_b32 v2, 1, v2
    v_lshrrev_b32 v3, 1, v3
    v_lshl_add_u32 v2, v2, 1, v3
    v_lshl_add_u32 v{V_TRA}, v2, 5, v12
    """)
    for t in range(1, 4):
        k(f"v_xor_b32 v{V_TRA+t}, {32*t}, v{V_TRA}")


def seq(k, items):
    def all_():
        for it in items:
            it() if callable(it) else k(it)
    return all_


CFGS = {
    "b": dict(stores={8: 3, 9: 3, 10: 2, 11: 2, 12: 2, 13: 2, 14: 2, 15: 4, 16: 4, 17: 4, 18: 4}, swin={},
              xn={10: [0, 1], 11: [2, 3], 12: [4, 5], 13: [6, 7], 15: [8], 16: [9], 17: [10], 18: [11], 19: [12, 13], 20: [14, 15]}, pub2=20, poll=21),
    "e": dict(stores={8: 0, 9: 3, 10: 2, 11: 2, 12: 2, 13: 2, 14: 4, 15: 3, 16: 4, 17: 4, 18: 4, 19: 2}, swin={},
              xn={10: [0, 1], 11: [2, 3], 12: [4, 5], 13: [6, 7], 15: [8], 16: [9], 17: [10], 18: [11], 19: [12, 13], 20: [14, 15]}, pub2=21, poll=22),
    "f": dict(stores={8: 0, 9: 4, 10: 1, 11: 1, 12: 2, 13: 2, 14: 5, 15: 5, 16: 4, 17: 4, 18: 4}, swin={},
              xn={10: [0, 1], 11: [2, 3], 12: [4, 5], 13: [6, 7], 15: [], 16: [8], 17: [9], 18: [10, 11], 19: [12, 13], 20: [14, 15]}, pub2=20, poll=21),
    "g": dict(stores={8: 4, 9: 4, 10: 0, 11: 0, 12: 0, 13: 4, 14: 4, 15: 4, 16: 4, 17: 4, 18: 4}, swin={},
              xn={10: [0, 1, 2], 11: [3], 12: [4, 5, 6, 7], 13: [], 15: [], 16: [8], 17: [9], 18: [10, 11], 19: [12, 13], 20: [14, 15]}, pub2=20, poll=21),
}
CFG = CFGS[os.environ.get("CFG", "b")]


_Q = [V_ACC + 4 * i for i in range(48)]
ACC_KL, ACC_KH, ACC_VL = _Q[0:16], _Q[16:32], _Q[32:48]
ACC_VH = _Q[4:8] + _Q[12:16] + _Q[20:24] + _Q[28:32]
ACC_Q0 = _Q[0:4] + _Q[8:12] + _Q[16:20] + _Q[24:28]
ACC_Q1 = ACC_VL[1::2] + ACC_VH[1::2]


def L(f, kind, store=False):
    return It(f, kind, store=store)


def w_dma(k, step, steps, wstride=8192):
    S = steps[step]
    items = [It(f"s_add_u32 m0, s{S_W4K}, {WSLOT[step]*16384}"), It(f"s_mov_b32 s{S_SOFF}, {S['kc']*128*wstride + S['col']}")]
    for jj in range(4):
        items.append(L(lambda jj=jj: k.vmop(
            f"buffer_load_dwordx4 v{V_WVO+jj}, s[{S['srd']}:{S['srd']+3}], s{S_SOFF} offen offset:{jj*1024}{NT if step < 8 else NT2} lds", ("W", step)), "d"))
    return items


def run(k, items):
    for it in items:
        x = it.x if isinstance(it, It) else it
        x() if callable(x) else k(x)


def tr_items(k, step, t):
    base = V_WF + 16 * (t % 2)
    items = []
    delta = (WSLOT[step] // 4 - WSLOT[step - 1] // 4) * 65536 if step else 0
    if delta: items.append(It(f"v_add_u32 v{V_TRA+t}, {delta & 0xffffffff:#x}, v{V_TRA+t}"))
    for ks in range(4):
        for half in range(2):
            off = (WSLOT[step] % 4) * 16384 + ks * 4096 + half * 512
            items.append(L(lambda ks=ks, half=half, off=off: k.lgop(
                f"ds_read_b64_tr_b16 {v(base+4*ks+2*half,2)}, v{V_TRA+t} offset:{off}", ("F", step, t, ks)), "r"))
    return items


def proj_core(k, steps, res, extra_fill, res_wait, epi, hook=None, at_barrier=None):
    ns = len(steps)
    run(k, tr_items(k, 0, 0))
    pend, pst, wait_st = [], [], []
    for step, S in enumerate(steps):
        kc = S["kc"]
        acc = lambda t, b: v(S["acc"][4 * t + b], 4)
        mf, rd, ctl, mem = [], [], [], []
        for t in range(4):
            for b in range(4):
                for kk in range(4):
                    ks = kk if b % 2 == 0 else 3 - kk
                    pre = []
                    if b == 0:
                        pre.append(lambda t=t, ks=ks: k.lgwait(("F", step, t, ks)))
                    if t == 0:
                        pre += res_wait(step, b, ks)
                    wf = v(V_WF + 16 * (t % 2) + 4 * ks, 4)
                    c = "0" if (kc == 0 and kk == 0) else acc(t, b)
                    A, B = (wf, res(b, 4 * kc + ks)) if S["mode"] != "V" else (res(b, 4 * kc + ks), wf)
                    mf.append((pre, mfma(acc(t, b), A, B, c)))
            if t < 3:
                rd += window(tr_items(k, step, t + 1), 16 * t, 16 * t + 11)
            elif step + 1 < ns:
                def bar(step=step):
                    k.vmwait(("W", step + 1))
                    pre_, post_ = (at_barrier or {}).get(step, (None, None))
                    if pre_: pre_()
                    k("s_barrier")
                    if post_: post_()
                bi = L(bar, "s"); bi.cost = 24
                ctl += window([bi], 47, 47)
                rd += window(tr_items(k, step + 1, 0), 48, 59)
        streams = [rd, ctl]
        for e in extra_fill.get(step, []):
            if len(e) == 4: mem += window(e[2], e[0], e[1])
            else: streams.append(window(e[2], e[0], e[1]))
        late, early = [], []
        for w_ in WISSUE.get(step, []):
            if WSLOT[w_] == WSLOT[step - 1] or step in (5, 15): late += w_dma(k, w_, steps)
            else: early += w_dma(k, w_, steps)
        mem += window(early, 4, 46) + window(late, 48, 62)
        streams.append(mem)
        if pend:
            take, pend = pend[:64], pend[64:]
            streams.append(window(take, 8, 63))
        if pst:
            ns_ = CFG["stores"].get(step, 8)
            take, pst = pst[:ns_], pst[ns_:]
            if os.environ.get("NOST"): take = []
            streams.append(window(take, *CFG["swin"].get(step, (4, 60))))
        if not pend:
            pst += wait_st; wait_st = []
        pack(k, mf, streams)
        if hook: hook(step)
        new = epi(step)
        pend += [x for x in new if x.kind != "d"]
        wait_st += [x for x in new if x.kind == "d"]
    k("s_nop 7")
    run(k, pend)
    assert not pst and not wait_st


def kv_phase(k, ts=False):
    SC, SWK, SWV, SKO, SVO, SJ1, SJ2, SD1, SD2 = 8, 12, 16, 20, 24, 28, 32, 76, 80
    SX, SXN, SCS = 84, 88, 72
    V_CVO, V_CRA, V_SVO = 12, 16, 20
    CBASE = 65536
    J0L = 147456
    if not os.environ.get("NOCW"): code_warm(k, k.name + "_c0", k.name + "_cend", 28, "v29")
    proj_setup(k)
    k(f"""
    s_and_b32 s70, s2, 7
    s_lshl_b32 s70, s70, 2
    s_bfe_u32 s71, s2, 0x20003
    s_add_u32 s70, s70, s71
    s_lshr_b32 s71, s2, 5
    s_lshl_b32 s69, s2, 2
    s_add_u32 s69, s69, s3
    s_mul_i32 s5, s3, 24576
    s_add_u32 s5, s5, {CBASE}
    v_lshrrev_b32 v2, 4, v0
    v_and_b32 v3, 15, v0
    v_xor_b32 v21, v2, v3
    v_lshlrev_b32 v21, 4, v21
    v_lshl_add_u32 v2, v2, 10, v21
    s_lshl_b32 s4, s3, 16
    v_add_u32 v{V_CVO}, s4, v2
    v_lshl_add_u32 v{V_CRA}, v3, 8, v21
    s_mul_i32 s4, s3, {KV_TS}
    v_lshlrev_b32 v2, 4, v0
    v_add_u32 v{V_SVO}, s4, v2
    """)
    for j in range(1, 4):
        k(f"v_xor_b32 v{V_CVO+j}, {64*j}, v{V_CVO}\nv_add_u32 v{V_CVO+j}, {j*3072}, v{V_CVO+j}\nv_xor_b32 v{V_CRA+j}, {64*j}, v{V_CRA}")
    for j in range(4):
        k(f"v_add_u32 v{V_CRA+j}, s5, v{V_CRA+j}")
    k(f"s_waitcnt lgkmcnt(0)\ns_lshl_b32 s{S_W4K}, s3, 12")
    k("s_lshl_b32 s4, s71, 18"); srd(k, SC, P['ckv'], P['ckv'] + 1, "s4", 262144)
    k("s_lshl_b32 s4, s70, 8\ns_sub_u32 s68, 0x400000, s4")
    srd(k, SWK, P['wuk'], P['wuk'] + 1, "s4", "s68")
    srd(k, SWV, P['wuv'], P['wuv'] + 1, "s4", "s68")

    steps = [dict(srd=SWK, col=128 * (s_ % 2), mode="K", kc=s_ // 2, acc=(ACC_KL, ACC_KH)[s_ % 2]) for s_ in range(8)]
    steps += [dict(srd=SWV, col=128 * g_, mode="V", kc=kc_, acc=(ACC_VL, ACC_VH)[g_])
              for g_, kc_ in ((0, 0), (1, 0), (0, 1), (1, 1), (0, 2), (0, 3), (1, 2), (1, 3))]

    def c_dma(j):
        kc, b = divmod(j, 4)
        items = [It(f"s_add_u32 m0, s5, {(j % 6)*4096}"), It(f"s_mov_b32 s{S_SOFF}, {b*16384 + kc*256}")]
        for jj in range(4):
            items.append(L(lambda jj=jj: k.vmop(
                f"buffer_load_dwordx4 v{V_CVO+jj}, s[{SC}:{SC+3}], s{S_SOFF} offen offset:{jj*1024} lds", ("C", j)), "d"))
        return items

    def c_read(j):
        kc, b = divmod(j, 4)
        items = [L(lambda: k.vmwait(("C", j)), "s")]
        for ks in range(4):
            items.append(L(lambda ks=ks: k.lgop(
                f"ds_read_b128 {a(64*b+16*kc+4*ks,4)}, v{V_CRA+ks} offset:{(j % 6)*4096}", ("CR", j)), "r"))
        return items

    def c_next(j):
        return [L(lambda: k.lgwait(("CR", j)), "s")] + c_dma(j + 6)

    run(k, w_dma(k, 0, steps))
    for j in range(4): run(k, c_dma(j))
    k("""
    s_lshr_b32 s4, s2, 3
    s_lshl_b32 s4, s4, 2
    s_add_u32 s4, s4, s3
    s_lshl_b32 s4, s4, 15
    s_and_b32 s68, s2, 7
    s_lshl_b32 s68, s68, 10
    s_add_u32 s4, s4, s68
    v_lshrrev_b32 v2, 3, v0
    v_and_b32 v3, 7, v0
    v_lshlrev_b32 v3, 7, v3
    v_lshl_add_u32 v25, v2, 13, v3
    """)
    srd(k, 32, P['wuv'], P['wuv'] + 1, "s4", 3 * 8192 + 1024)
    srd(k, 80, P['wq'], P['wq'] + 1, "s4", 3 * 8192 + 1024)
    WW = os.environ.get("WW", "4")
    wwarm = lambda sr: [L(lambda: k.vmop(f"buffer_load_dword v22, v25, s[{sr}:{sr+3}], 0 offen{WNT}", "warm"), "d")]
    sync_init(k, 30)
    k(f"s_mul_i32 s4, s70, {KV_HS}\ns_mul_i32 s68, s71, {4*KV_TS}\ns_add_u32 s4, s4, s68\ns_add_u32 s4, s4, {WS_K}")
    srd(k, SKO, P['ws'], P['ws'] + 1, "s4", 3 * KV_TS + 16384)
    k(f"s_sub_u32 s4, s4, {WS_K - WS_V}")
    srd(k, SVO, P['ws'], P['ws'] + 1, "s4", 3 * KV_TS + 16384)
    k(f"s_lshr_b32 s4, s69, 3\ns_lshl_b32 s4, s4, 14\ns_add_u32 s4, s4, {WS_XN}")
    srd(k, SXN, P['ws'], P['ws'] + 1, "s4", 16384)
    k("s_lshl_b32 s4, s69, 11"); srd(k, SX, P['x'], P['x'] + 1, "s4", 2048)
    k(f"""
    s_lshr_b32 s64, s2, 3
    s_add_u32 s64, s64, 40
    s_and_b32 s65, s2, 7
    s_lshl_b32 s66, s64, 15
    s_lshl_b32 s67, s65, 7
    s_add_u32 s66, s66, s67
    s_min_u32 s66, s66, {1376*1024}
    s_sub_u32 s68, {1376*1024}, s66
    """)
    srd(k, SJ1, P['w2'], P['w2'] + 1, "s66", "s68")
    k(f"s_mul_i32 s67, s65, {4*43*1024}\ns_lshl_b32 s64, s64, 10\ns_add_u32 s67, s67, s64\ns_add_u32 s67, s67, {WS_W2}")
    srd(k, SD1, P['ws'], P['ws'] + 1, "s67", 3 * 43 * 1024 + 1024)
    k(f"""
    s_lshl_b32 s62, s3, 8
    s_add_u32 s62, s62, s2
    v_lshrrev_b32 v2, 3, v0
    v_and_b32 v3, 7, v0
    v_lshlrev_b32 v3, 4, v3
    v_lshl_add_u32 v21, v2, 10, v3
    v_bfe_u32 v2, v0, 2, 4
    v_lshlrev_b32 v2, 7, v2
    v_and_b32 v3, 3, v0
    v_lshl_add_u32 v23, v3, 3, v2
    v_add_u32 v23, {J0L}, v23
    v_lshlrev_b32 v24, 4, v0
    v_and_b32 v26, 1, v0
    v_lshlrev_b32 v26, 10, v26
    v_lshrrev_b32 v3, 1, v0
    v_lshl_add_u32 v26, v3, 4, v26
    """)
    k("s_mov_b32 s64, 4096\ns_mov_b32 s65, 8192\ns_mov_b32 s66, 12288")
    stamp(k, 1, ts)
    run(k, c_read(0)); run(k, c_dma(4))
    run(k, c_read(1)); run(k, c_dma(5))
    run(k, c_read(2)); run(k, w_dma(k, 1, steps))
    run(k, c_read(3))
    k.vmop(f"buffer_load_dwordx4 {v(192,4)}, v26, s[{SX}:{SX+3}], 0 offen", "X")
    k.vmop(f"buffer_load_dwordx4 {v(196,4)}, v26, s[{SX}:{SX+3}], 0 offen offset:512", "X")
    PS = os.environ.get("PS", "r")
    stamp(k, 2, ts)
    k.vmwait(("W", 0))
    k("s_barrier")
    k(f"{k.name}_c0:")
    stamp(k, 3, ts)

    T = 192
    ln = []
    ln.append(L(lambda: k.vmop(f"buffer_load_dwordx4 {v(T,4)}, v26, s[{SX}:{SX+3}], 0 offen", "X"), "d"))
    ln.append(L(lambda: k.vmop(f"buffer_load_dwordx4 {v(T+4,4)}, v26, s[{SX}:{SX+3}], 0 offen offset:512", "X"), "d"))
    l2 = [L(lambda: k.vmwait("X"), "s")]
    X = T + 8
    class Rec:
        def __init__(s): s.items = []
        def __call__(s, t):
            for l_ in t.split("\n"):
                if not l_.startswith("s_nop"): s.items.append(It(l_))
    R = Rec()
    for j in range(8): R(f"v_lshlrev_b32 v{X+2*j}, 16, v{T+j}\nv_and_b32 v{X+1+2*j}, 0xffff0000, v{T+j}")
    R(f"v_add_f32 v2, v{X}, v{X+1}")
    for j in range(2, 16): R(f"v_add_f32 v2, v2, v{X+j}")
    xlane_sum(R, 2, 3, ["q2", "r4", "r8", "p16", "p32"])
    R(f"v_mul_f32 v2, 0x3b000000, v2")
    R(f"v_sub_f32 v3, v{X}, v2\nv_mul_f32 v27, v3, v3")
    for j in range(1, 16): R(f"v_sub_f32 v3, v{X+j}, v2\nv_fmac_f32 v27, v3, v3")
    xlane_sum(R, 27, 3, ["q2", "r4", "r8", "p16", "p32"])
    for t_ in ["v_mul_f32 v27, 0x3b000000, v27\nv_cvt_pk_bf16_f32 v2, v2, v27", "v_and_b32 v27, 0xffff0000, v2\nv_lshlrev_b32 v2, 16, v2",
               "v_add_f32 v27, 0x3727c5ac, v27\nv_cvt_pk_bf16_f32 v27, v27, v27", "v_lshlrev_b32 v27, 16, v27\nv_sqrt_f32 v27, v27\ns_nop 0",
               "v_cvt_pk_bf16_f32 v27, v27, v27\nv_lshlrev_b32 v27, 16, v27", "v_rcp_f32 v27, v27\ns_nop 0"]: R(t_)
    for j in range(8):
        R(f"v_sub_f32 v{X+2*j}, v{X+2*j}, v2\nv_sub_f32 v{X+2*j+1}, v{X+2*j+1}, v2")
        R(f"v_cvt_pk_bf16_f32 v{T+j}, v{X+2*j}, v{X+1+2*j}\nv_lshlrev_b32 v{X+2*j}, 16, v{T+j}")
        R(f"v_and_b32 v{X+1+2*j}, 0xffff0000, v{T+j}\nv_mul_f32 v{X+2*j}, v{X+2*j}, v27")
        R(f"v_mul_f32 v{X+2*j+1}, v{X+2*j+1}, v27\nv_cvt_pk_bf16_f32 v{T+j}, v{X+2*j}, v{X+1+2*j}")
    l2 += R.items
    XL = 155648
    R = Rec()
    R(f"s_lshl_b32 s68, s3, 5\ns_add_u32 s68, s68, {XL}\nv_and_b32 v2, 1, v0\nv_lshlrev_b32 v2, 4, v2")
    R("v_lshrrev_b32 v3, 1, v0\nv_lshl_add_u32 v2, v3, 7, v2\nv_add_u32 v2, s68, v2")
    l3 = R.items + [L(lambda j=j: k.lgop(f"ds_write_b128 v2, {v(T+4*j,4)} offset:{4096*j}", "xw"), "r") for j in range(2)]
    R = Rec()
    R(f"s_lshl_b32 s68, s3, 11\ns_add_u32 s68, s68, {XL}\nv_add_u32 v2, s68, v24")
    l4 = R.items + [L(lambda j=j: k.lgop(f"ds_read_b128 {v(T+4*j,4)}, v2 offset:{1024*j}", "xr"), "r") for j in range(2)]
    R = Rec()
    R("s_and_b32 s68, s2, 1\ns_lshl_b32 s68, s68, 7\ns_add_u32 s68, s68, s58\nv_lshrrev_b32 v2, 3, v0\nv_lshlrev_b32 v2, 8, v2")
    R("v_and_b32 v3, 7, v0\nv_lshl_add_u32 v2, v3, 4, v2\nv_add_u32 v2, s68, v2")
    l4 += R.items + [L(lambda: k.lgwait("xr"), "s")]
    l4 += [L(lambda j=j: k.vmop(f"buffer_store_dwordx4 {v(T+4*j,4)}, v2, s[{SXN}:{SXN+3}], 0 offen offset:{2048*j}{SC1}", "sj"), "d") for j in range(2)]

    def j0(part):
        def f():
            lab = k.label("j0")
            k(f"s_cmp_lt_u32 s62, 24\ns_cbranch_scc0 {lab}")
            if part == 0:
                k(f"s_mov_b32 m0, {J0L}\ns_mov_b32 s68, 0")
                for jj in range(4):
                    k(f"buffer_load_dwordx4 v21, s[{SJ1}:{SJ1+3}], s68 offen offset:{jj*1024}{NT} lds\ns_add_u32 s68, s68, 7168")
            else:
                JF = ACC_Q1
                for t in range(4):
                    for half in range(2): k(f"ds_read_b64_tr_b16 {v(JF[t]+2*half,2)}, v23 offset:{32*t + 2048*half}")
                k("s_waitcnt lgkmcnt(0)\ns_mov_b32 s68, 0")
                for t in range(4):
                    k(f"buffer_store_dwordx4 {v(JF[t],4)}, v24, s[{SD1}:{SD1+3}], s68 offen{SC1}\ns_add_u32 s68, s68, {43*1024}")
            k(f"{lab}:")
        return [L(f, "s")]

    cc = lambda j: c_read(j) + (c_next(j) if j + 6 < 16 else [])
    n3 = len(l2) // 5
    if PS == "f":
        e0 = c_next(0) + c_next(1) + w_dma(k, 2, steps) + c_next(2) + c_next(3) + cc(4)
        e1 = w_dma(k, 3, steps) + cc(5) + cc(6) + cc(7)
        e2, e3, e4 = cc(8) + cc(9), cc(10) + cc(11), cc(12) + cc(13)
    else:
        e0 = c_next(0) + c_next(1) + w_dma(k, 2, steps) + c_read(4)
        e1 = c_next(2) + c_next(3) + w_dma(k, 3, steps) + c_read(5) + c_read(6) + c_read(7)
        e2 = c_next(4) + c_next(5) + c_next(6) + c_read(8)
        e3 = c_next(7) + c_read(9) + c_next(8) + c_read(10) + c_read(11)
        e4 = c_next(9) + c_read(12) + c_read(13)
    if WW == "4": e4 = e4 + wwarm(32) + wwarm(80)
    if WW == "3": e3 = e3 + wwarm(32); e4 = e4 + wwarm(80)
    if WW == "1": e1 = e1 + wwarm(32); e3 = e3 + wwarm(80)
    extra = {0: [(0, 62, e0, "mem"), (50, 50, [L(lambda: sync_tag(k, 30), "s")])],
             1: [(0, 46, e1, "mem"), (8, 63, l2[:2*n3])],
             2: [(2, 46, e2, "mem"), (0, 63, l2[2*n3:4*n3])],
             3: [(2, 44, e3, "mem"), (0, 44, l2[4*n3:]), (48, 63, l3)],
             4: [(2, 44, e4, "mem"), (48, 63, l4)],
             5: [(20, 44, cc(14) + cc(15) + [L(lambda: k.lgwait(("CR", 15)), "s")], "mem")],
             6: [(0, 0, j0(0), "mem")],
             15: [(2, 2, j0(1))]}

    def epi(step):
        S = steps[step]
        if S["kc"] != 3: return []
        A = lambda t, b: S["acc"][4 * t + b]
        g = S["col"] // 128
        items = []
        def pk(d, x, y, sr, off):
            if S["mode"] == "V":
                for r in range(4):
                    items.append(It(f"v_mul_f32 v{x+r}, 0x5f800000, v{x+r}\nv_mul_f32 v{y+r}, 0x5f800000, v{y+r}"))
            items.extend(It(t_) for t_ in [f"v_cvt_pk_bf16_f32 v{d}, v{x}, v{x+1}", f"v_cvt_pk_bf16_f32 v{d+1}, v{x+2}, v{x+3}",
                                           f"v_cvt_pk_bf16_f32 v{d+2}, v{y}, v{y+1}", f"v_cvt_pk_bf16_f32 v{d+3}, v{y+2}, v{y+3}"])
            so, im = divmod(off, 4096)
            items.append(L(lambda: k.vmop(
                f"buffer_store_dwordx4 {v(d,4)}, v{V_SVO}, s[{sr}:{sr+3}], {'0' if so == 0 else 's%d' % (63+so)} offen offset:{im}{KVSC}", "kv"), "d", True))
        if S["mode"] == "K":
            for b in range(4):
                for j in range(2):
                    pk(A(2 * j, b), A(2 * j, b), A(2 * j + 1, b), SKO, b * 4096 + (2 * g + j) * 1024)
        else:
            for t in range(4):
                for j in range(2):
                    pk(A(t, 2 * j), A(t, 2 * j), A(t, 2 * j + 1), SVO, j * 8192 + (4 * g + t) * 1024)
        return items
    return steps, extra, epi
```

```python
from emit import *
from k1 import run, L, SC1
from k35 import reduce_addr, reduce_items

SA, SB, SR, SO, SS = 8, 20, 28, 24, 88
X0 = 244
S_R, S_C, S_P0, S_WB, S_T, S_L0, S_L1, S_L2 = 40, 41, 42, 43, 44, 45, 48, 49
V_AO, V_LA = 4, 8
V_TMP, V_ACC = 16, 64
import os
RATE, ALEAD, NPRE = float(os.environ.get('ORATE', '10.5')), int(os.environ.get('ALEAD', '4')), int(os.environ.get('NPRE', '20'))
import os
NA_AG, NA_LDS, NA_VG, NA_AG2 = 4, 6, 8, int(os.environ.get('NA2', '6'))


def setup(k):
    k(f"""
    s_and_b32 s{S_R}, s2, 7
    s_lshl_b32 s{S_R}, s{S_R}, 2
    s_bfe_u32 s5, s2, 0x20003
    s_add_u32 s{S_R}, s{S_R}, s5
    s_lshr_b32 s{S_C}, s2, 5
    s_lshl_b32 s{S_P0}, s{S_C}, 12
    s_lshl_b32 s{S_WB}, s3, 15
    """)
    k(f"s_lshl_b32 s5, s{S_C}, 19\ns_add_u32 s5, s5, {WS_WO}"); srd(k, SA, P['ws'], P['ws'] + 1, "s5", 4 * 131072)
    k(f"s_lshl_b32 s5, s{S_R}, 19\ns_add_u32 s5, s5, {WS_CTX}"); srd(k, SB, P['ws'], P['ws'] + 1, "s5", 4 * 131072)
    k(f"v_lshlrev_b32 v{V_AO}, 4, v0")
    for t in range(1, 4): k(f"v_add_u32 v{V_AO+t}, {t*131072}, v{V_AO}")
    k(f"""
    s_lshr_b32 s5, s{S_R}, 1
    s_sub_u32 s6, 15, s5
    s_min_u32 s5, s5, s6
    s_lshl_b32 s5, s5, 5
    s_lshl_b32 s6, s3, 1
    s_add_u32 s5, s5, s6
    s_lshl_b32 s5, s5, 7
    s_add_u32 s5, s5, {FOFF[3]}
    v_bfe_u32 v11, v0, 2, 1
    v_and_b32 v2, 3, v0
    v_lshl_add_u32 v11, v2, 3, v11
    v_lshlrev_b32 v11, 7, v11
    v_add_u32 v11, s5, v11
    s_lshl_b32 s5, s{S_R}, 2
    s_add_u32 s5, s5, s3
    s_lshl_b32 s5, s5, 14
    s_lshl_b32 s6, s{S_C}, 7
    s_add_u32 s6, s6, s5
    """)
    srd(k, SR, P['x'], P['x'] + 1, "s6", 15 * 1024 + 128)


def soff(b):
    return It(f"s_add_u32 s{S_T}, s{S_P0}, {b*2048}\ns_and_b32 s{S_T}, s{S_T}, 0x7fff\ns_add_u32 s{S_T}, s{S_T}, s{S_WB}", "s")


def a_reg(p, t):
    if p < NA_AG: return a((16 * p if p < 2 else 192 + 16 * p) + 4 * t, 4)
    p -= NA_AG + NA_LDS
    if p < 0: return None
    if p < NA_VG: return v(128 + 16 * p + 4 * t, 4)
    p -= NA_VG
    if p < NA_AG2: return a(96 + 16 * p + 4 * t, 4)
    return "ring"


def a_loads(k, b):
    items = [soff(b)]
    for ks in range(2):
        for t in range(4):
            items.append(L(lambda ks=ks, t=t: k.vmop(
                f"buffer_load_dwordx4 {a_reg(2*b+ks, t)}, v{V_AO+t}, s[{SA}:{SA+3}], s{S_T} offen offset:{ks*1024}{SC1}", ("A", b)), "d"))
    return items


def early_items(k, s_wr, s_w4k):
    items = a_loads(k, 0) + a_loads(k, 1)
    items += [It(f"s_lshl_b32 s{S_L0}, s3, 13\ns_add_u32 s{S_L0}, s{S_L0}, 131072", "s"),
              It(f"s_add_u32 s{S_L1}, s{s_wr}, s{s_w4k}", "s"),
              It(f"s_sub_u32 s{S_L2}, s{S_L1}, 32768\ns_and_b32 s{S_L2}, s{S_L2}, 0x1ffff", "s")]
    for j, sl in enumerate((S_L0, S_L1, S_L2)):
        items.append(It(f"v_add_u32 v{V_LA+j}, s{sl}, v{V_AO}"))
        items.append(soff(2 + j))
        for t in range(4):
            items.append(It(f"s_add_u32 m0, s{sl}, {t*2048}"))
            for ks in range(2):
                items.append(L(lambda ks=ks, t=t, j=j: k.vmop(
                    f"buffer_load_dwordx4 v{V_AO+t}, s[{SA}:{SA+3}], s{S_T} offen offset:{ks*1024}{SC1} lds", ("A", 2 + j)), "d"))
    return items


def o_phase(k, ts, st0, nxt):
    X = 56
    k(f"""
    v_lshrrev_b32 v12, 3, v0
    v_and_b32 v13, 7, v0
    v_lshlrev_b32 v13, 4, v13
    v_lshl_add_u32 v12, v12, 10, v13
    v_and_b32 v13, 15, v0
    v_lshlrev_b32 v13, 7, v13
    v_lshrrev_b32 v14, 4, v0
    v_lshl_add_u32 v13, v14, 3, v13
    v_add_u32 v15, s{S_L0}, v13
    """)
    xdma = [It(f"s_mov_b32 m0, s{S_L0}"), It(f"s_mov_b32 s4, 7168")]
    xdma += [L(lambda j=j: k.vmop(f"buffer_load_dwordx4 v12, s[{SR}:{SR+3}], {'s4' if j else '0'} offen offset:{1024*j} lds", "X"), "d") for j in range(2)]
    xrd = [L(lambda: k.vmwait("X"), "s")] + [L(lambda nt=nt: k.lgop(f"ds_read_b64 {v(X+2*nt,2)}, v15 offset:{32*nt}", "XR"), "r") for nt in range(4)]
    for b in range(5, 9 + NA_AG2 // 2): run(k, a_loads(k, b))
    k(f"s_lshl_b32 s5, s{S_R}, 2\ns_add_u32 s5, s5, s3\ns_lshl_b32 s5, s5, 14")
    k(f"s_lshl_b32 s4, s{S_C}, 11\ns_add_u32 s4, s4, s5\ns_add_u32 s4, s4, {WS_H}"); srd(k, SO, P['ws'], P['ws'] + 1, "s4", 2048)
    k(f"s_lshr_b32 s5, s5, 4\ns_lshl_b32 s4, s{S_C}, 7\ns_add_u32 s4, s4, s5\ns_add_u32 s4, s4, {WS_ST}"); srd(k, SS, P['ws'], P['ws'] + 1, "s4", 128)
    stamp(k, 0, ts == "o")
    await_flags(k, 11, 2)
    stamp(k, 1, ts == "o")
    stamp(k, st0, ts is True)

    free = [a(32 + 4 * q, 4) for q in range(16)] + [a(192 + 4 * q, 4) for q in range(8)] + [a(96 + 16 * NA_AG2 + 4 * q, 4) for q in range(4 * (6 - NA_AG2))]
    Bq, Aq = {}, {}
    todo = []
    for b in range(16):
        todo.append((b, "B"))
        if a_reg(2 * b, 0) == "ring": todo.append((b - ALEAD, "A", b))
    todo = [(x[-1] if x[1] == "A" else x[0], x[1]) for x in sorted(todo, key=lambda x: x[0])]

    todo = [(b, op, j) for b, op in todo for j in range(8)]

    def issue(n):
        items = []
        while todo and free and n > 0:
            b, op, j = todo.pop(0); n -= 1
            if j == 0 or not items: items.append(soff(b))
            r_ = free.pop(0)
            (Bq if op == "B" else Aq).setdefault(b, {})[j] = r_
            sr = SB if op == "B" else SA
            items.append(L(lambda r_=r_, sr=sr, j=j, op=op, b=b: k.vmop(
                f"buffer_load_dwordx4 {r_}, v{V_AO+j%4}, s[{sr}:{sr+3}], s{S_T} offen offset:{(j//4)*1024}{SC1}", (op, b)), "d"))
        return items

    def lds_reads(b):
        j = b - 2
        return [L(lambda ks=ks, t=t: k.lgop(
            f"ds_read_b128 {v(V_TMP + 4*((8*j + 2*t + ks) % 10), 4)}, v{V_LA+j} offset:{t*2048+ks*1024}", ("AL", b, t)), "r")
            for t in range(4) for ks in range(2)]
    tmpq = lambda b, ks, t: v(V_TMP + 4 * ((8 * (b - 2) + 2 * t + ks) % 10), 4)

    run(k, issue(NPRE))
    credit = 0.0
    for b in range(16):
        mf, streams, rd = [], [], []
        lds = 2 <= b <= 4
        for nt in range(4):
            for rr in range(4):
                rb = rr if nt % 2 == 0 else 3 - rr
                for kk in range(2):
                    ks = kk if rr % 2 == 0 else 1 - kk
                    pre = [lambda: k.vmwait([("B", b), ("A", b)])] if not mf else []
                    if lds and rr == 0 and kk == 0: pre.append(lambda nt=nt: k.lgwait(("AL", b, nt)))
                    A = tmpq(b, ks, nt) if lds else Aq[b][4 * ks + nt] if b in Aq else a_reg(2 * b + ks, nt)
                    acc = v(V_ACC + 16 * rb + 4 * nt, 4)
                    mf.append((pre, mfma(acc, A, Bq[b][4 * ks + rb], "0" if b == 0 and kk == 0 else acc)))
        if 2 <= b + 1 <= 4:
            its = lds_reads(b + 1)
            if b == 1:
                rd = [L(lambda: k.vmwait(("A", 4)), "s")] + its
                streams.append(window(rd, 2, 24))
            else:
                streams.append(window(its[:2], 0, 6) + [x for j_ in range(3) for x in window(its[2 + 2*j_:4 + 2*j_], 8 * j_ + 8, 8 * j_ + 14)])
        its = []
        credit += RATE
        nn = max(int(credit), sum(1 for x in todo if x[0] <= b + 1))
        its = issue(nn); credit -= int(credit)
        assert not any(x[0] <= b + 1 for x in todo)
        if b == 4: its = xdma + its
        streams.append(window(its, 0, 30))
        if b == 12: streams.append(window(xrd, 0, 12))
        if b == 6:
            streams.append(window([It("s_barrier")] + reduce_addr(k, 256, 1024, 12), 4, 24))
        if b == 8: streams.append(window(nxt[0], 0, 31))
        if b == 13: streams.append(window(nxt[1], 8, 31))
        if b == 14: streams.append(window(nxt[2], 0, 31))
        if b == 15: streams.append(reduce_items(k, [(rr if nt % 2 == 0 else 3 - rr, nt) for nt in range(4) for rr in range(4)], 2, V_ACC, 1024, 12))
        pack(k, mf, streams)
        if ts == "o": stamp(k, 2 + b, True)
        free += list(Bq[b].values()) + list(Aq.get(b, {}).values())
        for p in (2 * b, 2 * b + 1):
            if a_reg(p, 0) not in (None, "ring") and b < 12: free += [a_reg(p, t) for t in range(4)]
    stamp(k, st0 + 1, ts is True)
    V_T = 128
    k(f"s_lshl_b32 s4, s3, 12\nv_add_u32 v13, s4, v{V_AO}\nv_lshlrev_b32 v14, 3, v0")
    k.lgdrain()
    k("s_barrier")
    for w in range(4):
        for nt in range(4):
            k.lgop(f"ds_read_b128 {v(V_T+16*w+4*nt,4)}, v13 offset:{w*16384+nt*1024}", ("rr", w))
    k.lgwait(("rr", 1))
    for r in range(16): k(f"v_add_f32 v{V_T+r}, v{V_T+r}, v{V_T+16+r}")
    k.lgwait(("rr", 3))
    for r in range(16): k(f"v_add_f32 v{V_T+32+r}, v{V_T+32+r}, v{V_T+48+r}")
    for r in range(16): k(f"v_add_f32 v{V_T+r}, v{V_T+r}, v{V_T+32+r}")
    H, U = 16, V_T + 16
    for j in range(8):
        k(f"""
        v_cvt_pk_bf16_f32 v{H+j}, v{V_T+2*j}, v{V_T+2*j+1}
        v_lshlrev_b32 v{U+2*j}, 16, v{X+j}
        v_and_b32 v{U+2*j+1}, 0xffff0000, v{X+j}
        v_lshlrev_b32 v{V_T+2*j}, 16, v{H+j}
        v_and_b32 v{V_T+2*j+1}, 0xffff0000, v{H+j}
        v_add_f32 v{U+2*j}, v{U+2*j}, v{V_T+2*j}
        v_add_f32 v{U+2*j+1}, v{U+2*j+1}, v{V_T+2*j+1}
        v_cvt_pk_bf16_f32 v{H+j}, v{U+2*j}, v{U+2*j+1}
        """)
    for j in range(2):
        k.vmop(f"buffer_store_dwordx4 {v(H+4*j,4)}, v{V_AO}, s[{SO}:{SO+3}], 0 offen offset:{1024*j}{SC1}", "st")
    for j in range(8):
        k(f"v_lshlrev_b32 v{U+2*j}, 16, v{H+j}\nv_and_b32 v{U+2*j+1}, 0xffff0000, v{H+j}")
    k(f"v_add_f32 v32, v{U}, v{U+1}")
    for j in range(2, 16): k(f"v_add_f32 v32, v32, v{U+j}")
    xlane_sum(k, 32, 3, ["p16", "p32"])
    k(f"v_mul_f32 v32, 0x3c800000, v32\nv_sub_f32 v3, v{U}, v32\nv_mul_f32 v33, v3, v3")
    for j in range(1, 16): k(f"v_sub_f32 v3, v{U+j}, v32\nv_fmac_f32 v33, v3, v3")
    xlane_sum(k, 33, 3, ["p16", "p32"])
    k.vmop(f"buffer_store_dwordx2 v[32:33], v14, s[{SS}:{SS+3}], 0 offen{SC1}", "st")
```

```python
from emit import *
from k1 import seq, SC1
import os
NPRE = int(os.environ.get('GPRE', '5'))

V_L16, V_WVO, V_HO, V_RA = 2, 28, 7, 9
V_CSP = 36
V_MB, V_RS, V_S2, V_NL = 12, 14, 16, 18
V_WF, V_ACC, V_T = 32, 64, 160
SW, SH, SST, SCS, SO = 12, 8, 20, 16, 24
S_RB, S_PS, S_SO, S_LW, S_CG = 70, 71, 72, 73, 74
SLOT, NSL, CSL = 24576, 6, 149504
slot = lambda s_: (s_ + 3) % NSL


def wdma(k, s_):
    items = [It(f"s_add_u32 m0, s{S_LW}, {slot(s_)*SLOT}"), It(f"s_mov_b32 s{S_SO}, {s_*2048}")]
    for tt in range(3):
        if tt == 2: items.append(It(f"s_add_u32 m0, s{S_LW}, {slot(s_)*SLOT + 4096}"))
        for kk in range(2):
            items.append(It(lambda tt=tt, kk=kk: k.vmop(
                f"buffer_load_dwordx4 v{V_WVO+tt}, s[{SW}:{SW+3}], s{S_SO} offen offset:{(tt % 2)*2048 + kk*1024}{SC1} lds", ("W", s_)), "d"))
    return items


def early(k):
    class Rec:
        def __init__(s): s.items = []
        def __call__(s, t): s.items.append(It(t.strip(), "s" if t.strip().startswith("s_") else "v"))
    R = Rec()
    for l_ in f"""
    s_and_b32 s{S_RB}, s2, 3
    s_lshl_b32 s{S_RB}, s{S_RB}, 2
    s_bfe_u32 s5, s2, 0x20003
    s_add_u32 s{S_RB}, s{S_RB}, s5
    s_lshl_b32 s{S_RB}, s{S_RB}, 3
    s_lshl_b32 s5, s3, 1
    s_add_u32 s{S_RB}, s{S_RB}, s5
    s_lshr_b32 s{S_CG}, s2, 5
    s_and_b32 s5, s2, 4
    s_lshl_b32 s5, s5, 1
    s_add_u32 s{S_CG}, s{S_CG}, s5
    s_mul_i32 s6, s{S_CG}, 3
    s_lshl_b32 s5, s{S_CG}, 1
    s_add_u32 s5, s5, 11
    s_min_u32 s{S_PS}, s6, s5
    s_mul_i32 s{S_LW}, s3, {3*2048}
    s_mul_i32 s5, s3, {3*16384}
    v_lshlrev_b32 v{V_WVO}, 4, v0
    v_add_u32 v{V_WVO}, s5, v{V_WVO}
    v_add_u32 v{V_WVO+1}, {16384-2048}, v{V_WVO}
    v_add_u32 v{V_WVO+2}, {2*16384}, v{V_WVO}
    s_lshl_b32 s5, s3, 6
    v_add_u32 v53, s5, v0
    v_bfe_u32 v52, v53, 4, 1
    v_mul_u32_u24 v52, {16*5632}, v52
    v_lshrrev_b32 v54, 5, v53
    v_lshlrev_b32 v54, 6, v54
    v_add_u32 v52, v52, v54
    v_and_b32 v54, 15, v0
    v_lshl_add_u32 v52, v54, 2, v52
    v_lshlrev_b32 v53, 2, v53
    v_add_u32 v53, {CSL}, v53
    """.strip().split("\n"): R(l_)
    R(f"s_cmp_ge_u32 s{S_CG}, 11\ns_cselect_b32 s6, 8, 12\ns_lshl_b32 s6, s6, 14\ns_lshl_b32 s5, s{S_PS}, 16\ns_add_u32 s5, s5, {WS_W13}")
    srd(R, SW, P['ws'], P['ws'] + 1, "s5", "s6")
    R(f"s_lshl_b32 s5, s{S_PS}, 7\ns_sub_u32 s6, {32*5632}, s5\ns_add_u32 s5, s5, {WS_CS}")
    srd(R, SCS, P['ws'], P['ws'] + 1, "s5", "s6")
    loads = [It("s_mov_b32 s5, 0")]
    for ks in range(16):
        loads.append(It(lambda ks=ks: k.vmop(f"buffer_load_dword v{V_CSP+ks}, v52, s[{SCS}:{SCS+3}], s5 offen{SC1}", "CS"), "d"))
        if ks < 15: loads.append(It("s_add_u32 s5, s5, 5632"))
    return R.items, loads, wdma(k, 0) + wdma(k, 1)


def body(k, np_, ts, st0, extra=None):
    nt = 4 * np_

    def hload(s_):
        items = [It(f"s_mov_b32 s5, {s_*2048}")]
        for rb in range(2):
            for kk in range(2):
                items.append(It(lambda rb=rb, kk=kk: k.vmop(
                    f"buffer_load_dwordx4 {a(16*s_+8*rb+4*kk,4)}, v{V_HO+rb}, s[{SH}:{SH+3}], s5 offen offset:{kk*1024}{SC1}", ("H", s_)), "d"))
        return items
    run = lambda items: seq(k, [it.x for it in items])()
    for s_ in range(2, NPRE): run(wdma(k, s_))
    k.vmwait("CS")
    for ks in range(1, 16): k(f"v_add_f32 v{V_CSP}, v{V_CSP}, v{V_CSP+ks}")
    k.lgop(f"ds_write_b32 v53, v{V_CSP}", "csw")
    k(f"v_and_b32 v20, 15, v0\nv_lshlrev_b32 v20, 3, v20\nv_lshrrev_b32 v3, 4, v0\nv_lshl_add_u32 v20, v3, 8, v20")
    k(f"v_lshlrev_b32 v21, 4, v3\nv_add_u32 v21, {CSL}, v21")
    k(f"v_add_u32 v{V_RA+1}, {2*SLOT}, v{V_L16}\nv_add_u32 v{V_RA+2}, {4*SLOT}, v{V_L16}")
    k.lgdrain()
    await_flags(k, 22, 23)
    stamp(k, st0, ts)
    run(hload(0))
    for rb in range(2):
        for c in range(2):
            k.vmop(f"buffer_load_dwordx2 {v(V_T+4*rb+2*c,2)}, v20, s[{SST}:{SST+3}], 0 offen offset:{1024*rb+128*c}{SC1}", "ST")
    for s_ in range(1, 3): run(hload(s_))
    k("s_barrier")

    class Rec:
        def __init__(s): s.items = []
        def __call__(s, t):
            s.items += [It(l_.strip()) for l_ in t.strip().split("\n") if not l_.strip().startswith("s_nop")]
    R = Rec()
    for rb in range(2):
        T = V_T + 4 * rb
        m, q = V_MB + rb, V_RS + rb
        R(f"v_add_f32 v{m}, v{T}, v{T+2}")
        xlane_sum(R, m, 3, ["p16", "p32"])
        R(f"""
        v_mul_f32 v{m}, 0x3e000000, v{m}
        v_sub_f32 v{T}, v{T}, v{m}
        v_sub_f32 v{T+2}, v{T+2}, v{m}
        v_mul_f32 v{T}, v{T}, v{T}
        v_fmac_f32 v{T}, v{T+2}, v{T+2}
        v_add_f32 v{q}, v{T+1}, v{T+3}
        v_fmac_f32 v{q}, 0x42800000, v{T}
        """)
        xlane_sum(R, q, 3, ["p16", "p32"])
        R(f"""
        v_mul_f32 v{q}, 0x3b000000, v{q}
        v_cvt_pk_bf16_f32 v{m}, v{m}, v{q}
        v_and_b32 v{q}, 0xffff0000, v{m}
        v_lshlrev_b32 v{m}, 16, v{m}
        v_xor_b32 v{m}, 0x80000000, v{m}
        v_add_f32 v{q}, 0x3727c5ac, v{q}
        v_cvt_pk_bf16_f32 v{q}, v{q}, v{q}
        v_lshlrev_b32 v{q}, 16, v{q}
        v_sqrt_f32 v{q}, v{q}
        v_cvt_pk_bf16_f32 v{q}, v{q}, v{q}
        v_lshlrev_b32 v{q}, 16, v{q}
        v_mul_f32 v{V_S2+rb}, v{q}, v{q}
        v_rcp_f32 v{q}, v{q}
        v_mul_f32 v{V_NL+rb}, 0xbfb8aa3b, v{q}
        """)
    stats = [It(lambda: k.vmwait("ST"), "s")] + R.items
    CS = V_T + 16
    csrd = [It(lambda t=t: k.lgop(f"ds_read_b128 {v(CS+4*t,4)}, v21 offset:{64*t}", ("cs", t)), "r") for t in range(nt)]

    def wreads(s_, t, fs=None):
        fs = t % 4 if fs is None else fs
        return [It(lambda kk=kk: k.lgop(
            f"ds_read_b128 {v(V_WF+8*fs+4*kk,4)}, v{V_RA + slot(s_)//2} offset:{(slot(s_) % 2)*SLOT + t*2048 + kk*1024}", ("F", s_, t)), "r") for kk in range(2)]
    for t in range(3): run(wreads(0, t))
    acc = lambda t, rb: V_ACC + 8 * t + 4 * rb
    stamp(k, st0 + 1, ts)
    for s_ in range(6):
        mf, rd = [], []
        for t in range(nt):
            for rr in range(2):
                rb = rr if t % 2 == 0 else 1 - rr
                for q_, kk in enumerate((0, 1) if rr == 0 else (1, 0)):
                    pre = []
                    if len(mf) == 0: pre.append(lambda: k.vmwait(("H", s_)))
                    if rr == 0 and kk == 0: pre.append(lambda t=t: k.lgwait(("F", s_, t)))
                    mf.append((pre, mfma(v(acc(t, rb), 4), v(V_WF + 8 * (t % 4) + 4 * kk, 4), a(16 * s_ + 8 * rb + 4 * kk, 4),
                                         "0" if s_ == 0 and q_ == 0 else v(acc(t, rb), 4))))
            t3 = t + 3
            if t3 < nt: its = wreads(s_, t3)
            elif s_ < 5: its = wreads(s_ + 1, t3 - nt)
            else: its = wreads(6 + t3 - nt, 0, t3 - nt) if t3 - nt < 2 else []
            rd += window(its, 4 * t, 4 * t + 3)
        streams = [rd]
        bpos = 4 * (nt - 3) - 1
        if s_ in (1, 2, 5) or s_ + 1 >= NPRE:
            streams.append(window([It(lambda: (k.vmwait([("W", 6), ("W", 7)] if s_ == 5 else [("W", s_ + 1)]), k("s_barrier")), "s")], bpos, bpos))
        wl = window(wdma(k, NPRE + s_), 1, bpos - 1) if NPRE + s_ < 6 else []
        if s_ in (1, 2): wl += window(wdma(k, s_ + 5), bpos + 1, len(mf) - 1)
        streams.append(wl)
        n_ = len(mf)
        if s_ < 3: streams.append(window(hload(3 + 2 * s_) + (hload(4 + 2 * s_) if s_ < 2 else []), 1, bpos - 1))
        if s_ == 1: streams.append(window(stats[:len(stats) // 2], 0, n_ - 1))
        if s_ == 2: streams.append(window(stats[len(stats) // 2:], 0, n_ - 1))
        if s_ == 3: streams.append(window(csrd, 0, n_ - 1))
        if s_ in (4, 5):
            fx = []
            for t in range(nt // 2 * (s_ - 4), nt // 2 * (s_ - 3)):
                its = [It(lambda t=t: k.lgwait(("cs", t)), "s")]
                its += [It(f"v_fmac_f32 v{acc(t, rb)+r}, v{CS+4*t+r}, v{V_MB+rb}") for rb in range(2) for r in range(4)]
                lo = 4 * t + 8 + 2 * (t - nt // 2 * (s_ - 4)) if s_ == 4 else 4 * (t - nt // 2)
                fx += window(its, lo, lo + 5 if s_ == 4 else lo + 3)
            streams.append(fx)
        if extra and s_ in extra: streams.append(window(extra[s_](), 2, n_ - 4))
        pack(k, mf, streams)
    def swiglu(pp):
        its = []
        for rb in range(2):
            T = V_T + 16 * rb
            el = [(acc(4 * pp + 2 * f, rb) + r, acc(4 * pp + 2 * f + 1, rb) + r) for f in range(2) for r in range(4)]
            its += [It(f"v_mul_f32 v{T+j}, v{g}, v{V_NL+rb}") for j, (g, u) in enumerate(el)]
            for j, (g, u) in enumerate(el): its += [It(f"v_exp_f32 v{T+j}, v{T+j}"), It(f"v_mul_f32 v{g}, v{g}, v{u}")]
            its += [It(f"v_fma_f32 v{T+j}, v{T+j}, v{V_S2+rb}, v{V_S2+rb}") for j in range(8)]
            its += [It(f"v_rcp_f32 v{T+j}, v{T+j}") for j in range(8)]
            its += [It(f"v_mul_f32 v{g}, v{g}, v{T+j}") for j, (g, u) in enumerate(el)]
            its += [It(f"v_cvt_pk_bf16_f32 v{T+8+j}, v{el[2*j][0]}, v{el[2*j+1][0]}") for j in range(4)]
            its.append(It(lambda T=T, rb=rb: k.vmop(
                f"buffer_store_dwordx4 {v(T+8,4)}, v{V_L16}, s[{SO}:{SO+3}], {'s5' if rb else '0'} offen offset:{pp*1024}{SC1}", "st"), "d"))
        return its
    k(f"s_mov_b32 s5, {43*1024}")
    for pp in range(np_):
        mf, rd = [], []
        for t in range(4 * pp, 4 * pp + 4):
            seq_ = [(6, 0), (6, 1), (7, 0), (7, 1)]
            for rr in range(2):
                rb = rr if t % 2 == 0 else 1 - rr
                for q_, (s_, kk) in enumerate(seq_ if rr == 0 else seq_[::-1]):
                    pre = [lambda t=t, s_=s_: k.lgwait(("F", s_, t))] if rr == 0 and kk == 0 else []
                    if t == 0 and rr == 0 and kk == 0: pre.append(lambda s_=s_: k.vmwait(("H", s_)))
                    mf.append((pre, mfma(v(acc(t, rb), 4), v(V_WF + 8 * (2 * (t % 2) + s_ - 6) + 4 * kk, 4), a(16 * s_ + 8 * rb + 4 * kk, 4), v(acc(t, rb), 4))))
            if t + 1 < nt:
                o = 8 * (t % 4)
                rd += window(wreads(6, t + 1, 2 * ((t + 1) % 2)) + wreads(7, t + 1, 2 * ((t + 1) % 2) + 1), o, o + 4)
        streams = [rd]
        if pp: streams.append(window(swiglu(pp - 1), 4, 31))
        if extra and 6 + pp in extra: streams.append(window(extra[6 + pp](), 2, 28))
        pack(k, mf, streams)
    stamp(k, st0 + 2, ts)
    run(swiglu(np_ - 1))


def g_phase(k, ts, st0, extra=None):
    k(f"""
    v_lshlrev_b32 v{V_L16}, 4, v0
    v_mov_b32 v{V_HO}, v{V_L16}
    v_add_u32 v{V_HO+1}, 16384, v{V_L16}
    v_mov_b32 v{V_RA}, v{V_L16}
    s_lshr_b32 s5, s{S_RB}, 2
    s_lshr_b32 s4, s5, 2
    s_and_b32 s5, s5, 3
    s_lshl_b32 s5, s5, 3
    s_add_u32 s4, s4, s5
    s_lshl_b32 s4, s4, 7
    s_add_u32 s4, s4, {FOFF[4]}
    v_and_b32 v22, 7, v0
    v_lshlrev_b32 v22, 12, v22
    v_add_u32 v22, s4, v22
    """)
    k(f"s_lshl_b32 s4, s{S_RB}, 14\ns_add_u32 s4, s4, {WS_H}"); srd(k, SH, P['ws'], P['ws'] + 1, "s4", 32768)
    k(f"s_lshl_b32 s4, s{S_RB}, 10\ns_add_u32 s4, s4, {WS_ST}"); srd(k, SST, P['ws'], P['ws'] + 1, "s4", 2048)
    k(f"s_mul_i32 s4, s{S_RB}, {43*1024}\ns_lshl_b32 s5, s{S_PS}, 10\ns_add_u32 s4, s4, s5\ns_add_u32 s4, s4, {WS_HH}")
    srd(k, SO, P['ws'], P['ws'] + 1, "s4", 43 * 1024 + 3072)
    vm0 = list(k.vm)
    two, join = k.label("two"), k.label("gj")
    k(f"s_cmp_ge_u32 s{S_CG}, 11\ns_cbranch_scc1 {two}")
    for np_ in (3, 2):
        k.vm, k.lg = list(vm0), []
        body(k, np_, ts, st0, extra)
        k(f"s_branch {join}\n{two}:" if np_ == 3 else f"{join}:")
```

```python
from emit import *
from k1 import run, L, SC1
from k3 import S_R, S_C
import k35

SA, SB, SR, SO = 32, 28, 80, 84
import os
ROT = int(os.environ.get('DROT', '1'))
S_KO, S_KA, S_T, S_ROT = 42, 43, 44, 45
V_AO, V_ACC, V_T, X = 24, 128, 192, 16
NK = 43
a_reg = lambda p, t: a(128 + 16 * p + 4 * t, 4) if p < 8 else a(16 * (p - 8) + 4 * t, 4)
b_reg = lambda p, t: v(32 + 16 * p + 4 * t, 4) if p < 6 else a(48 + 16 * (p - 6) + 4 * t, 4)


def setup(k):
    k(f"s_mul_i32 s4, s{S_C}, {4*NK*1024}\ns_add_u32 s4, s4, {WS_W2}"); srd(k, SA, P['ws'], P['ws'] + 1, "s4", 4 * NK * 1024)
    k(f"s_mul_i32 s4, s{S_R}, {4*NK*1024}\ns_add_u32 s4, s4, {WS_HH}"); srd(k, SB, P['ws'], P['ws'] + 1, "s4", 4 * NK * 1024)
    k(f"s_lshl_b32 s5, s{S_R}, 2\ns_add_u32 s5, s5, s3\ns_lshl_b32 s5, s5, 14\ns_lshl_b32 s4, s{S_C}, 7\ns_add_u32 s4, s4, s5")
    srd(k, SO, P['out'], P['out'] + 1, "s4", 15 * 1024 + 128)
    k(f"s_lshl_b32 s4, s{S_C}, 11\ns_add_u32 s4, s4, s5\ns_add_u32 s4, s4, {WS_H}"); srd(k, SR, P['ws'], P['ws'] + 1, "s4", 2048)
    k(f"s_mul_i32 s{S_KO}, s3, {11*1024}\ns_add_u32 s{S_KA}, s{S_KO}, 8192\ns_cmp_eq_u32 s3, 3\ns_cselect_b32 s{S_KA}, 0x7000000, s{S_KA}")
    k(f"v_lshlrev_b32 v{V_AO}, 4, v0")
    for t in range(1, 4): k(f"v_add_u32 v{V_AO+t}, {t*NK*1024}, v{V_AO}")


def loads(k, op, ps):
    items = []
    for p in ps:
        if p % 4 == 0 or p == ps[0]: items.append(It(f"s_add_u32 s{S_T}, s{S_KO}, {(p // 4)*4096}"))
        so = S_KA if (op == "A" and p == 10) else S_T
        for t in range(4):
            reg, sr = (a_reg(p, t), SA) if op == "A" else (b_reg(p, t), SB)
            items.append(L(lambda reg=reg, sr=sr, so=so, p=p, t=t: k.vmop(
                f"buffer_load_dwordx4 {reg}, v{V_AO+t}, s[{sr}:{sr+3}], s{so} offen offset:{(p % 4)*1024}{SC1}", (op, p)), "d"))
    return items


def g_extra(k):
    return {2 + j: (lambda j=j: loads(k, "A", [2 * j, 2 * j + 1])) for j in range(4)}


def d_phase(k, ts, st0):
    GS, TS = 320, 1344
    run(k, loads(k, "A", [8, 9, 10]))
    k(f"""
    v_lshrrev_b32 v12, 2, v0
    v_and_b32 v13, 1, v0
    v_bfe_u32 v14, v0, 1, 1
    v_lshlrev_b32 v15, 4, v12
    v_lshl_add_u32 v3, v13, 9, v15
    v_lshl_add_u32 v3, v14, 3, v3
    v_mul_u32_u24 v13, {2*GS}, v13
    v_mul_u32_u24 v14, {TS}, v14
    v_add3_u32 v15, v15, v13, v14
    s_mul_i32 s4, s3, {4*TS}
    v_add_u32 v15, s4, v15
    v_and_b32 v13, 3, v0
    v_lshlrev_b32 v13, 4, v13
    v_lshl_add_u32 v14, v12, 10, v13
    s_lshr_b32 s4, s{S_R}, 3
    s_bfe_u32 s5, s{S_R}, 0x20001
    s_lshl_b32 s5, s5, 3
    s_add_u32 s4, s4, s5
    s_lshl_b32 s4, s4, 7
    s_add_u32 s4, s4, {FOFF[5]}
    v_and_b32 v12, 7, v0
    v_lshlrev_b32 v12, 12, v12
    v_and_b32 v13, 8, v0
    v_lshl_add_u32 v12, v13, 6, v12
    v_add_u32 v12, s4, v12
    """)
    for hh in range(2):
        for gg in range(2):
            k.vmop(f"buffer_load_dwordx2 {v(X+4*hh+2*gg,2)}, v3, s[{SR}:{SR+3}], 0 offen offset:{1024*hh+256*gg}{SC1}", "X")
    await_flags(k, 12, 13)
    stamp(k, st0, ts)
    DP = int(os.environ.get("DP", "3"))
    run(k, loads(k, "B", list(range(DP))))
    later = list(range(DP, 11))
    batches = [[0], [1, 2], [3, 4], [5, 6], [7, 8], [9, 10]]
    for b, ps in enumerate(batches):
        mf = []
        for nt in range(4):
            for rr in range(4):
                rb = rr if nt % 2 == 0 else 3 - rr
                for j, p in enumerate(ps if rr % 2 == 0 else ps[::-1]):
                    pre = [lambda: k.vmwait([("B", x) for x in ps])] if not mf else []
                    acc = v(V_ACC + 16 * rb + 4 * nt, 4)
                    mf.append((pre, mfma(acc, a_reg(p, nt), b_reg(p, rb), "0" if b == 0 and j == 0 else acc)))
        take, later = later[:(1 if b == 0 else 2) + (1 if DP < 4 and b == 1 else 0)], later[(1 if b == 0 else 2) + (1 if DP < 4 and b == 1 else 0):]
        streams = [window(loads(k, "B", take), 0, len(mf) - 2)] if take else []
        if b == 0: streams.append(window(k35.reduce_addr(k, GS, TS, 12) + [It(f"v_add_u32 v13, {32*TS}, v15")], 0, 20))
        if b == len(batches) - 1:
            streams.append(k35.reduce_items(k, [(rr if nt % 2 == 0 else 3 - rr, nt) for nt in range(4) for rr in range(4)], len(ps), V_ACC, TS, 12))
        pack(k, mf, streams)
    stamp(k, st0 + 1, ts)
    k.lgdrain()
    k("s_barrier")
    for w in range(4):
        for hh in range(2):
            for gg in range(2):
                k.lgop(f"ds_read_b128 {v(V_T+16*w+8*hh+4*gg,4)}, v{15 if w < 2 else 13} offset:{(w % 2)*16*TS+2*hh*TS+gg*GS}", ("rr", w))
    k.lgwait(("rr", 1))
    for r in range(16): k(f"v_add_f32 v{V_T+r}, v{V_T+r}, v{V_T+16+r}")
    k.lgwait(("rr", 3))
    for r in range(16): k(f"v_add_f32 v{V_T+32+r}, v{V_T+32+r}, v{V_T+48+r}")
    for r in range(16): k(f"v_add_f32 v{V_T+r}, v{V_T+r}, v{V_T+32+r}")
    H, U = 32, V_T + 16
    for j in range(8):
        k(f"""
        v_cvt_pk_bf16_f32 v{H+j}, v{V_T+2*j}, v{V_T+2*j+1}
        v_lshlrev_b32 v{U+2*j}, 16, v{X+j}
        v_and_b32 v{U+2*j+1}, 0xffff0000, v{X+j}
        v_lshlrev_b32 v{V_T+2*j}, 16, v{H+j}
        v_and_b32 v{V_T+2*j+1}, 0xffff0000, v{H+j}
        v_add_f32 v{U+2*j}, v{U+2*j}, v{V_T+2*j}
        v_add_f32 v{U+2*j+1}, v{U+2*j+1}, v{V_T+2*j+1}
        v_cvt_pk_bf16_f32 v{H+j}, v{U+2*j}, v{U+2*j+1}
        """)
        if j % 4 == 3:
            k.vmop(f"buffer_store_dwordx4 {v(H+j-3,4)}, v14, s[{SO}:{SO+3}], 0 offen offset:{64*(j//4)}", "st")
```

```python
import sys, os, hazard
from emit import *
import k1, k2, k3, k35, k4, k5, jobs
from k1 import run, L

NAME = "sequential_preLN__compressed_kv_cla__glu_gated_swiglu__prompt_kernel"
NSTAMP = 24
EG = int(os.environ.get('EG', '1'))
PUB2 = k1.CFG['pub2']


def poll_pair(k, vaddr, vt, stubs, wide):
    out, back = k.label("po"), k.label("pb")
    stubs.append((out, back, vaddr, vt, wide))
    tag = ("PL", out)
    if wide: issue = [L(lambda x=x: k.vmop(x, tag), "d") for x in wide_poll(vaddr, vt).split("\n")]
    else: issue = [L(lambda: k.vmop(f"buffer_load_dword v{vt}, v{vaddr}, s[{S_FL}:{S_FL+3}], 0 offen sc1", tag), "d")]
    chk = [L(lambda: k.vmwait(tag), "s")]
    if wide:
        chk += [It(f"v_xor_b32 v{vt+j}, s{S_TAG}, v{vt+j}") for j in range(4)]
        chk += [It(f"v_or3_b32 v{vt}, v{vt}, v{vt+1}, v{vt+2}"), It(f"v_or_b32 v{vt}, v{vt}, v{vt+3}")]
        chk += [It(f"v_cmp_ne_u32 vcc, 0, v{vt}\ns_nop 0\ns_cbranch_vccnz {out}\n{back}:")]
    else:
        chk += [It(f"v_cmp_ne_u32 vcc, s{S_TAG}, v{vt}"), It("s_nop 0"), It(f"s_cbranch_vccnz {out}\n{back}:")]
    return issue, chk


def build(ts=False, name=NAME, steps_ts=False, light=False):
    k = K(name, 256, 256, 163840, vgpr=256, agpr=256)
    load_args(k)
    stamp(k, 0, ts or light)
    stubs = []
    k.beam = os.environ.get('BEAM', 'att') == 'all'
    steps, extra, epi_kv = k1.kv_phase(k, ts)
    A = k2.Att(k)
    qsteps, qsetup, xn_items, k0_dma, pair_dma, epi_q = k2.q_phase(k, A, 16)
    steps += qsteps
    f1 = f"""
    s_lshl_b32 s67, s71, 4
    v_mov_b32 v16, s67
    s_sub_u32 s67, 240, s67
    v_mov_b32 v17, s67
    v_and_b32 v18, 16, v0
    v_cmp_eq_u32 vcc, 0, v18
    v_cndmask_b32 v16, v17, v16, vcc
    v_and_b32 v18, 15, v0
    v_add_u32 v18, v16, v18
    v_lshlrev_b32 v18, 7, v18
    s_and_b32 s67, s2, 31
    s_lshl_b32 s67, s67, 7
    s_add_u32 s67, s67, {FOFF[2]}
    v_and_b32 v19, 7, v0
    v_lshlrev_b32 v19, 12, v19
    v_add_u32 v19, s67, v19
    s_bfe_u32 s6, s2, 0x20003
    s_sub_u32 s7, 7, s6
    s_bitcmp1_b32 s3, 0\ns_cselect_b32 s6, s7, s6
    s_lshl_b32 s7, s71, 3
    s_sub_u32 s67, 120, s7
    s_bitcmp1_b32 s3, 1\ns_cselect_b32 s7, s67, s7
    s_add_u32 s6, s6, s7
    s_lshl_b32 s6, s6, 14
    v_lshlrev_b32 v17, 6, v0
    v_add_u32 v17, s6, v17""".replace("\ns_cselect", " @s_cselect")
    fsetup = [It(l_.strip().replace(" @", "\n")) for l_ in f1.strip().split("\n")]
    warm = [L(lambda j_=j_: k.vmop(f"buffer_load_dword v16, v17, s[{k2.SXN}:{k2.SXN+3}], {'0' if j_ == 0 else 's%d' % (63+j_)} offen sc1", "warm"), "d") for j_ in range(4)]
    p1, c1 = poll_pair(k, 18, 16, stubs, False)
    p2, c2 = poll_pair(k, 19, 16, stubs, False)
    extra[6].append((4, 63, fsetup))
    extra[7] = [(0, 63, qsetup)]
    extra[9] = [(0, 0, p1, "mem"), (44, 62, c1)]
    if os.environ.get("WARM"):
        for j_ in range(4): extra.setdefault(9 + j_ // 2, []).append((10 + 24 * (j_ % 2), 10 + 24 * (j_ % 2), [warm[j_]], "mem"))
    for st_, gs in k1.CFG["xn"].items():
        its = []
        for g_ in gs: its += xn_items(g_ // 4, (g_ % 4,))
        if not os.environ.get("NOXN"): extra.setdefault(st_, []).append((4, 46 if st_ <= 15 else 60, its, "mem"))
    extra[21] = [(4, 4, [L(lambda: jobs.setup(k), "s")])]
    if k1.CFG["poll"] == 21:
        extra[21] += [(44, 44, p2, "mem")]
        extra[22] = [(24, 30, c2, "mem"), (31, 62, k0_dma() + pair_dma(0), "mem")]
        extra[23] = [(0, 60, pair_dma(1) + pair_dma(2), "mem")]
    else:
        extra[22] = [(50, 50, p2, "mem")]
        extra[23] = [(24, 30, c2, "mem"), (31, 63, k0_dma() + pair_dma(0) + pair_dma(1) + pair_dma(2), "mem")]
    res = lambda b, ks: a(64 * b + 4 * ks, 4)

    def res_wait(step, b, ks):
        if step < 8: return [lambda: k.lgwait(("CR", 4 * (step // 2) + b))]
        if step >= 16: return [lambda: k.vmwait(("XN", (step - 16) // 2, b))]
        return []
    at_bar = {3: (lambda: k.lgwait(("CR", 11)), None), 4: (lambda: k.lgwait("xw"), None), 6: (lambda: k.vmwait("sj"), lambda: publish(k, 1, 2)), PUB2: (lambda: k.vmwait("kv"), lambda: publish(k, 2, 2))}
    hook = lambda st: stamp(k, {7: 4, 15: 5, 21: 6, 23: 7}[st], ts) if st in (7, 15, 21, 23) else None
    if steps_ts:
        hook = lambda st: stamp(k, 4 + st, True)
        ts = False
    k1.proj_core(k, steps, res, extra, res_wait, lambda st: epi_kv(st) if st < 16 else epi_q(st), hook=hook, at_barrier=at_bar)
    k2.att_phase(k, A, pair_dma, ts, 8, lambda: k3.setup(k), lambda: k3.early_items(k, k2.S_WR, k1.S_W4K))
    stamp(k, 12, ts)

    def hand_off(phase):
        k.vmdrain(); k("s_barrier"); publish(k, phase, 2)
    hand_off(3)
    if not k2.NE: run(k, k3.early_items(k, 38, k1.S_W4K))
    if "g" in k2.CW: code_warm(k, k.name + "_cG", k.name + "_cend", 2, "v3")
    stamp(k, 13, ts)
    k3.o_phase(k, 'o' if os.environ.get('OTS') and light else ts, 14, k4.early(k) if EG == 2 else (k4.early(k)[0], [], []))
    stamp(k, 16, ts)
    k(f"{k.name}_cG:")
    hand_off(4)
    if EG < 2:
        e_ = k4.early(k)
        run(k, e_[1] + e_[2])
    k5.setup(k)
    k4.g_phase(k, ts, 17, k5.g_extra(k))
    stamp(k, 20, ts)
    hand_off(5)
    k5.d_phase(k, ts, 21)
    lab = k.label("ep")
    k(f"""
    s_or_b32 s4, s2, s3
    s_cmp_eq_u32 s4, 0
    s_cbranch_scc0 {lab}
    v_mov_b32 v2, {EPOCH}
    v_mov_b32 v3, s{S_TAG}
    s_mov_b64 exec, 1
    buffer_store_dword v3, v2, s[{S_FL}:{S_FL+3}], 0 offen sc1
    s_mov_b64 exec, -1
    {lab}:
    """)
    stamp(k, 23, ts or light)
    stamp_flush(k, 0, ts or steps_ts or light)
    k("s_endpgm")
    A.emit_slow()
    for out, back, vaddr, vt, wide in stubs:
        k(f"{out}:")
        await_flags(k, vaddr, vt, wide)
        k(f"s_branch {back}")
    k(f"{k.name}_cend:\ns_endpgm")
    txt = build_file([k])
    errs = hazard.check(txt)
    for x in errs[:40]: print(x)
    assert not errs
    return txt


if __name__ == "__main__":
    open("t_all.s", "w").write(build(True))
    open("t_steps.s", "w").write(build(True, steps_ts=True))
    open("t_light.s", "w").write(build(False, light=True))
    txt = build(False)
    open("t_nots.s", "w").write(txt)
    txt = txt.replace(f"; @launch kernel={NAME} grid", "; @launch grid")
    open("sequential_preLN__compressed_kv_cla__glu_gated_swiglu__prompt.s", "w").write(txt)
    print(len(txt))
```

```python
from asmlib import *
import os


class K(Kernel):
    def __init__(self, *a, **kw):
        super().__init__(*a, **kw)
        self.vm = []
        self.lg = []
        self.clock = 0
        self.lgt = {}
        self.AGE = int(os.environ.get('AGE', '10'))
        self.beam, self.dry, self.wlog = False, False, []

    def text(self):
        import hazard
        n0 = len(self.lines)
        self.lines = [l for l in hazard.autofix(self.lines) if l.strip()]
        return super().text()

    def vmop(self, text, tag=None):
        self(text); self.vm.append(tag)

    def lgop(self, text, tag=None):
        self(text); self.lg.append(tag); self.lgt[tag] = self.clock

    def _wait(self, q, tags, name, mx):
        if not isinstance(tags, list): tags = [tags]
        idx = max((i for i, t in enumerate(q) if t in tags), default=-1)
        if idx < 0: return
        if name == "lgkmcnt":
            while idx + 1 < len(q) and self.clock - self.lgt.get(q[idx + 1], self.clock) >= self.AGE: idx += 1
        n = min(len(q) - 1 - idx, mx)
        self(f"s_waitcnt {name}({n})")
        del q[:len(q) - n]

    def vmwait(self, tags): self._wait(self.vm, tags, "vmcnt", 63)
    def lgwait(self, tags): self._wait(self.lg, tags, "lgkmcnt", 15)

    def vmdrain(self):
        self("s_waitcnt vmcnt(0)"); self.vm = []

    def lgdrain(self):
        self("s_waitcnt lgkmcnt(0)"); self.lg = []

    def stream(self, mfmas, fill):
        def put(items):
            for it in items:
                if callable(it): it()
                else: self(it)
        put(fill.get(-1, []))
        for i, (pre, text) in enumerate(mfmas):
            put(pre)
            self(text)
            self.clock += 1
            put(fill.get(i, []))
        extra = [i for i in fill if i >= len(mfmas)]
        for i in sorted(extra): put(fill[i])


RR = 2
TRANS = ("v_exp_f32", "v_log_f32", "v_rcp_f32", "v_rsq_f32", "v_sqrt_f32")


class It:
    def __init__(s, x, kind=None, lo=None, hi=None, store=False):
        s.x, s.lo, s.hi = x, lo, hi
        if kind is None:
            assert isinstance(x, str)
            first = x.strip().split()[0]
            kind = "v" if first.startswith("v_") else "b" if first.startswith("s_cbranch") else "s"
        s.kind = kind
        s.store = store
        s.rr = RR
        s.cost = 4
        if isinstance(x, str):
            lines = [l.strip() for l in x.strip().split("\n") if not l.strip().endswith(":")]
            s.cost = sum(8 if l.startswith(TRANS) else 4 for l in lines)


def window(items, lo, hi, kind=None):
    out = []
    n = len(items)
    for j, x in enumerate(items):
        it = x if isinstance(x, It) else It(x, kind)
        it.due = lo + (j * (hi - lo + 1)) // max(n, 1)
        it.lo = lo if it.lo is None else max(it.lo, lo)
        it.due = max(it.due, it.lo)
        it.hi = max(hi, it.lo) if it.hi is None else it.hi
        out.append(it)
    return out


def pack_greedy(k, mfmas, streams, ahead=3):
    qs = [list(s_) for s_ in streams if s_]
    n = len(mfmas)

    def put(it):
        it.x() if callable(it.x) else k(it.x)

    def head(kinds, g, slack):
        best = None
        for q in qs:
            if q and q[0].kind in kinds and q[0].lo <= g and q[0].due <= g + slack:
                if best is None or q[0].due < best[0].due: best = q
        return best

    for g, (pre, text) in enumerate(mfmas):
        for p in pre:
            p() if callable(p) else k(p)
        k(text); k.clock += 1
        t = 4
        if g + 1 < n:
            m0 = len(k.lines)
            for p in mfmas[g + 1][0]:
                if callable(p): p()
            t += 4 * (len(k.lines) - m0)
            k.wlog.append(len(k.lines) - m0)
        q = head("b", g, 0)
        if q: it = q.pop(0); put(it); t = max(t + 4, 8) + it.cost - 4
        while True:
            q = head("s", g, 0)
            if not q or (t > 4 and q[0].hi > g): break
            it = q.pop(0); put(it); t += it.cost
        q = head("d", g, 0)
        if q and (t <= 8 or q[0].hi <= g):
            put(q.pop(0)); t += 20
        nv = head("v", g, ahead)
        vcost = nv[0].cost if nv else 0
        behind = nv is not None and nv[0].due < g - 1
        q = head("r", g, 1)
        if q and t <= 8 and (q[0].due < g - 1 or q[0].hi <= g or (vcost <= 4 and t == 4) or (vcost == 0)):
            put(q.pop(0)); t += 4
            q = head("r", g, 2 if vcost == 0 else -3)
            if q and t <= 8: put(q.pop(0)); t += 4
            t += 4
        while True:
            q = head("v", g, ahead)
            if not q: break
            st = max(t, 8)
            if st + q[0].cost > 16 and q[0].hi > g and not (q[0].due < g - 2 and st < 16): break
            it = q.pop(0); put(it); t = st + it.cost
        for q in qs:
            while q and q[0].hi <= g: put(q.pop(0))
    for q in qs:
        while q: put(q.pop(0))


VAL = {"v": 0.7, "s": 0.4, "b": 0.5, "r": 4.0, "d": 18.0}
AHEAD = {"v": 6, "s": 3, "b": 0, "r": 4, "d": 5}
_plans = {}


def _step(t, prev, it):
    kd = it.kind
    if kd == "v": return max(t, 8) + it.cost, "v"
    if kd == "s": return t + it.cost, "s"
    if kd == "b": return t + (14 if prev == "v" else 0) + 2 + it.cost, "s"
    if kd == "r": return t + (4 if prev == "v" else it.rr if prev == "r" else 0) + 8, "r"
    return t + (12 if prev == "v" else 0) + (44 if it.store else 20), "d"


def _plan(n, qs, wslot, beam=28):
    val = [[VAL[x.kind] * (x.cost if x.kind in "vsb" else 1) for x in q] for q in qs]
    states = {tuple(0 for _ in qs): (0.0, 0.0, None)}
    for g in range(n):
        nxt = {}
        for pos, (T, sc, hist) in states.items():
            stack = [(pos, 4 + 4 * wslot[g], "s", (), 0.0)]
            seen = {}
            while stack:
                p, t, prev, seq_, gain = stack.pop()
                forced = [i for i, q in enumerate(qs) if p[i] < len(q) and q[p[i]].hi <= g]
                if not forced:
                    if p not in seen or t < seen[p]:
                        seen[p] = t
                        T2 = T + max(t, 16)
                        sc2 = sc + max(t, 16) - gain
                        if p not in nxt or sc2 < nxt[p][1]: nxt[p] = (T2, sc2, (hist, seq_))
                    if t >= 20 or len(seq_) >= 4: continue
                big = len(seq_) >= 5
                for i, q in enumerate(qs):
                    if p[i] >= len(q): continue
                    it = q[p[i]]
                    if forced and big and i != forced[0]: continue
                    if it.hi > g and (it.lo > g or it.due > g + AHEAD[it.kind]): continue
                    if forced and it.hi > g and t >= 16: continue
                    t2, k2_ = _step(t, prev, it)
                    if it.hi > g and t2 > 28: continue
                    stack.append((p[:i] + (p[i] + 1,) + p[i + 1:], t2, k2_, seq_ + (i,), gain + val[i][p[i]]))
        states = dict(sorted(nxt.items(), key=lambda kv: kv[1][1])[:beam])
    best = min(states.items(), key=lambda kv: kv[1][1])
    plan, h = [], best[1][2]
    while h is not None:
        plan.append(h[1]); h = h[0]
    return plan[::-1]


def pack(k, mfmas, streams, ahead=3):
    if not k.beam or not any(streams): return pack_greedy(k, mfmas, streams, ahead)
    qs = [list(s_) for s_ in streams if s_]
    n = len(mfmas)
    snap = (list(k.lines), list(k.vm), list(k.lg), dict(k.lgt), k.clock, k._lab)
    k.dry = True; k.wlog = []
    pack_greedy(k, mfmas, streams, ahead)
    wslot = k.wlog + [0]
    k.lines, k.vm, k.lg, k.lgt, k.clock, k._lab = snap
    k.dry = False
    for q in qs:
        for x in q: x.hi = min(x.hi, n + 5) if x.hi >= n else x.hi
    key = (n, tuple(wslot), tuple(tuple((x.kind, x.cost, x.lo, x.hi, x.due, x.store, x.rr) for x in q) for q in qs))
    if key not in _plans: _plans[key] = _plan(n, qs, wslot)
    for g, (pre, text) in enumerate(mfmas):
        for p in pre:
            p() if callable(p) else k(p)
        k(text); k.clock += 1
        if g + 1 < n:
            for p in mfmas[g + 1][0]:
                if callable(p): p()
        for i in _plans[key][g]:
            it = qs[i].pop(0)
            it.x() if callable(it.x) else k(it.x)
    for q in qs:
        for it in q: it.x() if callable(it.x) else k(it.x)


class Weave:
    def __init__(s, k, items, every):
        s.k, s.items, s.every, s.n = k, list(items), every, 0

    def _tick(s):
        s.n += 1
        if s.n % s.every == 0:
            while s.items:
                it = s.items.pop(0)
                it.x() if callable(it.x) else s.k(it.x)
                if it.kind == "d": break

    def __call__(s, text):
        for l_ in text.strip().split("\n"):
            s.k(l_); s._tick()

    def rest(s):
        return s.items


def spread(fill, items, lo, hi):
    n = len(items)
    for j, it in enumerate(items):
        idx = lo + (j * (hi - lo + 1)) // max(n, 1)
        fill.setdefault(idx, []).append(it)


def mfma(d, A, B, c):
    return f"v_mfma_f32_16x16x32_bf16 {d}, {A}, {B}, {c}"


def srd(k, n, lo, hi, off, size):
    k(f"s_add_u32 s{n}, s{lo}, {off}\ns_addc_u32 s{n+1}, s{hi}, 0\ns_mov_b32 s{n+2}, {size}\ns_mov_b32 s{n+3}, 0x20000")


MB = 1 << 20
import os
KV_TS, KV_HS = {'h': (16384, 524288), 'p': (18432, 32 * 18432 + 1024), 'q': (17408, 32 * 17408 + 4096), 'r': (16384, 524288 + 5120)}[os.environ.get('KVL', 'h')]
WS0 = int(os.environ.get("WS0", "0")) * MB
WS_V = WS0
WS_K = WS0 + 16 * MB
WS_XN = WS0 + 32 * MB
WS_CTX = WS0 + 34 * MB
WS_WO = WS0 + 50 * MB
WS_W13 = WS0 + 54 * MB
WS_CS = WS0 + 57 * MB
WS_W2 = WS0 + 58 * MB
WS_H = WS0 + 60 * MB
WS_ST = WS0 + 62 * MB
WS_HH = WS0 + 63 * MB
WS_FL = WS0 + 69 * MB
WS_TS = 128 * MB

P = dict(x=36, ckv=38, wq=40, wuk=42, wuv=44, wo=46, bx=48, w1=50, w3=52, w2=54, out=56, dbg=58, ws=60)


def load_args(k, nwg=256, warm=0):
    k(f"""
    s_cmp_ge_u32 s2, {nwg}
    s_cbranch_scc0 {k.name}_go
    s_endpgm
    {k.name}_go:
    """)
    if warm:
        k(f"s_getpc_b64 s[6:7]\nv_and_b32 v2, {warm - 1}, v0\nv_lshlrev_b32 v2, 7, v2\nglobal_load_dword v29, v2, s[6:7]")
    k(f"""    s_load_dwordx16 s[36:51], s[0:1], 0
    s_load_dwordx8 s[52:59], s[0:1], 64
    s_load_dwordx2 s[60:61], s[0:1], 96
    v_lshrrev_b32 v1, 6, v0
    v_and_b32 v0, 63, v0
    v_readfirstlane_b32 s3, v1
    """)


def xlane_sum(k, x, t, steps):
    for st in steps:
        if st == "q1": k(f"s_nop 1\nv_add_f32_dpp v{x}, v{x}, v{x} quad_perm:[1,0,3,2] row_mask:0xf bank_mask:0xf")
        if st == "q2": k(f"s_nop 1\nv_add_f32_dpp v{x}, v{x}, v{x} quad_perm:[2,3,0,1] row_mask:0xf bank_mask:0xf")
        if st == "r4": k(f"s_nop 1\nv_add_f32_dpp v{x}, v{x}, v{x} row_ror:4 row_mask:0xf bank_mask:0xf")
        if st == "r8": k(f"s_nop 1\nv_add_f32_dpp v{x}, v{x}, v{x} row_ror:8 row_mask:0xf bank_mask:0xf")
        if st == "p16": k(f"v_mov_b32 v{t}, v{x}\ns_nop 1\nv_permlane16_swap_b32 v{x}, v{t}\nv_add_f32 v{x}, v{x}, v{t}")
        if st == "p32": k(f"v_mov_b32 v{t}, v{x}\ns_nop 1\nv_permlane32_swap_b32 v{x}, v{t}\nv_add_f32 v{x}, v{x}, v{t}")


def stamp(k, idx, on):
    if not on: return
    k(f"""
    s_memtime s[92:93]
    s_memrealtime s[94:95]
    s_waitcnt lgkmcnt(0)
    v_writelane_b32 v1, s92, {2*idx}
    v_writelane_b32 v1, s94, {2*idx+1}
    """)


def stamp_flush(k, kid, on):
    if not on: return
    srd(k, 88, P['ws'], P['ws'] + 1, WS_TS + kid * 262144, 262144)
    k(f"s_lshl_b32 s92, s2, 2\ns_add_u32 s92, s92, s3\ns_lshl_b32 s92, s92, 8\nv_lshlrev_b32 v0, 2, v0\nv_add_u32 v0, s92, v0")
    k("buffer_store_dword v1, v0, s[88:91], 0 offen")


S_FL, S_TAG, S_SPIN = 96, 100, 101
FOFF = {1: 0, 2: 0x8000, 3: 0x10000, 4: 0x18000, 5: 0x20000, 6: 0x28000}
FSTR = {1: 128, 2: 128, 3: 128, 4: 128, 5: 128, 6: 128}
EPOCH = 0x30000
SLP = int(os.environ.get('SLP', '1'))
SC = " sc1"


def sync_init(k, vt=2):
    srd(k, S_FL, P['ws'], P['ws'] + 1, WS_FL, 0x40000)
    k(f"v_mov_b32 v{vt}, {EPOCH}")
    k.vmop(f"buffer_load_dword v{vt+1}, v{vt}, s[{S_FL}:{S_FL+3}], 0 offen sc1", "EP")


def sync_tag(k, vt=2):
    k.vmwait("EP")
    k(f"v_readfirstlane_b32 s{S_TAG}, v{vt+1}\ns_nop 0\ns_add_u32 s{S_TAG}, s{S_TAG}, 1")


def publish(k, phase, vt):
    lab = k.label("pub")
    k(f"""
    s_cmp_eq_u32 s3, 0
    s_cbranch_scc0 {lab}
    s_mul_i32 s4, s2, {FSTR[phase]}
    s_add_u32 s4, s4, {FOFF[phase]}
    v_lshl_add_u32 v{vt}, v0, 2, s4
    v_mov_b32 v{vt+1}, s{S_TAG}
    s_mov_b64 exec, 0xffffffff
    buffer_store_dword v{vt+1}, v{vt}, s[{S_FL}:{S_FL+3}], 0 offen sc1
    s_mov_b64 exec, -1
    {lab}:
    """)


def wide_poll(vaddr, vt):
    return "\n".join(f"buffer_load_dword v{vt+j}, v{vaddr}, s[{S_FL}:{S_FL+3}], {'s%d' % (64+j) if j else '0'} offen sc1" for j in range(4))


def look_then_await(k, vaddr, vt, between):
    go = k.label("lgo")
    k.vmop(f"buffer_load_dword v{vt}, v{vaddr}, s[{S_FL}:{S_FL+3}], 0 offen sc1", "look")
    between()
    k.vmwait("look")
    k(f"v_cmp_ne_u32 vcc, s{S_TAG}, v{vt}\ns_nop 0\ns_cbranch_vccz {go}")
    keep = list(k.vm)
    await_flags(k, vaddr, vt)
    k(f"{go}:")
    k.vm = keep


def await_flags(k, vaddr, vt, wide=False):
    if str(vaddr) in os.environ.get("NOWAIT", "").split(","):
        k("s_waitcnt vmcnt(0)"); k.vm = []
        return
    top, done = k.label("spin"), k.label("ok")
    k(f"s_mov_b32 s{S_SPIN}, 0x40000\n{top}:")
    if wide:
        k(f"""
        {wide_poll(vaddr, vt)}
        s_waitcnt vmcnt(0)
        v_xor_b32 v{vt}, s{S_TAG}, v{vt}
        v_xor_b32 v{vt+1}, s{S_TAG}, v{vt+1}
        v_xor_b32 v{vt+2}, s{S_TAG}, v{vt+2}
        v_xor_b32 v{vt+3}, s{S_TAG}, v{vt+3}
        v_or3_b32 v{vt}, v{vt}, v{vt+1}, v{vt+2}
        v_or_b32 v{vt}, v{vt}, v{vt+3}
        v_cmp_ne_u32 vcc, 0, v{vt}
        """)
    else:
        k(f"""
        buffer_load_dword v{vt}, v{vaddr}, s[{S_FL}:{S_FL+3}], 0 offen sc1
        s_waitcnt vmcnt(0)
        v_cmp_ne_u32 vcc, s{S_TAG}, v{vt}
        """)
    k(f"""
    s_nop 0
    s_cbranch_vccz {done}
    s_sleep {SLP}
    s_sub_u32 s{S_SPIN}, s{S_SPIN}, 1
    s_cmp_lg_u32 s{S_SPIN}, 0
    s_cbranch_scc1 {top}
    {done}:
    """)
    k.vm = []


def code_warm(k, start, end, vt, dst, sp=6, back=False):
    here, skip = k.label("cw"), k.label("cs")
    k(f"""
    s_getpc_b64 s[{sp}:{sp+1}]
    {here}:
    {f"s_sub_u32 s{sp}, s{sp}, {here} - {start}" if back else f"s_add_u32 s{sp}, s{sp}, {start} - {here}"}
    {"s_subb_u32" if back else "s_addc_u32"} s{sp+1}, s{sp+1}, 0
    s_lshr_b32 s4, s2, 3
    s_lshl_b32 s4, s4, 2
    s_add_u32 s4, s4, s3
    s_lshl_b32 s4, s4, 7
    v_lshlrev_b32 v{vt}, 14, v0
    v_add_u32 v{vt}, s4, v{vt}
    v_cmp_gt_u32 vcc, {end} - {start}, v{vt}
    s_and_saveexec_b64 s[92:93], vcc
    s_cbranch_execz {skip}
    global_load_dword {dst}, v{vt}, s[{sp}:{sp+1}]
    {skip}:
    s_mov_b64 exec, s[92:93]
    """)
```

```python
from emit import *
from k1 import L, SC1
import os
NT = os.environ.get('JNT', '')

SJ1, SJ2, SD1, SD2, SCS = 8, 20, 24, 28, 88
S_STEP, S_TSTR, S_T = 40, 41, 42
JL = 131072
VJ1, VJ2, VTR, VCS = 4, 5, 6, 7


def setup(k):
    k(f"""
    s_lshl_b32 s43, s2, 2
    s_add_u32 s43, s43, s3
    s_lshr_b32 s44, s43, 3
    s_and_b32 s45, s43, 7
    s_lshl_b32 s6, s44, 15
    s_lshl_b32 s7, s45, 7
    s_add_u32 s6, s6, s7
    s_sub_u32 s7, {4*MB}, s6
    """)
    srd(k, SJ1, P['wo'], P['wo'] + 1, "s6", "s7")
    k(f"s_lshl_b32 s7, s45, 19\ns_lshl_b32 s44, s44, 10\ns_add_u32 s7, s7, s44\ns_add_u32 s7, s7, {WS_WO}")
    srd(k, SD1, P['ws'], P['ws'] + 1, "s7", 3 * 131072 + 1024)
    lw2, ldone = k.label("j2w2"), k.label("j2d")
    k(f"""
    s_cmp_ge_u32 s43, 704
    s_cbranch_scc1 {lw2}
    s_cmp_ge_u32 s43, 352
    s_cselect_b32 s44, 1, 0
    s_cselect_b32 s38, s{P['w3']}, s{P['w1']}
    s_cselect_b32 s39, s{P['w3']+1}, s{P['w1']+1}
    s_mul_i32 s45, s44, 352
    s_sub_u32 s45, s43, s45
    s_mul_i32 s6, s45, 2979
    s_lshr_b32 s6, s6, 16
    s_mul_i32 s7, s6, 22
    s_sub_u32 s7, s45, s7
    s_mul_i32 s48, s6, {32*2752}
    s_lshl_b32 s45, s7, 7
    s_add_u32 s48, s48, s45
    s_sub_u32 s49, {512*2752}, s48
    s_lshl_b32 s45, s7, 17
    s_lshl_b32 s43, s44, 14
    s_add_u32 s45, s45, s43
    s_lshl_b32 s43, s6, 10
    s_add_u32 s45, s45, s43
    s_add_u32 s45, s45, {WS_W13}
    s_mov_b32 s{S_TSTR}, 32768
    s_lshl_b32 s44, s44, 4
    s_add_u32 s44, s44, s6
    s_mul_i32 s44, s44, {1408*4}
    s_lshl_b32 s43, s7, 8
    s_add_u32 s44, s44, s43
    s_add_u32 s44, s44, {WS_CS}
    s_mov_b32 s6, 256
    s_mov_b32 s7, {3*32768+1024}
    s_mov_b32 s43, 2752
    s_branch {ldone}
    {lw2}:
    s_sub_u32 s45, s43, 704
    s_mov_b32 s38, s{P['w2']}
    s_mov_b32 s39, s{P['w2']+1}
    s_lshr_b32 s6, s45, 3
    s_and_b32 s7, s45, 7
    s_lshl_b32 s48, s6, 15
    s_lshl_b32 s43, s7, 7
    s_add_u32 s48, s48, s43
    s_sub_u32 s49, {1376*1024}, s48
    s_mul_i32 s45, s7, {4*43*1024}
    s_lshl_b32 s43, s6, 10
    s_add_u32 s45, s45, s43
    s_add_u32 s45, s45, {WS_W2}
    s_mov_b32 s{S_TSTR}, {43*1024}
    s_mov_b32 s44, {WS_CS}
    s_mov_b32 s6, 0
    s_mov_b32 s7, {3*43*1024+1024}
    s_mov_b32 s43, 1024
    {ldone}:
    """)
    srd(k, SJ2, 38, 39, "s48", "s49")
    srd(k, SD2, P['ws'], P['ws'] + 1, "s45", "s7")
    srd(k, SCS, P['ws'], P['ws'] + 1, "s44", "s6")
    k(f"""
    s_lshl_b32 s{S_STEP}, s43, 3
    s_sub_u32 s{S_STEP}, s{S_STEP}, 1024
    s_lshl_b32 s6, s3, 13
    s_add_u32 s6, s6, {JL}
    v_lshrrev_b32 v2, 3, v0
    v_and_b32 v3, 7, v0
    v_lshlrev_b32 v3, 4, v3
    v_lshl_add_u32 v{VJ1}, v2, 10, v3
    v_mul_lo_u32 v2, v2, s43
    v_add_u32 v{VJ2}, v2, v3
    v_bfe_u32 v2, v0, 2, 4
    v_lshlrev_b32 v2, 7, v2
    v_and_b32 v3, 3, v0
    v_lshl_add_u32 v2, v3, 3, v2
    v_add_u32 v{VTR}, s6, v2
    v_lshrrev_b32 v2, 4, v0
    v_lshlrev_b32 v2, 4, v2
    v_and_b32 v3, 15, v0
    v_lshl_add_u32 v{VCS}, v3, 6, v2
    """)


def issue(k):
    items = []
    for n in range(2):
        sr = SJ1 if n == 0 else SJ2
        items += [It("s_lshl_b32 s6, s3, 13"), It(f"s_add_u32 m0, s6, {JL + 4096*n}"), It(f"s_mov_b32 s{S_T}, 0")]
        for jj in range(4):
            items.append(L(lambda n=n, sr=sr, jj=jj: k.vmop(
                f"buffer_load_dwordx4 v{VJ1+n}, s[{sr}:{sr+3}], s{S_T} offen offset:{jj*1024}{NT} lds", ("J", n)), "d"))
            if jj < 3: items.append(It(f"s_add_u32 s{S_T}, s{S_T}, {'7168' if n == 0 else 's%d' % S_STEP}"))
    return items


def finish(k, JF, vl16):
    items = []
    for n in range(2):
        F = JF + 16 * n
        items.append(L(lambda n=n: k.vmwait(("J", n)), "s"))
        for t in range(4):
            for half in range(2):
                items.append(L(lambda t=t, half=half, n=n, F=F: k.lgop(
                    f"ds_read_b64_tr_b16 {v(F+4*t+2*half,2)}, v{VTR} offset:{4096*n + 32*t + 2048*half}", ("JF", n, t)), "r"))
    items += [It(f"v_mov_b32 v{8+r}, 0x3f803f80") for r in range(4)]
    for n in range(2):
        F = JF + 16 * n
        ds = SD1 if n == 0 else SD2
        items.append(It(f"s_mov_b32 s{S_T}, 0"))
        for t in range(4):
            items.append(L(lambda t=t, n=n: k.lgwait(("JF", n, t)), "s"))
            items.append(L(lambda t=t, F=F, ds=ds: k.vmop(f"buffer_store_dwordx4 {v(F+4*t,4)}, v{vl16}, s[{ds}:{ds+3}], s{S_T} offen{SC1}", "sw"), "d"))
            if n == 1: items.append(It(mfma(v(JF + 4 * t, 4), v(F + 4 * t, 4), v(8, 4), "0")))
            if t < 3: items.append(It(f"s_add_u32 s{S_T}, s{S_T}, {'131072' if n == 0 else 's%d' % S_TSTR}"))
    items.append(It("v_and_b32 v2, 15, v0"))
    for t in range(1, 4):
        items.append(It(f"v_cmp_eq_u32 vcc, {t}, v2"))
        items += [It(f"v_cndmask_b32 v{JF+r}, v{JF+r}, v{JF+4*t+r}, vcc") for r in range(4)]
    items.append(L(lambda: k.vmop(f"buffer_store_dwordx4 {v(JF,4)}, v{VCS}, s[{SCS}:{SCS+3}], 0 offen{SC1}", "sw"), "d"))
    return items
```

```python
from emit import *
import os

V_WVO = 4
V_TRA = 8
V_WF = 32
V_ACC = 64
S_SOFF = 4
SC1 = " sc1"
NT2 = os.environ.get("NT2", "")
WWARM = int(os.environ.get("WWARM", "0"))
WNT = os.environ.get("WNT", "")
PTS = os.environ.get('PTS')
KVSC = os.environ.get("KVSC", " sc1")
NT = os.environ.get("NT", "")
S_W4K = 58
WSLOT = [0, 1, 2, 3, 0, 1, 2, 3, 0, 4, 5, 6, 7, 8, 1, 2, 3, 0, 4, 5, 6, 7, 8, 9]
HB = int(os.environ.get("HB", "1"))
WISSUE = {1: [4], 2: [5], 3: [6], 4: [7], 5: [8, 9], 6: [10, 11, 14], 7: [12, 13, 15], 8: [16], 9: [17], 10: [18], 11: [19],
          12: [20], 13: [21], 14: [22], 15: [23]}
if HB: WISSUE.update({9: [], 10: [17], 11: [18], 12: [19], 13: [20], 14: [21], 15: [22], 16: [23]})
has_bar = lambda s_: s_ < 8 or s_ % 2 == 0 or not HB


def proj_setup(k, wstride=8192):
    k(f"""
    v_lshrrev_b32 v2, 3, v0
    v_mov_b32 v3, {wstride}
    v_mul_lo_u32 v2, v2, v3
    v_lshrrev_b32 v3, 4, v0
    v_and_b32 v3, 1, v3
    v_lshlrev_b32 v3, 1, v3
    v_and_b32 v12, 7, v0
    v_xor_b32 v3, v3, v12
    v_lshl_add_u32 v2, v3, 4, v2
    s_mul_i32 s4, s3, {32*wstride}
    v_add_u32 v{V_WVO}, s4, v2
    v_xor_b32 v{V_WVO+1}, 64, v{V_WVO}
    v_add_u32 v{V_WVO+2}, {2*(8*wstride-1024)}, v{V_WVO}
    v_add_u32 v{V_WVO+3}, {3*(8*wstride-1024)}, v{V_WVO+1}
    v_add_u32 v{V_WVO+1}, {8*wstride-1024}, v{V_WVO+1}
    """)


def proj_setup2(k):
    k(f"""
    v_lshrrev_b32 v2, 4, v0
    v_bfe_u32 v3, v0, 2, 2
    v_lshl_add_u32 v22, v2, 3, v3
    v_lshlrev_b32 v22, 7, v22
    v_and_b32 v23, 3, v0
    v_lshl_add_u32 v22, v23, 3, v22
    v_and_b32 v2, 1, v2
    v_lshrrev_b32 v3, 1, v3
    v_lshl_add_u32 v2, v2, 1, v3
    v_lshl_add_u32 v{V_TRA}, v2, 5, v22
    """)
    for t in range(1, 4):
        k(f"v_xor_b32 v{V_TRA+t}, {32*t}, v{V_TRA}")


def seq(k, items):
    def all_():
        for it in items:
            it() if callable(it) else k(it)
    return all_


CFGS = {
    "b": dict(stores={8: 3, 9: 3, 10: 2, 11: 2, 12: 2, 13: 2, 14: 2, 15: 4, 16: 4, 17: 4, 18: 4}, swin={},
              xn={10: [0, 1], 11: [2, 3], 12: [4, 5], 13: [6, 7], 15: [8], 16: [9], 17: [10], 18: [11], 19: [12, 13], 20: [14, 15]}, pub2=20, poll=21),
    "e": dict(stores={8: 0, 9: 3, 10: 2, 11: 2, 12: 2, 13: 2, 14: 4, 15: 3, 16: 4, 17: 4, 18: 4, 19: 2}, swin={},
              xn={10: [0, 1], 11: [2, 3], 12: [4, 5], 13: [6, 7], 15: [8], 16: [9], 17: [10], 18: [11], 19: [12, 13], 20: [14, 15]}, pub2=21, poll=22),
    "f": dict(stores={8: 0, 9: 4, 10: 1, 11: 1, 12: 2, 13: 2, 14: 5, 15: 5, 16: 4, 17: 4, 18: 4}, swin={},
              xn={10: [0, 1], 11: [2, 3], 12: [4, 5], 13: [6, 7], 15: [], 16: [8], 17: [9], 18: [10, 11], 19: [12, 13], 20: [14, 15]}, pub2=20, poll=21),
    "g": dict(stores={8: 4, 9: 4, 10: 0, 11: 0, 12: 0, 13: 4, 14: 4, 15: 4, 16: 4, 17: 4, 18: 4}, swin={},
              xn={10: [0, 1, 2], 11: [3], 12: [4, 5, 6, 7], 13: [], 15: [], 16: [8], 17: [9], 18: [10, 11], 19: [12, 13], 20: [14, 15]}, pub2=20, poll=21),
}
CFG = CFGS[os.environ.get("CFG", "b")]


_Q = [V_ACC + 4 * i for i in range(48)]
ACC_KL, ACC_KH, ACC_VL = _Q[0:16], _Q[16:32], _Q[32:48]
ACC_VH = _Q[4:8] + _Q[12:16] + _Q[20:24] + _Q[28:32]
ACC_Q0 = _Q[0:4] + _Q[8:12] + _Q[16:20] + _Q[24:28]
ACC_Q1 = ACC_VL[1::2] + ACC_VH[1::2]


def L(f, kind, store=False):
    return It(f, kind, store=store)


def w_dma(k, step, steps, wstride=8192):
    S = steps[step]
    items = [It(f"s_add_u32 m0, s{S_W4K}, {WSLOT[step]*16384}"), It(f"s_mov_b32 s{S_SOFF}, {S['kc']*128*wstride + S['col']}")]
    for jj in range(4):
        items.append(L(lambda jj=jj: k.vmop(
            f"buffer_load_dwordx4 v{V_WVO+jj}, s[{S['srd']}:{S['srd']+3}], s{S_SOFF} offen offset:{jj*1024}{NT if step < 8 else NT2} lds", ("W", step)), "d"))
    return items


def run(k, items):
    for it in items:
        x = it.x if isinstance(it, It) else it
        x() if callable(x) else k(x)


def tr_items(k, step, t):
    base = V_WF + 16 * (t % 2)
    items = []
    delta = (WSLOT[step] // 4 - WSLOT[step - 1] // 4) * 65536 if step else 0
    if delta: items.append(It(f"v_add_u32 v{V_TRA+t}, {delta & 0xffffffff:#x}, v{V_TRA+t}"))
    for ks in range(4):
        for half in range(2):
            off = (WSLOT[step] % 4) * 16384 + ks * 4096 + half * 512
            items.append(L(lambda ks=ks, half=half, off=off: k.lgop(
                f"ds_read_b64_tr_b16 {v(base+4*ks+2*half,2)}, v{V_TRA+t} offset:{off}", ("F", step, t, ks)), "r"))
            items[-1].rr = -2
    return items


def proj_core(k, steps, res, extra_fill, res_wait, epi, hook=None, at_barrier=None):
    ns = len(steps)
    run(k, tr_items(k, 0, 0))
    pend, pst, wait_st = [], [], []
    for step, S in enumerate(steps):
        kc = S["kc"]
        acc = lambda t, b: v(S["acc"][4 * t + b], 4)
        mf, rd, ctl, mem = [], [], [], []
        for t in range(4):
            for b in range(4):
                for kk in range(4):
                    ks = kk if b % 2 == 0 else 3 - kk
                    pre = []
                    if b == 0:
                        pre.append(lambda t=t, ks=ks: k.lgwait(("F", step, t, ks)))
                    if t == 0:
                        pre += res_wait(step, b, ks)
                    wf = v(V_WF + 16 * (t % 2) + 4 * ks, 4)
                    c = "0" if (kc == 0 and kk == 0) else acc(t, b)
                    A, B = (wf, res(b, 4 * kc + ks)) if S["mode"] != "V" else (res(b, 4 * kc + ks), wf)
                    mf.append((pre, mfma(acc(t, b), A, B, c)))
            if t < 3:
                rd += window(tr_items(k, step, t + 1), 16 * t, 16 * t + 11)
            elif step + 1 < ns:
                def bar(step=step):
                    k.vmwait([("W", step + 1)] + ([] if has_bar(step + 1) else [("W", step + 2)]))
                    pre_, post_ = (at_barrier or {}).get(step, (None, None))
                    if pre_: pre_()
                    k("s_barrier")
                    if post_: post_()
                bi = L(bar, "s"); bi.cost = 24
                if has_bar(step): ctl += window([bi], 47, 47)
                rd += window(tr_items(k, step + 1, 0), 48, 59)
        streams = [rd, ctl]
        for e in extra_fill.get(step, []):
            if len(e) == 4: mem += window(e[2], e[0], e[1])
            else: streams.append(window(e[2], e[0], e[1]))
        late, early = [], []
        for w_ in WISSUE.get(step, []):
            if WSLOT[w_] == WSLOT[step - 1] or step == 5 or step >= 10: late += w_dma(k, w_, steps)
            else: early += w_dma(k, w_, steps)
        mem += window(early, 4, 46) + window(late, 48, 62)
        streams.append(mem)
        if pend:
            take, pend = pend[:96], pend[96:]
            streams.append(window(take, 8, 63))
        if pst:
            ns_ = CFG["stores"].get(step, 8)
            take, pst = pst[:ns_], pst[ns_:]
            if os.environ.get("NOST"): take = []
            streams.append(window(take, *CFG["swin"].get(step, (4, 60))))
        if not pend:
            pst += wait_st; wait_st = []
        pack(k, mf, streams)
        if hook: hook(step)
        new = epi(step)
        pend += [x for x in new if x.kind != "d"]
        wait_st += [x for x in new if x.kind == "d"]
    k("s_nop 7")
    run(k, pend)
    assert not pst and not wait_st


def kv_phase(k, ts=False):
    SC, SWK, SWV, SKO, SVO, SJ1, SJ2, SD1, SD2 = 8, 12, 16, 20, 24, 28, 32, 76, 80
    SX, SXN, SCS = 84, 88, 72
    V_CVO, V_CRA, V_SVO = 12, 16, 20
    CBASE = 65536
    J0L = 147456
    CWF = int(os.environ.get("CWF", "0"))
    if CWF: code_warm(k, k.name + "_c0", k.name + "_cend", 28, "v29")
    proj_setup(k)
    k(f"""
    s_and_b32 s70, s2, 7
    s_lshl_b32 s70, s70, 2
    s_bfe_u32 s71, s2, 0x20003
    s_add_u32 s70, s70, s71
    s_lshr_b32 s71, s2, 5
    s_mul_i32 s5, s3, 24576
    s_add_u32 s5, s5, {CBASE}
    v_lshrrev_b32 v2, 4, v0
    v_and_b32 v3, 15, v0
    v_xor_b32 v21, v2, v3
    v_lshlrev_b32 v21, 4, v21
    v_lshl_add_u32 v2, v2, 10, v21
    s_lshl_b32 s4, s3, 16
    v_add_u32 v{V_CVO}, s4, v2
    """)
    for j in range(1, 4):
        k(f"v_xor_b32 v{V_CVO+j}, {64*j}, v{V_CVO}\nv_add_u32 v{V_CVO+j}, {j*3072}, v{V_CVO+j}")
    k(f"s_lshl_b32 s6, s70, 8\ns_sub_u32 s68, 0x400000, s6\ns_lshl_b32 s4, s71, 18\ns_waitcnt lgkmcnt(0)\ns_lshl_b32 s{S_W4K}, s3, 12")
    stamp(k, 28, ts and PTS)
    srd(k, SC, P['ckv'], P['ckv'] + 1, "s4", 262144)
    srd(k, SWK, P['wuk'], P['wuk'] + 1, "s6", "s68")

    steps = [dict(srd=SWK, col=128 * (s_ % 2), mode="K", kc=s_ // 2, acc=(ACC_KL, ACC_KH)[s_ % 2]) for s_ in range(8)]
    steps += [dict(srd=SWV, col=128 * g_, mode="V", kc=kc_, acc=(ACC_VL, ACC_VH)[g_])
              for g_, kc_ in ((0, 0), (1, 0), (0, 1), (1, 1), (0, 2), (0, 3), (1, 2), (1, 3))]

    def c_dma(j):
        kc, b = divmod(j, 4)
        items = [It(f"s_add_u32 m0, s5, {(j % 6)*4096}"), It(f"s_mov_b32 s{S_SOFF}, {b*16384 + kc*256}")]
        for jj in range(4):
            items.append(L(lambda jj=jj: k.vmop(
                f"buffer_load_dwordx4 v{V_CVO+jj}, s[{SC}:{SC+3}], s{S_SOFF} offen offset:{jj*1024} lds", ("C", j)), "d"))
        return items

    def c_read(j):
        kc, b = divmod(j, 4)
        items = [L(lambda: k.vmwait(("C", j)), "s")]
        for ks in range(4):
            items.append(L(lambda ks=ks: k.lgop(
                f"ds_read_b128 {a(64*b+16*kc+4*ks,4)}, v{V_CRA+ks} offset:{(j % 6)*4096}", ("CR", j)), "r"))
        return items

    def c_next(j):
        return [L(lambda: k.lgwait(("CR", j)), "s")] + c_dma(j + 6)

    run(k, w_dma(k, 0, steps))
    stamp(k, 29, ts and PTS)
    for j in range(4): run(k, c_dma(j))
    stamp(k, 30, ts and PTS)
    srd(k, SWV, P['wuv'], P['wuv'] + 1, "s6", "s68")
    if not CWF: code_warm(k, k.name + "_c0", k.name + "_cend", 28, "v29")
    proj_setup2(k)
    k(f"""
    s_lshl_b32 s69, s2, 2
    s_add_u32 s69, s69, s3
    v_and_b32 v3, 15, v0
    v_lshl_add_u32 v{V_CRA}, v3, 8, v21
    s_mul_i32 s4, s3, {KV_TS}
    v_lshlrev_b32 v2, 4, v0
    v_add_u32 v{V_SVO}, s4, v2
    """)
    for j in range(1, 4): k(f"v_xor_b32 v{V_CRA+j}, {64*j}, v{V_CRA}")
    for j in range(4): k(f"v_add_u32 v{V_CRA+j}, s5, v{V_CRA+j}")
    k("""
    s_lshr_b32 s4, s2, 3
    s_lshl_b32 s4, s4, 2
    s_add_u32 s4, s4, s3
    s_lshl_b32 s4, s4, 15
    s_and_b32 s68, s2, 7
    s_lshl_b32 s68, s68, 10
    s_add_u32 s4, s4, s68
    v_lshrrev_b32 v2, 3, v0
    v_and_b32 v3, 7, v0
    v_lshlrev_b32 v3, 7, v3
    v_lshl_add_u32 v25, v2, 13, v3
    """)
    srd(k, 32, P['wuv'], P['wuv'] + 1, "s4", 3 * 8192 + 1024)
    srd(k, 80, P['wq'], P['wq'] + 1, "s4", 3 * 8192 + 1024)
    WW = os.environ.get("WW", "4")
    wwarm = lambda sr: [L(lambda: k.vmop(f"buffer_load_dword v22, v25, s[{sr}:{sr+3}], 0 offen{WNT}", "warm"), "d")]
    sync_init(k, 30)
    k(f"s_mul_i32 s4, s70, {KV_HS}\ns_mul_i32 s68, s71, {4*KV_TS}\ns_add_u32 s4, s4, s68\ns_add_u32 s4, s4, {WS_K}")
    srd(k, SKO, P['ws'], P['ws'] + 1, "s4", 3 * KV_TS + 16384)
    k(f"s_sub_u32 s4, s4, {WS_K - WS_V}")
    srd(k, SVO, P['ws'], P['ws'] + 1, "s4", 3 * KV_TS + 16384)
    k(f"s_lshr_b32 s4, s69, 3\ns_lshl_b32 s4, s4, 14\ns_add_u32 s4, s4, {WS_XN}")
    srd(k, SXN, P['ws'], P['ws'] + 1, "s4", 16384)
    k("s_lshl_b32 s4, s69, 11"); srd(k, SX, P['x'], P['x'] + 1, "s4", 2048)
    k(f"""
    s_lshr_b32 s64, s2, 3
    s_add_u32 s64, s64, 40
    s_and_b32 s65, s2, 7
    s_lshl_b32 s66, s64, 15
    s_lshl_b32 s67, s65, 7
    s_add_u32 s66, s66, s67
    s_min_u32 s66, s66, {1376*1024}
    s_sub_u32 s68, {1376*1024}, s66
    """)
    srd(k, SJ1, P['w2'], P['w2'] + 1, "s66", "s68")
    k(f"s_mul_i32 s67, s65, {4*43*1024}\ns_lshl_b32 s64, s64, 10\ns_add_u32 s67, s67, s64\ns_add_u32 s67, s67, {WS_W2}")
    srd(k, SD1, P['ws'], P['ws'] + 1, "s67", 3 * 43 * 1024 + 1024)
    k(f"""
    s_lshl_b32 s62, s3, 8
    s_add_u32 s62, s62, s2
    v_lshrrev_b32 v2, 3, v0
    v_and_b32 v3, 7, v0
    v_lshlrev_b32 v3, 4, v3
    v_lshl_add_u32 v21, v2, 10, v3
    v_bfe_u32 v2, v0, 2, 4
    v_lshlrev_b32 v2, 7, v2
    v_and_b32 v3, 3, v0
    v_lshl_add_u32 v23, v3, 3, v2
    v_add_u32 v23, {J0L}, v23
    v_lshlrev_b32 v24, 4, v0
    v_and_b32 v26, 1, v0
    v_lshlrev_b32 v26, 10, v26
    v_lshrrev_b32 v3, 1, v0
    v_lshl_add_u32 v26, v3, 4, v26
    """)
    k("s_mov_b32 s64, 4096\ns_mov_b32 s65, 8192\ns_mov_b32 s66, 12288")
    stamp(k, 1, ts)
    run(k, c_read(0)); run(k, c_dma(4))
    run(k, c_read(1)); run(k, c_dma(5))
    run(k, c_read(2)); run(k, w_dma(k, 1, steps))
    run(k, c_read(3))
    k.vmop(f"buffer_load_dwordx4 {v(192,4)}, v26, s[{SX}:{SX+3}], 0 offen", "X")
    k.vmop(f"buffer_load_dwordx4 {v(196,4)}, v26, s[{SX}:{SX+3}], 0 offen offset:512", "X")
    PS = os.environ.get("PS", "r")
    stamp(k, 2, ts)
    k.vmwait(("W", 0))
    k("s_barrier")
    k(f"{k.name}_c0:")
    stamp(k, 3, ts)

    T = 192
    ln = []
    ln.append(L(lambda: k.vmop(f"buffer_load_dwordx4 {v(T,4)}, v26, s[{SX}:{SX+3}], 0 offen", "X"), "d"))
    ln.append(L(lambda: k.vmop(f"buffer_load_dwordx4 {v(T+4,4)}, v26, s[{SX}:{SX+3}], 0 offen offset:512", "X"), "d"))
    l2 = [L(lambda: k.vmwait("X"), "s")]
    X = T + 8
    class Rec:
        def __init__(s): s.items = []
        def __call__(s, t):
            for l_ in t.split("\n"):
                if not l_.startswith("s_nop"): s.items.append(It(l_))
    R = Rec()
    for j in range(8): R(f"v_lshlrev_b32 v{X+2*j}, 16, v{T+j}\nv_and_b32 v{X+1+2*j}, 0xffff0000, v{T+j}")
    R(f"v_add_f32 v2, v{X}, v{X+1}")
    for j in range(2, 16): R(f"v_add_f32 v2, v2, v{X+j}")
    xlane_sum(R, 2, 3, ["q2", "r4", "r8", "p16", "p32"])
    R(f"v_mul_f32 v2, 0x3b000000, v2")
    R(f"v_sub_f32 v3, v{X}, v2\nv_mul_f32 v27, v3, v3")
    for j in range(1, 16): R(f"v_sub_f32 v3, v{X+j}, v2\nv_fmac_f32 v27, v3, v3")
    xlane_sum(R, 27, 3, ["q2", "r4", "r8", "p16", "p32"])
    for t_ in ["v_mul_f32 v27, 0x3b000000, v27\nv_cvt_pk_bf16_f32 v2, v2, v27", "v_and_b32 v27, 0xffff0000, v2\nv_lshlrev_b32 v2, 16, v2",
               "v_add_f32 v27, 0x3727c5ac, v27\nv_cvt_pk_bf16_f32 v27, v27, v27", "v_lshlrev_b32 v27, 16, v27\nv_sqrt_f32 v27, v27\ns_nop 0",
               "v_cvt_pk_bf16_f32 v27, v27, v27\nv_lshlrev_b32 v27, 16, v27", "v_rcp_f32 v27, v27\ns_nop 0"]: R(t_)
    for j in range(8):
        R(f"v_sub_f32 v{X+2*j}, v{X+2*j}, v2\nv_sub_f32 v{X+2*j+1}, v{X+2*j+1}, v2")
        R(f"v_cvt_pk_bf16_f32 v{T+j}, v{X+2*j}, v{X+1+2*j}\nv_lshlrev_b32 v{X+2*j}, 16, v{T+j}")
        R(f"v_and_b32 v{X+1+2*j}, 0xffff0000, v{T+j}\nv_mul_f32 v{X+2*j}, v{X+2*j}, v27")
        R(f"v_mul_f32 v{X+2*j+1}, v{X+2*j+1}, v27\nv_cvt_pk_bf16_f32 v{T+j}, v{X+2*j}, v{X+1+2*j}")
    l2 += R.items
    XL = 155648
    R = Rec()
    R(f"s_lshl_b32 s68, s3, 5\ns_add_u32 s68, s68, {XL}\nv_and_b32 v2, 1, v0\nv_lshlrev_b32 v2, 4, v2")
    R("v_lshrrev_b32 v3, 1, v0\nv_lshl_add_u32 v2, v3, 7, v2\nv_add_u32 v2, s68, v2")
    l3 = R.items + [L(lambda j=j: k.lgop(f"ds_write_b128 v2, {v(T+4*j,4)} offset:{4096*j}", "xw"), "r") for j in range(2)]
    R = Rec()
    R(f"s_lshl_b32 s68, s3, 11\ns_add_u32 s68, s68, {XL}\nv_add_u32 v2, s68, v24")
    l4 = R.items + [L(lambda j=j: k.lgop(f"ds_read_b128 {v(T+4*j,4)}, v2 offset:{1024*j}", "xr"), "r") for j in range(2)]
    R = Rec()
    R("s_and_b32 s68, s2, 1\ns_lshl_b32 s68, s68, 7\ns_add_u32 s68, s68, s58\nv_lshrrev_b32 v2, 3, v0\nv_lshlrev_b32 v2, 8, v2")
    R("v_and_b32 v3, 7, v0\nv_lshl_add_u32 v2, v3, 4, v2\nv_add_u32 v2, s68, v2")
    l4 += R.items + [L(lambda: k.lgwait("xr"), "s")]
    l4 += [L(lambda j=j: k.vmop(f"buffer_store_dwordx4 {v(T+4*j,4)}, v2, s[{SXN}:{SXN+3}], 0 offen offset:{2048*j}{SC1}", "sj"), "d") for j in range(2)]

    def j0(part):
        def f():
            lab = k.label("j0")
            k(f"s_cmp_lt_u32 s62, 24\ns_cbranch_scc0 {lab}")
            if part == 0:
                k(f"s_mov_b32 m0, {J0L}\ns_mov_b32 s68, 0")
                for jj in range(4):
                    k(f"buffer_load_dwordx4 v21, s[{SJ1}:{SJ1+3}], s68 offen offset:{jj*1024}{NT} lds\ns_add_u32 s68, s68, 7168")
            else:
                JF = ACC_Q1
                for t in range(4):
                    for half in range(2): k(f"ds_read_b64_tr_b16 {v(JF[t]+2*half,2)}, v23 offset:{32*t + 2048*half}")
                k("s_waitcnt lgkmcnt(0)\ns_mov_b32 s68, 0")
                for t in range(4):
                    k(f"buffer_store_dwordx4 {v(JF[t],4)}, v24, s[{SD1}:{SD1+3}], s68 offen{SC1}\ns_add_u32 s68, s68, {43*1024}")
            k(f"{lab}:")
        return [L(f, "s")]

    cc = lambda j: c_read(j) + (c_next(j) if j + 6 < 16 else [])
    n3 = len(l2) // 5
    if PS == "f":
        e0 = c_next(0) + c_next(1) + w_dma(k, 2, steps) + c_next(2) + c_next(3) + cc(4)
        e1 = w_dma(k, 3, steps) + cc(5) + cc(6) + cc(7)
        e2, e3, e4 = cc(8) + cc(9), cc(10) + cc(11), cc(12) + cc(13)
    else:
        e0 = c_next(0) + c_next(1) + w_dma(k, 2, steps) + c_read(4)
        e1 = c_next(2) + c_next(3) + w_dma(k, 3, steps) + c_read(5) + c_read(6) + c_read(7)
        e2 = c_next(4) + c_next(5) + c_next(6) + c_read(8)
        e3 = c_next(7) + c_read(9) + c_next(8) + c_read(10) + c_read(11)
        e4 = c_next(9) + c_read(12) + c_read(13)
    if WW == "4": e4 = e4 + wwarm(32) + wwarm(80)
    if WW == "3": e3 = e3 + wwarm(32); e4 = e4 + wwarm(80)
    if WW == "1": e1 = e1 + wwarm(32); e3 = e3 + wwarm(80)
    extra = {0: [(0, 62, e0, "mem"), (50, 50, [L(lambda: sync_tag(k, 30), "s")])],
             1: [(0, 46, e1, "mem"), (8, 63, l2[:2*n3])],
             2: [(2, 46, e2, "mem"), (0, 63, l2[2*n3:4*n3])],
             3: [(2, 44, e3, "mem"), (0, 44, l2[4*n3:]), (48, 63, l3)],
             4: [(2, 44, e4, "mem"), (48, 63, l4)],
             5: [(20, 44, cc(14) + cc(15) + [L(lambda: k.lgwait(("CR", 15)), "s")], "mem")],
             6: [(0, 0, j0(0), "mem")],
             15: [(2, 2, j0(1))]}

    def epi(step):
        S = steps[step]
        if S["kc"] != 3: return []
        A = lambda t, b: S["acc"][4 * t + b]
        g = S["col"] // 128
        items = []
        def pk(d, x, y, sr, off):
            if S["mode"] == "V":
                for r in range(4):
                    items.append(It(f"v_mul_f32 v{x+r}, 0x5f800000, v{x+r}\nv_mul_f32 v{y+r}, 0x5f800000, v{y+r}"))
            items.extend(It(t_) for t_ in [f"v_cvt_pk_bf16_f32 v{d}, v{x}, v{x+1}", f"v_cvt_pk_bf16_f32 v{d+1}, v{x+2}, v{x+3}",
                                           f"v_cvt_pk_bf16_f32 v{d+2}, v{y}, v{y+1}", f"v_cvt_pk_bf16_f32 v{d+3}, v{y+2}, v{y+3}"])
            so, im = divmod(off, 4096)
            items.append(L(lambda: k.vmop(
                f"buffer_store_dwordx4 {v(d,4)}, v{V_SVO}, s[{sr}:{sr+3}], {'0' if so == 0 else 's%d' % (63+so)} offen offset:{im}{KVSC}", "kv"), "d", True))
        if S["mode"] == "K":
            for b in range(4):
                for j in range(2):
                    pk(A(2 * j, b), A(2 * j, b), A(2 * j + 1, b), SKO, b * 4096 + (2 * g + j) * 1024)
        else:
            for t in range(4):
                for j in range(2):
                    pk(A(t, 2 * j), A(t, 2 * j), A(t, 2 * j + 1), SVO, j * 8192 + (4 * g + t) * 1024)
        return items
    return steps, extra, epi
```

```python
from emit import *
import jobs, os
import jobs as relayout
from k1 import seq, run, L, V_ACC, S_SOFF, S_W4K, SC1, ACC_Q0, ACC_Q1

XNSC = os.environ.get("XNSC", SC1)
NE = int(os.environ.get('NE', '30'))
CW = os.environ.get('CW', 'abg')
JEV = int(os.environ.get('JEV', '1'))
SNAKE = int(os.environ.get('SNAKE', '1'))
ONEV = int(os.environ.get('ONEV', '1'))
LPOS = os.environ.get('LPOS', 'end')
BIAS = 102.0
NEG = 0xf149f2ca
QSCALE = 0x3e0293ee
V_L16, V_DVO, V_RA = 12, 13, 14
V_T, V_PS, V_L, V_CT, V_C, V_P, V_S, V_O, V_X = 16, 20, 22, 28, 32, 48, 64, 96, 224
aQ = lambda q, ds: 64 * q + 4 * ds
aK = lambda i: 16 + 4 * i if i < 12 else 80 + 4 * (i - 12)
aV = lambda ks, dt: (96 if ks == 0 else 144) + 4 * dt
A_L = 176
SWQ, SXN, SK, SV, SCTX = 8, 28, 12, 32, 16
S_MASK, S_RET, S_THR, S_ARM, S_CNT, S_H, S_I, S_RB, S_RD, S_WR, S_DSO = 80, 62, 64, 68, 69, 70, 71, 72, 76, 77, 78
S_NWR, S_PC, S_EV = 79, 68, 59
SME = int(os.environ.get('SME', '9'))
BPOS = int(os.environ.get('BPOS', '6'))
SM0 = 8
CARRY = int(os.environ.get('CARRY', '10'))
FULL = "FFFF"
LASTQ = 2


class Job:
    def __init__(s, q, modes, par, first=False):
        s.q, s.modes, s.par, s.first = q, modes, par, first
        s.S, s.P, s.ps = V_S + 16 * par, V_P + 8 * par, V_PS + par


class Att:
    def __init__(s, k):
        s.k = k
        s.par = 0
        s.stubs = []
        s.pubs = []
        s.slow = set()
        s.tmp = 0

    def qk_block(s, J, kwait):
        k = s.k
        mf = []
        for kvb in range(4):
            m = J.modes[kvb]
            if m == "E": continue
            for dd in range(4):
                ds = 3 - dd if SNAKE and kvb % 2 else dd
                pre = []
                if kwait: pre.append(lambda kvb=kvb, dd=dd: k.lgwait(("Kf", 4 * kvb + dd)))
                c = v(J.S + 4 * kvb, 4)
                if dd == 0:
                    c = "0" if J.first else v(V_C + 4 * J.q, 4)
                    if m == "T":
                        pre.append(f"v_mov_b32 v3, {NEG}")
                        for r in range(4):
                            src = "0" if J.first else f"v{V_C+4*J.q+r}"
                            pre.append(f"v_cndmask_b32 v{V_CT+r}, v3, {src}, s[{S_MASK+2*r}:{S_MASK+2*r+1}]")
                        c = v(V_CT, 4)
                mf.append((pre, mfma(v(J.S + 4 * kvb, 4), a(aK(4 * kvb + ds), 4), a(aQ(J.q, ds), 4), c)))
        return mf

    def pv_block(s, J, vwait):
        k = s.k
        mf = []
        kss = [ks for ks in range(2) if J.modes[2 * ks] != "E"]
        for dt in range(8):
            for ks in (kss[::-1] if SNAKE and dt % 2 else kss):
                pre = [lambda ks=ks, dt=dt: k.lgwait(("Vf", 2 * dt + (ks ^ (dt & SNAKE))))] if vwait else []
                o = v(V_O + 32 * J.q + 4 * dt, 4)
                mf.append((pre, mfma(o, a(aV(ks, dt), 4), v(J.P + 4 * ks, 4), "0" if J.first and (len(kss) == 1 or ks == (dt & SNAKE)) else o)))
        for ks in kss:
            l_ = a(A_L + 4 * J.q, 4)
            mf.append(([], mfma(l_, v(V_L, 4), v(J.P + 4 * ks, 4), "0" if J.first and ks == 0 else l_)))
        return mf

    def sm_items(s, J, a0=None):
        items = []
        live = [e for e in range(16) if J.modes[e // 4] != "E"]
        for e in range(16):
            if e not in live: items.append(f"v_mov_b32 v{J.S+e}, {NEG}")
        for kvb in range(4):
            if J.modes[kvb] == "E" and J.modes[kvb & 2] != "E":
                items.append(f"v_mov_b32 v{J.P+2*kvb}, 0\nv_mov_b32 v{J.P+2*kvb+1}, 0")
        t = lambda e: V_T + e % 4
        n = len(live)
        if J.first:
            mx, C = 26, V_C + 4 * J.q
            head = [f"v_max3_f32 v{mx}, v{J.S}, v{J.S+1}, v{J.S+2}"]
            head += [f"v_max3_f32 v{mx}, v{mx}, v{J.S+e}, v{J.S+e+1}" for e in range(3, n - 1, 2)]
            head += [f"v_max_f32 v{mx}, v{mx}, v{J.S+n-1}"]
            for sw in (16, 32):
                head += [f"v_mov_b32 v27, v{mx}", f"v_permlane{sw}_swap_b32 v{mx}, v27", f"v_max_f32 v{mx}, v{mx}, v27"]
            head += [f"v_sub_f32 v{C+r}, 0xc2cc0000, v{mx}" for r in range(4)]
            head += [f"v_add_f32 v{J.S+e}, v{J.S+e}, v{C}" for e in range(n)]
            items += [It(h_, lo=a0 + n + 3) for h_ in head]
        done, checked = [], not J.first or J.q == LASTQ
        for e in range(n + 1):
            if e < n: items.append(It(f"v_exp_f32 v{t(e)}, v{J.S+e}", lo=None if a0 is None else a0 + 4 * (e // 4) + 7))
            if e >= 2 and e % 2 == 0:
                p = e - 2
                items.append(f"v_cvt_pk_bf16_f32 v{J.P+p//2}, v{t(p)}, v{t(p+1)}")
                done.append(J.P + p // 2)
                if checked and p == 4: items.append(f"v_or3_b32 v{J.ps}, v{done[0]}, v{done[1]}, v{done[2]}"); done = []
                elif checked and p > 4 and len(done) == 2: items.append(f"v_or3_b32 v{J.ps}, v{J.ps}, v{done[0]}, v{done[1]}"); done = []
        if checked:
            items.append(f"v_or_b32 v{J.ps}, v{done[0]}, v{done[1]}" if n == 4 else f"v_or_b32 v{J.ps}, v{J.ps}, v{done[0]}")
            items.append(f"v_and_b32 v{J.ps}, s{S_THR}, v{J.ps}")
        return [x if isinstance(x, It) else It(x) for x in items]

    def check_items(s, J):
        k = s.k
        out, back = k.label("so"), k.label("sb")
        s.stubs.append((out, back, J.q, J.par))
        s.slow.add((J.q, J.par))
        a1 = f"v_cmp_ne_u32 vcc, 0, v{J.ps}"
        a2 = f"s_cbranch_vccnz {out}\n{back}:"
        return a1, a2

    def kv_reads(s, which):
        k = s.k
        items = []
        for i in range(16):
            if which == "K":
                f = i ^ 3 if SNAKE and i & 4 else i
                items.append(lambda i=i, f=f: k.lgop(f"ds_read_b128 {a(aK(f),4)}, v{V_RA} offset:{16384+1024*f}", ("Kf", i)))
            else:
                dt, ks = divmod(i, 2)
                ks ^= dt & SNAKE
                items.append(lambda i=i, dt=dt, ks=ks: k.lgop(
                    f"ds_read_b128 {a(aV(ks,dt),4)}, v{V_RA} offset:{8192*ks+1024*dt}", ("Vf", i)))
        return items

    def dma_items(s, gen):
        k = s.k
        items = []
        for part, sr in enumerate((SV, SK)):
            for jj in range(4):
                pre = []
                if jj == 0:
                    pre = [f"s_mov_b32 m0, s{S_WR}"] if part == 0 else [f"s_add_u32 m0, s{S_WR}, 16384", f"s_add_u32 s{S_DSO}, s{S_DSO}, {KV_TS}"]
                for x in pre: items.append(It(x))
                items.append(It(lambda sr=sr, jj=jj: k.vmop(
                    f"buffer_load_dwordx4 v{V_DVO}, s[{sr}:{sr+3}], s{S_DSO} offen offset:{jj*1024}{SC1} lds", ("D", gen)), "d"))
        return items

    def period(s, specs, dma=True, nextk=True, extra=None, last=False, first=False, drain=False):
        k = s.k
        jobs = []
        for q, m in specs:
            jobs.append(Job(q, m, s.par, first)); s.par ^= 1
        mf, pos, pvpos = [], [], []
        V, ctl = [], []
        prev, prev_sm, pstart = s.pend, s.psm, 0
        for j, J in enumerate(jobs):
            a0 = len(mf)
            blk = s.qk_block(J, kwait=True)
            mf += blk
            L = len(blk)
            if prev is not None and prev.first and j > 0:
                V += window(prev_sm, pstart, a0 + L - 2)
            elif prev is not None:
                e = a0 + min(SME, L - 3)
                V += window(prev_sm, pstart, e)
                c1, c2 = s.check_items(prev)
                V += window([c1], e, e + 1)
                ctl2 = window([c2], min(e + 2, a0 + L - 1), min(e + 4, a0 + L - 1))
                ctl += ctl2
            if j == 0:
                bpos = a0 + (BPOS if BPOS < min(SME, L - 3) else L - 1)
                def bar():
                    k.lgwait([("Kf", i_) for i_ in range(16)])
                    k.vmdrain() if drain else k.vmwait(("D", 0))
                    k("s_barrier")
                    if first: stamp(k, 24, getattr(s, "ts", False))
                    if not first:
                        out, back = k.label("fo"), k.label("fb")
                        if not k.dry: s.pubs.append((out, back))
                        k(f"s_sub_u32 s{S_PC}, s{S_PC}, 1\ns_cbranch_scc1 {out}\n{back}:")
                bi = It(bar, "s"); bi.cost = 28 if first else 38
                bw = window([bi], bpos, bpos)
                if prev is not None and bpos < e: ctl[:0] = bw
                else: ctl += bw
            b0 = len(mf)
            blk = s.pv_block(prev, vwait=True) if prev is not None else []
            mf += blk
            pvpos.append((b0, len(blk)))
            pos.append((a0, L))
            pstart = a0 + (L if first else min(SM0, L))
            prev, prev_sm = J, s.sm_items(J, a0)
        n = len(mf)
        if last:
            V += window(prev_sm, pstart, n - 1); prev_sm = []
        else:
            take = len(prev_sm) - CARRY if prev.modes == FULL else (len(prev_sm) * (n - pstart)) // (n - pstart + SM0)
            V += window(prev_sm[:take], pstart, n - 1)
            prev_sm = [it.x for it in prev_sm[take:]]
        streams = [V, ctl]
        b0, Lb = pvpos[0]
        vend = pvpos[1][0] - 4 if len(pvpos) > 1 else n - 1
        rv = [It(x, "r", lo=max(bpos + 1, b0 + max(0, min(i, Lb - 1)))) for i, x in enumerate(s.kv_reads("V"))]
        streams.append(window(rv, b0 if Lb else bpos + 1, vend))
        if nextk:
            a0, L = pos[-1]
            rk = [It(x, "r", lo=a0 + min(i, L - 1)) for i, x in enumerate(s.kv_reads("K"))]
            streams.append(window(rk, a0, n - 2))
        if dma:
            streams.append(window((relayout.issue(k) if first else []) + s.dma_items(3), bpos + 1, n - 6))
        for lo, hi, items in (extra(pos, pvpos, n) if extra else []):
            streams.append(window(items, lo, hi))
        if not last:
            streams.append(window([f"s_add_u32 s{S_NWR}, s{S_RD}, s{S_W4K}", f"s_add_u32 s{S_RD}, s{S_RD}, 32768",
                                   f"s_and_b32 s{S_RD}, s{S_RD}, 0x1ffff"], n - 12, n - 5))
            streams.append(window([f"s_mov_b32 s{S_WR}, s{S_NWR}", f"v_add_u32 v{V_RA}, s{S_RD}, v{V_L16}"], n - 1, n - 1))
        pack(k, mf, streams)
        k.vm = [("D", t[1] - 1) if isinstance(t, tuple) and t[0] == "D" else t for t in k.vm]
        s.pend, s.psm = Job(prev.q, prev.modes, prev.par), prev_sm

    def loop(s, specs, count_expr):
        k = s.k
        top, end = k.label("lp"), k.label("le")
        k(count_expr)
        k(f"s_cmp_eq_u32 s{S_CNT}, 0\ns_cbranch_scc1 {end}\n{top}:")
        got = [t for t in k.vm if isinstance(t, tuple) and t[0] == "D"]
        k.vm = [("D", g) for g in range(3) for _ in range(8)]
        assert got == k.vm[len(k.vm) - len(got):]
        for i in range(16): k.lgt[("Kf", i)] = k.clock - 32 + 2 * i
        vm0, lg0, par0, psm0, pq = list(k.vm), list(k.lg), s.par, list(s.psm), (s.pend.q, s.pend.par, s.pend.modes)
        s.period(specs)
        k(f"s_sub_u32 s{S_CNT}, s{S_CNT}, 1\ns_cmp_lg_u32 s{S_CNT}, 0\ns_cbranch_scc1 {top}\n{end}:")
        assert k.vm == vm0, (k.vm, vm0)
        assert k.lg == lg0[len(lg0) - len(k.lg):], (k.lg, lg0)
        k.lg = lg0
        assert s.par == par0 and s.psm == psm0 and (s.pend.q, s.pend.par, s.pend.modes) == pq

    def drain(s):
        k = s.k
        J = s.pend
        c1, c2 = s.check_items(J)
        k(c1); k("s_nop 1"); k(c2)
        k.stream(s.pv_block(J, vwait=True), {})

    def out_items(s, q):
        k = s.k
        l, O = 26 + q % 2, V_O + 32 * q
        items = [f"v_accvgpr_read_b32 v{l}, a{A_L+4*q}", f"v_rcp_f32 v{l}, v{l}", f"v_mul_f32 v{l}, 0x1f800000, v{l}"]
        for ds in range(4):
            x = O + 8 * ds
            for r in range(0, 8, 2):
                items.append(f"v_mul_f32 v{x+r}, v{x+r}, v{l}\nv_mul_f32 v{x+r+1}, v{x+r+1}, v{l}")
                items.append(f"v_cvt_pk_bf16_f32 v{x+r//2}, v{x+r}, v{x+r+1}")
            items.append(It(lambda x=x, ds=ds: k.vmop(
                f"buffer_store_dwordx4 {v(x,4)}, v{V_L16}, s[{SCTX}:{SCTX+3}], s{S_RB+q} offen offset:{ds*1024}{SC1}", "st"), "d", store=True))
        return [x if isinstance(x, It) else It(x) for x in items]

    def emit_slow(s):
        k = s.k
        for out, back, q, par in s.stubs:
            k(f"{out}:\ns_call_b64 s[{S_RET}:{S_RET+1}], {k.name}_slow{q}{par}\ns_branch {back}")
        for out, back in s.pubs:
            k(f"{out}:\ns_call_b64 s[{S_RET}:{S_RET+1}], {k.name}_evt\ns_branch {back}")
        e2, e3, e4, ret = (k.label(x) for x in ("e2", "e3", "e4", "er"))
        vt = V_X + 24
        k(f"{k.name}_evt:\ns_add_u32 s{S_EV}, s{S_EV}, 1\ns_cmp_eq_u32 s{S_EV}, 1\ns_cbranch_scc0 {e2}")
        if JEV:
            k.vm, k.lg = [], []
            k("s_waitcnt lgkmcnt(0)")
            run(k, jobs.finish(k, V_X, V_L16))
        k(f"s_mov_b32 s{S_PC}, {3 if JEV else 0}\ns_branch {ret}\n{e2}:\ns_cmp_eq_u32 s{S_EV}, 2\ns_cbranch_scc0 {e3}")
        publish(k, 6, V_X + 28)
        k(f"""
        s_lshl_b32 s4, s{S_I}, 1
        s_sub_u32 s4, 14, s4
        s_max_i32 s{S_PC}, s4, 2
        s_branch {ret}
        {e3}:
        s_cmp_eq_u32 s{S_EV}, 3
        s_cbranch_scc0 {e4}
        buffer_load_dword v{vt}, v15, s[{S_FL}:{S_FL+3}], 0 offen sc1
        s_mov_b32 s{S_PC}, 2
        """)
        if "b" in CW: code_warm(k, k.name + "_cB", k.name + "_cend", V_X + 28, "a255", back=True)
        k(f"""
        s_branch {ret}
        {e4}:
        s_mov_b32 s{S_PC}, 64
        v_cmp_ne_u32 vcc, s{S_TAG}, v{vt}
        s_nop 0
        s_cbranch_vccz {ret}
        """)
        await_flags(k, 15, vt)
        k(f"{ret}:\ns_setpc_b64 s[{S_RET}:{S_RET+1}]")
        for q, par in sorted(s.slow):
            J = Job(q, FULL, par)
            mx, t, al = V_X + 1, V_X + 2, V_X + 3
            nf, join = k.label("nf"), k.label("sj")
            k(f"{k.name}_slow{q}{par}:\nv_max3_f32 v{mx}, v{J.S}, v{J.S+1}, v{J.S+2}")
            for e in range(3, 15, 2): k(f"v_max3_f32 v{mx}, v{mx}, v{J.S+e}, v{J.S+e+1}")
            k(f"""
            v_max_f32 v{mx}, v{mx}, v{J.S+15}
            v_mov_b32 v{t}, v{mx}
            s_nop 1
            v_permlane16_swap_b32 v{mx}, v{t}
            v_max_f32 v{mx}, v{mx}, v{t}
            v_mov_b32 v{t}, v{mx}
            s_nop 1
            v_permlane32_swap_b32 v{mx}, v{t}
            v_max_f32 v{mx}, v{mx}, v{t}
            v_add_f32 v{mx}, 0x42cc0000, v{mx}
            v_max_f32 v{mx}, 0, v{mx}
            v_sub_f32 v{al}, 0, v{mx}
            v_exp_f32 v{al}, v{al}
            v_accvgpr_read_b32 v{t}, a{A_L+4*q}
            v_mul_f32 v{t}, v{t}, v{al}
            v_accvgpr_write_b32 a{A_L+4*q}, v{t}
            """)
            for r in range(32): k(f"v_mul_f32 v{V_O+32*q+r}, v{V_O+32*q+r}, v{al}")
            for r in range(4): k(f"v_sub_f32 v{V_C+4*q+r}, v{V_C+4*q+r}, v{mx}")
            for e in range(16): k(f"v_sub_f32 v{V_X+4+e}, v{J.S+e}, v{mx}")
            for e in range(16): k(f"v_exp_f32 v{V_X+4+e}, v{V_X+4+e}")
            for e in range(8): k(f"v_cvt_pk_bf16_f32 v{J.P+e}, v{V_X+4+2*e}, v{V_X+5+2*e}")
            k(f"s_nop 1\ns_setpc_b64 s[{S_RET}:{S_RET+1}]")


def diag_modes(blk):
    return "".join("F" if b < blk else "T" if b == blk else "E" for b in range(4))


QACC = (ACC_Q0, ACC_Q1)


def q_phase(k, A, base):
    steps = [dict(srd=SWQ, col=128 * (s_ % 2), mode="Q", kc=s_ // 2, acc=QACC[s_ % 2]) for s_ in range(8)]
    setup = f"""
    v_lshlrev_b32 v{V_L16}, 4, v0
    v_add_u32 v{V_DVO}, s{S_W4K}, v{V_L16}
    s_lshl_b32 s5, s{S_I}, 3
    s_sub_u32 s6, 120, s5
    s_sub_u32 s7, 7, s3
    s_add_u32 s{S_RB}, s5, s3
    s_add_u32 s{S_RB+1}, s5, s7
    s_add_u32 s{S_RB+2}, s6, s3
    s_add_u32 s{S_RB+3}, s6, s7
    s_lshl_b32 s{S_RB}, s{S_RB}, 14
    s_lshl_b32 s{S_RB+1}, s{S_RB+1}, 14
    s_lshl_b32 s{S_RB+2}, s{S_RB+2}, 14
    s_lshl_b32 s{S_RB+3}, s{S_RB+3}, 14
    """
    su = [It(l_.strip()) for l_ in setup.strip().split("\n")]

    class Rec:
        def __init__(s): s.items = []
        def __call__(s, t): s.items.append(It(t, "s"))
    R = Rec()
    R(f"s_lshl_b32 s5, s{S_H}, 8\ns_sub_u32 s6, 0x400000, s5")
    srd(R, SWQ, P['wq'], P['wq'] + 1, "s5", "s6")
    if os.environ.get("XNSRC"): srd(R, SXN, P['ckv'], P['ckv'] + 1, 0, 2 * MB)
    else: srd(R, SXN, P['ws'], P['ws'] + 1, WS_XN, 2 * MB)
    R(f"s_mul_i32 s5, s{S_H}, {KV_HS}\ns_add_u32 s5, s5, {WS_K}\ns_sub_u32 s6, 16, s{S_I}\ns_mul_i32 s6, s6, {2*KV_TS}")
    srd(R, SK, P['ws'], P['ws'] + 1, "s5", "s6")
    R(f"s_sub_u32 s5, s5, {WS_K - WS_V}")
    srd(R, SV, P['ws'], P['ws'] + 1, "s5", "s6")
    su += R.items

    def xn_items(kc, bs):
        out = []
        for b in bs:
            out.append(It(f"s_add_u32 s5, s{S_RB+b}, {kc*4096}"))
            for ks in range(4):
                out.append(L(lambda b=b, ks=ks: k.vmop(
                    f"buffer_load_dwordx4 {a(64*b+16*kc+4*ks,4)}, v{V_L16}, s[{SXN}:{SXN+3}], s5 offen offset:{ks*1024}{XNSC}", ("XN", kc, b)), "d"))
        return out

    def k0_dma():
        return [It(f"s_add_u32 m0, s{S_W4K}, 16384")] + [L(lambda jj=jj: k.vmop(
            f"buffer_load_dwordx4 v{V_DVO}, s[{SK}:{SK+3}], 0 offen offset:{jj*1024}{SC1} lds", "K0"), "d") for jj in range(4)]

    def pair_dma(p):
        return [It(f"s_add_u32 s{S_WR}, s{S_W4K}, {((p+1) % 4)*32768}"), It(f"s_mov_b32 s{S_DSO}, {p * KV_TS}")] + A.dma_items(p)

    def epi(step):
        if step < base + 6: return []
        g = QACC[(step - base) % 2]
        items = []
        for b in range(4):
            for j in range(2):
                x, y = g[8 * j + b], g[8 * j + 4 + b]
                for z in (x, y):
                    for r in range(0, 4, 2):
                        items.append(It(f"v_mul_f32 v{z+r}, {QSCALE}, v{z+r}\nv_mul_f32 v{z+r+1}, {QSCALE}, v{z+r+1}"))
                        items.append(It(f"v_cvt_pk_bf16_f32 v{z+r}, v{z+r}, v{z+r+1}"))
                        items.append(It(f"v_accvgpr_write_b32 a{aQ(b, 2*((step - base) % 2) + j) + (2 if z == y else 0) + r//2}, v{z+r}"))
        return items
    return steps, su, xn_items, k0_dma, pair_dma, epi


def att_setup(k):
    class Rec:
        def __init__(s): s.items = []
        def __call__(s, t): s.items.append(It(t, "s" if t.startswith("s_") else "v"))
    R = Rec()
    R(f"s_lshl_b32 s6, s{S_H}, 12\ns_add_u32 s6, s6, {WS_CTX}")
    srd(R, SCTX, P['ws'], P['ws'] + 1, "s6", 16 * MB)
    for t_ in ("v_lshrrev_b32 v26, 4, v0", "v_lshlrev_b32 v26, 2, v26", "v_and_b32 v27, 15, v0", "v_sub_u32 v26, v27, v26"): R(t_)
    for r in range(4): R(f"v_cmp_le_i32 s[{S_MASK+2*r}:{S_MASK+2*r+1}], {r}, v26")
    for r in range(4): R(f"v_mov_b32 v{V_L+r}, 0x3f803f80")
    for t_ in (f"s_mov_b32 s{S_THR}, 0x60006000", f"s_mov_b32 s{S_PC}, 2", f"s_mov_b32 s{S_EV}, 0", f"s_lshl_b32 s6, s3, 13",
               f"s_add_u32 s6, s6, {FOFF[6]}", "v_lshlrev_b32 v15, 7, v0", "v_add_u32 v15, s6, v15"): R(t_)
    for q in range(4): R(f"s_lshl_b32 s{S_RB+q}, s{S_RB+q}, 3")
    return R.items


def att_phase(k, A, pair_dma, ts, st0, before_b, early):
    k.vmwait("K0")
    k("s_barrier")
    k(f"v_mov_b32 v{V_RA}, v{V_L16}")
    for it in A.kv_reads("K"): it()
    k(f"v_add_u32 v{V_RA}, 32768, v{V_L16}")
    k(f"s_mov_b32 s{S_DSO}, {3 * KV_TS}\ns_mov_b32 s{S_WR}, s{S_W4K}\ns_mov_b32 s{S_RD}, 32768")
    A.pend, A.psm = None, []
    k.beam = not os.environ.get("NOBEAM")
    if "a" in CW: code_warm(k, k.name + "_cA", k.name + "_cend", 2, "a255")
    k(f"{k.name}_cA:")
    stamp(k, st0, ts)
    shared = [(0, FULL), (1, FULL), (3, FULL), (2, FULL)]
    single = [(3, FULL), (2, FULL)]
    canon = lambda: [t for t in k.vm if isinstance(t, tuple) and t[0] == "D"]
    snap = lambda: (list(k.vm), list(k.lg), A.par, A.pend, list(A.psm))
    key = lambda: (canon(), list(k.lg), A.par, A.pend.q, A.pend.par, list(A.psm))

    def restore(st):
        k.vm, k.lg, A.par, A.pend, A.psm = list(st[0]), list(st[1]), st[2], st[3], list(st[4])

    def first_period(m0):
        zero = [f"v_mov_b32 v{V_O+32*LASTQ+r}, 0" for r in range(32)] + [f"v_accvgpr_write_b32 a{A_L+4*LASTQ+r}, 0" for r in range(4)]
        A.period([(0, m0)] + shared[1:], first=True,
                 extra=lambda pos, pv, n: [(0, 14 if m0 == FULL else n - 1, zero)] + ([] if JEV else [(n - 60, n - 1, jobs.finish(k, V_X, V_L16))]))

    def variants(fn, tail=None):
        labs = [k.label(f"w{w}") for w in range(4)]
        join = k.label("vj")
        st = snap()
        res_ = None
        for w in range(4):
            k(f"{labs[w]}:")
            if w < 3: k(f"s_cmp_eq_u32 s3, {w}\ns_cbranch_scc0 {labs[w+1]}")
            restore(st)
            fn(w)
            k.vm = canon()
            assert res_ is None or res_ == key(), (res_, key())
            res_ = key()
            if tail: k(f"s_branch {tail[w]}")
            elif w < 3: k(f"s_branch {join}")
        k(f"{join}:")
        return res_

    a2 = [k.label(f"a2w{w}") for w in range(4)]
    gen_ = k.label("gen")
    st0_ = snap()
    k(f"s_cmp_eq_u32 s{S_I}, 0\ns_cbranch_scc0 {gen_}")
    key0 = variants(lambda w: first_period(diag_modes(w)), tail=a2)
    k(f"{gen_}:")
    restore(st0_)
    A.ts = ts
    first_period(FULL)
    A.ts = False
    stamp(k, 25, ts)
    A.loop(shared, f"s_lshl_b32 s{S_CNT}, s{S_I}, 1\ns_sub_u32 s{S_CNT}, s{S_CNT}, 1")
    stamp(k, st0 + 1, ts)

    def diagA(w):
        A.period([(0, diag_modes(w)), (1, FULL), (3, FULL), (2, FULL)])
        k.vm = canon()
        full = [("D", g) for g in range(3) for _ in range(8)]
        assert key()[1:] == key0[1:] and key0[0] == full[-len(key0[0]):] and k.vm == full[-len(k.vm):]
        k.vm = full
        k(f"{a2[w]}:")
        A.period([(1, diag_modes(3 - w)), (3, FULL), (2, FULL)],
                 extra=lambda pos, pv, n: [(2, pv[1][0] - 1, A.out_items(0)), (pv[2][0] - 4, n - 1, A.out_items(1))])
    variants(diagA)
    stamp(k, st0 + 2, ts)
    A.loop(single, f"s_lshl_b32 s4, s{S_I}, 2\ns_sub_u32 s{S_CNT}, 28, s4")
    stamp(k, st0 + 3, ts)

    k(f"{k.name}_cB:")
    before_b()

    def diagB(w):
        A.period([(3, FULL), (2, diag_modes(w))], dma=False, drain=True, extra=lambda pos, pv, n: [(pv[0][0], n - 1, early()[:NE])])
        rest = early()[NE:] if NE else []
        A.period([(3, diag_modes(3 - w))], dma=False, nextk=False, last=True, extra=lambda pos, pv, n: [(0, n - 1, rest)])
        o2 = A.out_items(2)
        J = A.pend
        c1, c2 = A.check_items(J)
        k(c1); run(k, o2[:3]); k("s_nop 0"); k(c2)
        blk = A.pv_block(J, vwait=True)
        pack(k, blk, [window(o2[3:], 0, len(blk) - 1)])
        run(k, A.out_items(3))
        k.lg = []
        A.psm = []
    if not NE: k(f"s_mov_b32 s5, s{S_WR}\ns_mov_b32 s38, s5")
    variants(diagB)
    k.beam = "t" in os.environ.get("BEAM", "t")
```

```python
from emit import *
from k1 import run, L, SC1
from k35 import reduce_addr, reduce_items

SA, SB, SR, SO, SS = 8, 20, 28, 24, 88
X0 = 244
S_R, S_C, S_P0, S_WB, S_T, S_L0, S_L1, S_L2 = 40, 41, 42, 43, 44, 34, 48, 49
V_AO, V_LA = 4, 8
V_TMP, V_ACC = 16, 64
import os
LOOK = int(os.environ.get('LOOK', '0'))
import os
RATE, ALEAD, NPRE = float(os.environ.get('ORATE', '9.4')), int(os.environ.get('ALEAD', '4')), int(os.environ.get('NPRE', '20'))
import os
NA_AG, NA_LDS, NA_VG, NA_AG2 = 4, int(os.environ.get('NLDS', '10')), 8, 6


def setup(k):
    k(f"""
    s_and_b32 s{S_R}, s2, 7
    s_lshl_b32 s{S_R}, s{S_R}, 2
    s_bfe_u32 s5, s2, 0x20003
    s_add_u32 s{S_R}, s{S_R}, s5
    s_lshr_b32 s{S_C}, s2, 5
    s_lshl_b32 s{S_P0}, s{S_C}, 12
    s_lshl_b32 s{S_WB}, s3, 15
    """)
    k(f"s_lshl_b32 s5, s{S_C}, 19\ns_add_u32 s5, s5, {WS_WO}"); srd(k, SA, P['ws'], P['ws'] + 1, "s5", 4 * 131072)
    k(f"s_lshl_b32 s5, s{S_R}, 19\ns_add_u32 s5, s5, {WS_CTX}"); srd(k, SB, P['ws'], P['ws'] + 1, "s5", 4 * 131072)
    k(f"v_lshlrev_b32 v{V_AO}, 4, v0")
    for t in range(1, 4): k(f"v_add_u32 v{V_AO+t}, {t*131072}, v{V_AO}")
    k(f"""
    s_lshr_b32 s5, s{S_R}, 1
    s_sub_u32 s6, 15, s5
    s_min_u32 s5, s5, s6
    s_lshl_b32 s5, s5, 5
    s_lshl_b32 s6, s3, 1
    s_add_u32 s5, s5, s6
    s_lshl_b32 s5, s5, 7
    s_add_u32 s5, s5, {FOFF[3]}
    v_bfe_u32 v11, v0, 2, 1
    v_and_b32 v2, 3, v0
    v_lshl_add_u32 v11, v2, 3, v11
    v_lshlrev_b32 v11, 7, v11
    v_add_u32 v11, s5, v11
    s_lshl_b32 s5, s{S_R}, 2
    s_add_u32 s5, s5, s3
    s_lshl_b32 s5, s5, 14
    s_lshl_b32 s6, s{S_C}, 7
    s_add_u32 s6, s6, s5
    """)
    srd(k, SR, P['x'], P['x'] + 1, "s6", 15 * 1024 + 128)


def soff(b):
    return It(f"s_add_u32 s{S_T}, s{S_P0}, {b*2048}\ns_and_b32 s{S_T}, s{S_T}, 0x7fff\ns_add_u32 s{S_T}, s{S_T}, s{S_WB}", "s")


def a_reg(p, t):
    if p < NA_AG: return a((208 + 16 * p if p < 3 else 0) + 4 * t, 4)
    p -= NA_AG + NA_LDS
    if p < 0: return None
    if p < NA_VG: return v(128 + 16 * p + 4 * t, 4)
    p -= NA_VG
    if p < NA_AG2: return a(96 + 16 * p + 4 * t, 4)
    return "ring"


def a_loads(k, b):
    items = [soff(b)]
    for ks in range(2):
        for t in range(4):
            items.append(L(lambda ks=ks, t=t: k.vmop(
                f"buffer_load_dwordx4 {a_reg(2*b+ks, t)}, v{V_AO+t}, s[{SA}:{SA+3}], s{S_T} offen offset:{ks*1024}{SC1}", ("A", b)), "d"))
    return items


def early_items(k, s_wr, s_w4k):
    items = a_loads(k, 0) + a_loads(k, 1)
    items += [It(f"s_lshl_b32 s{S_L0}, s3, 13\ns_add_u32 s{S_L0}, s{S_L0}, 131072", "s"),
              It(f"s_add_u32 s{S_L1}, s{s_wr}, s{s_w4k}", "s"),
              It(f"s_sub_u32 s{S_L2}, s{S_L1}, 32768\ns_and_b32 s{S_L2}, s{S_L2}, 0x1ffff", "s")]
    for j, sl in enumerate((S_L0, S_L1, S_L2)):
        items.append(It(f"v_add_u32 v{V_LA+j}, s{sl}, v{V_AO}"))
        items += stage(k, 2 + j, sl)
    return items


def stage(k, b, sl):
    items = [soff(b)]
    for t in range(4):
        items.append(It(f"s_add_u32 m0, s{sl}, {t*2048}"))
        for ks in range(2):
            items.append(L(lambda ks=ks, t=t: k.vmop(
                f"buffer_load_dwordx4 v{V_AO+t}, s[{SA}:{SA+3}], s{S_T} offen offset:{ks*1024}{SC1} lds", ("A", b)), "d"))
    return items


def pre_items(k):
    b0 = (NA_AG + NA_LDS) // 2
    items = [x for b in range(b0, b0 + 2) for x in a_loads(k, b)]
    for j in range(3, NA_LDS // 2):
        items.append(It(f"s_add_u32 s{S_L0+1+j}, s{S_L1}, {(j-2)*32768}\ns_and_b32 s{S_L0+1+j}, s{S_L0+1+j}, 0x1ffff", "s"))
        items += stage(k, 2 + j, S_L0 + 1 + j)
    return items + [x for b in range(b0 + 2, b0 + 7) for x in a_loads(k, b)]


WEV = int(os.environ.get('WEV', '8'))


def o_phase(k, ts, st0, nxt, pre, weave):
    X = 56
    BL = 2 + NA_LDS // 2
    k(f"""
    v_lshrrev_b32 v12, 3, v0
    v_and_b32 v13, 7, v0
    v_lshlrev_b32 v13, 4, v13
    v_lshl_add_u32 v12, v12, 10, v13
    v_and_b32 v13, 15, v0
    v_lshlrev_b32 v13, 7, v13
    v_lshrrev_b32 v14, 4, v0
    v_lshl_add_u32 v13, v14, 3, v13
    v_add_u32 v15, s{S_L0}, v13
    """)
    xdma = [It(f"s_mov_b32 m0, s{S_L0}"), It(f"s_mov_b32 s4, 7168")]
    xdma += [L(lambda j=j: k.vmop(f"buffer_load_dwordx4 v12, s[{SR}:{SR+3}], {'s4' if j else '0'} offen offset:{1024*j} lds", "X"), "d") for j in range(2)]
    xrd = [L(lambda: k.vmwait("X"), "s")] + [L(lambda nt=nt: k.lgop(f"ds_read_b64 {v(X+2*nt,2)}, v15 offset:{32*nt}", "XR"), "r") for nt in range(4)]
    def between():
        run(k, pre)
        k(f"s_lshl_b32 s5, s{S_R}, 2\ns_add_u32 s5, s5, s3\ns_lshl_b32 s5, s5, 14")
        k(f"s_lshl_b32 s4, s{S_C}, 11\ns_add_u32 s4, s4, s5\ns_add_u32 s4, s4, {WS_H}"); srd(k, SO, P['ws'], P['ws'] + 1, "s4", 2048)
        k(f"s_lshr_b32 s5, s5, 4\ns_lshl_b32 s4, s{S_C}, 7\ns_add_u32 s4, s4, s5\ns_add_u32 s4, s4, {WS_ST}"); srd(k, SS, P['ws'], P['ws'] + 1, "s4", 128)
    stamp(k, 0, ts == "o")
    if LOOK: look_then_await(k, 11, 2, between)
    else: between(); await_flags(k, 11, 2)
    stamp(k, 1, ts == "o")
    stamp(k, st0, ts is True)

    free = [a(16 + 4 * q, 4) for q in range(20)] + [a(192 + 4 * q, 4) for q in range(4)]
    Bq, Aq = {}, {}
    todo = []
    for b in range(16):
        todo.append((b, "B"))
        if a_reg(2 * b, 0) == "ring": todo.append((b - ALEAD, "A", b))
    todo = [(x[-1] if x[1] == "A" else x[0], x[1]) for x in sorted(todo, key=lambda x: x[0])]

    todo = [(b, op, j) for b, op in todo for j in range(8)]

    def issue(n):
        items = []
        while todo and free and n > 0:
            b, op, j = todo.pop(0); n -= 1
            if j == 0 or not items: items.append(soff(b))
            r_ = free.pop(0)
            (Bq if op == "B" else Aq).setdefault(b, {})[j] = r_
            sr = SB if op == "B" else SA
            items.append(L(lambda r_=r_, sr=sr, j=j, op=op, b=b: k.vmop(
                f"buffer_load_dwordx4 {r_}, v{V_AO+j%4}, s[{sr}:{sr+3}], s{S_T} offen offset:{(j//4)*1024}{SC1}", (op, b)), "d"))
        return items

    def lds_reads(b):
        j = b - 2
        return [L(lambda ks=ks, t=t: k.lgop(
            f"ds_read_b128 {v(V_TMP + 4*((8*j + 2*t + ks) % 10), 4)}, v{V_LA+j%3} offset:{t*2048+ks*1024}", ("AL", b, t)), "r")
            for t in range(4) for ks in range(2)]
    tmpq = lambda b, ks, t: v(V_TMP + 4 * ((8 * (b - 2) + 2 * t + ks) % 10), 4)

    run(k, issue(NPRE))
    credit = 0.0
    for b in range(16):
        mf, streams, rd = [], [], []
        lds = 2 <= b < BL
        for nt in range(4):
            for rr in range(4):
                rb = rr if nt % 2 == 0 else 3 - rr
                for kk in range(2):
                    ks = kk if rr % 2 == 0 else 1 - kk
                    pre = [lambda: k.vmwait([("B", b), ("A", b)])] if not mf else []
                    if lds and rr == 0 and kk == 0: pre.append(lambda nt=nt: k.lgwait(("AL", b, nt)))
                    A = tmpq(b, ks, nt) if lds else Aq[b][4 * ks + nt] if b in Aq else a_reg(2 * b + ks, nt)
                    acc = v(V_ACC + 16 * rb + 4 * nt, 4)
                    mf.append((pre, mfma(acc, A, Bq[b][4 * ks + rb], "0" if b == 0 and kk == 0 else acc)))
        if 3 <= b < BL - 2: streams.append(window([It(f"v_add_u32 v{V_LA+b%3}, s{S_L0+1+b}, v{V_AO}")], 0, 4))
        if 2 <= b + 1 < BL:
            its = lds_reads(b + 1)
            if b == 1:
                rd = [L(lambda: k.vmwait(("A", 4)), "s")] + its
                streams.append(window(rd, 2, 24))
            else:
                streams.append(window([L(lambda: k.vmwait(("A", b + 1)), "s")], 0, 0))
                streams.append(window(its[:2], 1, 6) + [x for j_ in range(3) for x in window(its[2 + 2*j_:4 + 2*j_], 8 * j_ + 8, 8 * j_ + 14)])
        its = []
        credit += RATE
        nn = max(int(credit), sum(1 for x in todo if x[0] <= b + 1))
        its = issue(nn); credit -= int(credit)
        assert not any(x[0] <= b + 1 for x in todo)
        if b == 4: its = xdma + its
        streams.append(window(its, 0, 30))
        if b == 12: streams.append(window(xrd, 0, 12))
        if b == BL + 1:
            streams.append(window([It("s_barrier")] + reduce_addr(k, 256, 1024, 12), 4, 24))
        if b == 10: streams.append(window(nxt[0], 0, 31))
        if b == 13: streams.append(window(nxt[1], 8, 31))
        if b == 14: streams.append(window(nxt[2], 0, 31))
        if b == 15: streams.append(reduce_items(k, [(rr if nt % 2 == 0 else 3 - rr, nt) for nt in range(4) for rr in range(4)], 2, V_ACC, 1024, 12))
        pack(k, mf, streams)
        if ts == "o": stamp(k, 2 + b, True)
        free += list(Bq[b].values()) + list(Aq.get(b, {}).values())
        for p in (2 * b, 2 * b + 1):
            if a_reg(p, 0) not in (None, "ring") and b < 12: free += [a_reg(p, t) for t in range(4)]
    stamp(k, st0 + 1, ts is True)
    V_T = 128
    k(f"s_lshl_b32 s4, s3, 12\nv_add_u32 v13, s4, v{V_AO}\nv_lshlrev_b32 v14, 3, v0")
    k.lgdrain()
    k("s_barrier")
    for w in range(4):
        for nt in range(4):
            k.lgop(f"ds_read_b128 {v(V_T+16*w+4*nt,4)}, v13 offset:{w*16384+nt*1024}", ("rr", w))
    kk_, k = k, Weave(k, weave, WEV)
    kk_.lgwait(("rr", 1))
    for r in range(16): k(f"v_add_f32 v{V_T+r}, v{V_T+r}, v{V_T+16+r}")
    kk_.lgwait(("rr", 3))
    for r in range(16): k(f"v_add_f32 v{V_T+32+r}, v{V_T+32+r}, v{V_T+48+r}")
    for r in range(16): k(f"v_add_f32 v{V_T+r}, v{V_T+r}, v{V_T+32+r}")
    H, U = 224, V_T + 16
    for j in range(8):
        k(f"""
        v_cvt_pk_bf16_f32 v{H+j}, v{V_T+2*j}, v{V_T+2*j+1}
        v_lshlrev_b32 v{U+2*j}, 16, v{X+j}
        v_and_b32 v{U+2*j+1}, 0xffff0000, v{X+j}
        v_lshlrev_b32 v{V_T+2*j}, 16, v{H+j}
        v_and_b32 v{V_T+2*j+1}, 0xffff0000, v{H+j}
        v_add_f32 v{U+2*j}, v{U+2*j}, v{V_T+2*j}
        v_add_f32 v{U+2*j+1}, v{U+2*j+1}, v{V_T+2*j+1}
        v_cvt_pk_bf16_f32 v{H+j}, v{U+2*j}, v{U+2*j+1}
        """)
    for j in range(2):
        kk_.vmop(f"buffer_store_dwordx4 {v(H+4*j,4)}, v{V_AO}, s[{SO}:{SO+3}], 0 offen offset:{1024*j}{SC1}", "st")
    for j in range(8):
        k(f"v_lshlrev_b32 v{U+2*j}, 16, v{H+j}\nv_and_b32 v{U+2*j+1}, 0xffff0000, v{H+j}")
    k(f"v_add_f32 v32, v{U}, v{U+1}")
    for j in range(2, 16): k(f"v_add_f32 v32, v32, v{U+j}")
    xlane_sum(k, 32, 3, ["p16", "p32"])
    k(f"v_mul_f32 v32, 0x3c800000, v32\nv_sub_f32 v3, v{U}, v32\nv_mul_f32 v33, v3, v3")
    for j in range(1, 16): k(f"v_sub_f32 v3, v{U+j}, v32\nv_fmac_f32 v33, v3, v3")
    xlane_sum(k, 33, 3, ["p16", "p32"])
    kk_.vmop(f"buffer_store_dwordx2 v[32:33], v14, s[{SS}:{SS+3}], 0 offen{SC1}", "st")
    return k.rest()
```

```python
from emit import *
from k1 import seq, SC1
from k3 import LOOK
import os
WV = int(os.environ.get('WV', '0'))
NPRE = int(os.environ.get('GPRE', '4'))

V_L16, V_WVO, V_HO, V_RA = 2, 28, 7, 9
V_CSP = 36
V_MB, V_RS, V_S2, V_NL = 12, 14, 16, 18
V_WF, V_ACC, V_T = 32, 64, 160
SW, SH, SST, SCS, SO = 12, 8, 20, 16, 24
S_RB, S_PS, S_SO, S_LW, S_CG = 70, 71, 72, 73, 74
SLOT, NSL, CSL = 24576, 6, 149504
slot = lambda s_: (s_ + 3) % NSL


def wdma(k, s_):
    items = [It(f"s_add_u32 m0, s{S_LW}, {slot(s_)*SLOT}"), It(f"s_mov_b32 s{S_SO}, {s_*2048}")]
    for tt in range(3):
        if tt == 2: items.append(It(f"s_add_u32 m0, s{S_LW}, {slot(s_)*SLOT + 4096}"))
        for kk in range(2):
            items.append(It(lambda tt=tt, kk=kk: k.vmop(
                f"buffer_load_dwordx4 v{V_WVO+tt}, s[{SW}:{SW+3}], s{S_SO} offen offset:{(tt % 2)*2048 + kk*1024}{SC1} lds", ("W", s_)), "d"))
    return items


def early(k):
    class Rec:
        def __init__(s): s.items = []
        def __call__(s, t): s.items.append(It(t.strip(), "s" if t.strip().startswith("s_") else "v"))
    R = Rec()
    for l_ in f"""
    s_and_b32 s{S_RB}, s2, 3
    s_lshl_b32 s{S_RB}, s{S_RB}, 2
    s_bfe_u32 s5, s2, 0x20003
    s_add_u32 s{S_RB}, s{S_RB}, s5
    s_lshl_b32 s{S_RB}, s{S_RB}, 3
    s_lshl_b32 s5, s3, 1
    s_add_u32 s{S_RB}, s{S_RB}, s5
    s_lshr_b32 s{S_CG}, s2, 5
    s_and_b32 s5, s2, 4
    s_lshl_b32 s5, s5, 1
    s_add_u32 s{S_CG}, s{S_CG}, s5
    s_mul_i32 s6, s{S_CG}, 3
    s_lshl_b32 s5, s{S_CG}, 1
    s_add_u32 s5, s5, 11
    s_min_u32 s{S_PS}, s6, s5
    s_mul_i32 s{S_LW}, s3, {3*2048}
    s_mul_i32 s5, s3, {3*16384}
    v_lshlrev_b32 v{V_WVO}, 4, v0
    v_add_u32 v{V_WVO}, s5, v{V_WVO}
    v_add_u32 v{V_WVO+1}, {16384-2048}, v{V_WVO}
    v_add_u32 v{V_WVO+2}, {2*16384}, v{V_WVO}
    s_lshl_b32 s5, s3, 6
    v_add_u32 v53, s5, v0
    v_bfe_u32 v52, v53, 4, 1
    v_mul_u32_u24 v52, {16*5632}, v52
    v_lshrrev_b32 v54, 5, v53
    v_lshlrev_b32 v54, 6, v54
    v_add_u32 v52, v52, v54
    v_and_b32 v54, 15, v0
    v_lshl_add_u32 v52, v54, 2, v52
    v_lshlrev_b32 v53, 2, v53
    v_add_u32 v53, {CSL}, v53
    """.strip().split("\n"): R(l_)
    R(f"s_cmp_ge_u32 s{S_CG}, 11\ns_cselect_b32 s6, 8, 12\ns_lshl_b32 s6, s6, 14\ns_lshl_b32 s5, s{S_PS}, 16\ns_add_u32 s5, s5, {WS_W13}")
    srd(R, SW, P['ws'], P['ws'] + 1, "s5", "s6")
    R(f"s_lshl_b32 s5, s{S_PS}, 7\ns_sub_u32 s6, {32*5632}, s5\ns_add_u32 s5, s5, {WS_CS}")
    srd(R, SCS, P['ws'], P['ws'] + 1, "s5", "s6")
    loads = [It("s_mov_b32 s5, 0")]
    for ks in range(16):
        loads.append(It(lambda ks=ks: k.vmop(f"buffer_load_dword v{V_CSP+ks}, v52, s[{SCS}:{SCS+3}], s5 offen{SC1}", "CS"), "d"))
        if ks < 15: loads.append(It("s_add_u32 s5, s5, 5632"))
    return R.items, loads, wdma(k, 0) + wdma(k, 1)


def body(k, np_, ts, st0, extra, csl):
    nt = 4 * np_

    def hload(s_):
        items = [It(f"s_mov_b32 s5, {s_*2048}")]
        for rb in range(2):
            for kk in range(2):
                items.append(It(lambda rb=rb, kk=kk: k.vmop(
                    f"buffer_load_dwordx4 {a(16*s_+8*rb+4*kk,4)}, v{V_HO+rb}, s[{SH}:{SH+3}], s5 offen offset:{kk*1024}{SC1}", ("H", s_)), "d"))
        return items
    run = lambda items: seq(k, [it.x for it in items])()
    def between():
        run(csl)
        for s_ in range(3 if WV else 2, NPRE): run(wdma(k, s_))
        k(f"v_and_b32 v20, 15, v0\nv_lshlrev_b32 v20, 3, v20\nv_lshrrev_b32 v3, 4, v0\nv_lshl_add_u32 v20, v3, 8, v20")
        k(f"v_lshlrev_b32 v21, 4, v3\nv_add_u32 v21, {CSL}, v21")
        k(f"v_add_u32 v{V_RA+1}, {2*SLOT}, v{V_L16}\nv_add_u32 v{V_RA+2}, {4*SLOT}, v{V_L16}")
    between()
    k.vmwait("CS")
    for ks in range(1, 16): k(f"v_add_f32 v{V_CSP}, v{V_CSP}, v{V_CSP+ks}")
    k.lgop(f"ds_write_b32 v53, v{V_CSP}", "csw")
    k.lgdrain()
    await_flags(k, 22, 23)
    stamp(k, st0, ts)
    run(hload(0))
    for rb in range(2):
        for c in range(2):
            k.vmop(f"buffer_load_dwordx2 {v(V_T+4*rb+2*c,2)}, v20, s[{SST}:{SST+3}], 0 offen offset:{1024*rb+128*c}{SC1}", "ST")
    for s_ in range(1, 3): run(hload(s_))
    k("s_barrier")

    class Rec:
        def __init__(s): s.items = []
        def __call__(s, t):
            s.items += [It(l_.strip()) for l_ in t.strip().split("\n") if not l_.strip().startswith("s_nop")]
    R = Rec()
    for rb in range(2):
        T = V_T + 4 * rb
        m, q = V_MB + rb, V_RS + rb
        R(f"v_add_f32 v{m}, v{T}, v{T+2}")
        xlane_sum(R, m, 3, ["p16", "p32"])
        R(f"""
        v_mul_f32 v{m}, 0x3e000000, v{m}
        v_sub_f32 v{T}, v{T}, v{m}
        v_sub_f32 v{T+2}, v{T+2}, v{m}
        v_mul_f32 v{T}, v{T}, v{T}
        v_fmac_f32 v{T}, v{T+2}, v{T+2}
        v_add_f32 v{q}, v{T+1}, v{T+3}
        v_fmac_f32 v{q}, 0x42800000, v{T}
        """)
        xlane_sum(R, q, 3, ["p16", "p32"])
        R(f"""
        v_mul_f32 v{q}, 0x3b000000, v{q}
        v_cvt_pk_bf16_f32 v{m}, v{m}, v{q}
        v_and_b32 v{q}, 0xffff0000, v{m}
        v_lshlrev_b32 v{m}, 16, v{m}
        v_xor_b32 v{m}, 0x80000000, v{m}
        v_add_f32 v{q}, 0x3727c5ac, v{q}
        v_cvt_pk_bf16_f32 v{q}, v{q}, v{q}
        v_lshlrev_b32 v{q}, 16, v{q}
        v_sqrt_f32 v{q}, v{q}
        v_cvt_pk_bf16_f32 v{q}, v{q}, v{q}
        v_lshlrev_b32 v{q}, 16, v{q}
        v_mul_f32 v{V_S2+rb}, v{q}, v{q}
        v_rcp_f32 v{q}, v{q}
        v_mul_f32 v{V_NL+rb}, 0xbfb8aa3b, v{q}
        """)
    stats = [It(lambda: k.vmwait("ST"), "s")] + R.items
    CS = V_T + 16
    csrd = [It(lambda t=t: k.lgop(f"ds_read_b128 {v(CS+4*t,4)}, v21 offset:{64*t}", ("cs", t)), "r") for t in range(nt)]

    def wreads(s_, t, fs=None):
        fs = t % 4 if fs is None else fs
        return [It(lambda kk=kk: k.lgop(
            f"ds_read_b128 {v(V_WF+8*fs+4*kk,4)}, v{V_RA + slot(s_)//2} offset:{(slot(s_) % 2)*SLOT + t*2048 + kk*1024}", ("F", s_, t)), "r") for kk in range(2)]
    for t in range(3): run(wreads(0, t))
    acc = lambda t, rb: V_ACC + 8 * t + 4 * rb
    stamp(k, st0 + 1, ts)
    for s_ in range(6):
        mf, rd = [], []
        for t in range(nt):
            for rr in range(2):
                rb = rr if t % 2 == 0 else 1 - rr
                for q_, kk in enumerate((0, 1) if rr == 0 else (1, 0)):
                    pre = []
                    if len(mf) == 0: pre.append(lambda: k.vmwait(("H", s_)))
                    if rr == 0 and kk == 0: pre.append(lambda t=t: k.lgwait(("F", s_, t)))
                    mf.append((pre, mfma(v(acc(t, rb), 4), v(V_WF + 8 * (t % 4) + 4 * kk, 4), a(16 * s_ + 8 * rb + 4 * kk, 4),
                                         "0" if s_ == 0 and q_ == 0 else v(acc(t, rb), 4))))
            t3 = t + 3
            if t3 < nt: its = wreads(s_, t3)
            elif s_ < 5: its = wreads(s_ + 1, t3 - nt)
            else: its = wreads(6 + t3 - nt, 0, t3 - nt) if t3 - nt < 2 else []
            rd += window(its, 4 * t, 4 * t + 3)
        streams = [rd]
        bpos = 4 * (nt - 3) - 1
        if s_ in (1, 2, 5) or s_ + 1 >= NPRE:
            streams.append(window([It(lambda: (k.vmwait([("W", 6), ("W", 7)] if s_ == 5 else [("W", s_ + 1)]), k("s_barrier")), "s")], bpos, bpos))
        wl = window(wdma(k, NPRE + s_), 1, bpos - 1) if NPRE + s_ < 6 else []
        if s_ in (1, 2): wl += window(wdma(k, s_ + 5), bpos + 1, len(mf) - 1)
        streams.append(wl)
        n_ = len(mf)
        if s_ < 3: streams.append(window(hload(3 + 2 * s_) + (hload(4 + 2 * s_) if s_ < 2 else []), 1, bpos - 1))
        if s_ == 1: streams.append(window(stats[:len(stats) // 2], 0, n_ - 1))
        if s_ == 2: streams.append(window(stats[len(stats) // 2:], 0, n_ - 1))
        if s_ == 3: streams.append(window(csrd, 0, n_ - 1))
        if s_ in (4, 5):
            fx = []
            for t in range(nt // 2 * (s_ - 4), nt // 2 * (s_ - 3)):
                its = [It(lambda t=t: k.lgwait(("cs", t)), "s")]
                its += [It(f"v_fmac_f32 v{acc(t, rb)+r}, v{CS+4*t+r}, v{V_MB+rb}") for rb in range(2) for r in range(4)]
                lo = 4 * t + 8 + 2 * (t - nt // 2 * (s_ - 4)) if s_ == 4 else 4 * (t - nt // 2)
                fx += window(its, lo, lo + 5 if s_ == 4 else lo + 3)
            streams.append(fx)
        if extra and s_ in extra: streams.append(window(extra[s_](), 2, n_ - 4))
        pack(k, mf, streams)
    def swiglu(pp):
        its = []
        for rb in range(2):
            T = V_T + 16 * rb
            el = [(acc(4 * pp + 2 * f, rb) + r, acc(4 * pp + 2 * f + 1, rb) + r) for f in range(2) for r in range(4)]
            its += [It(f"v_mul_f32 v{T+j}, v{g}, v{V_NL+rb}") for j, (g, u) in enumerate(el)]
            for j, (g, u) in enumerate(el): its += [It(f"v_exp_f32 v{T+j}, v{T+j}"), It(f"v_mul_f32 v{g}, v{g}, v{u}")]
            its += [It(f"v_fma_f32 v{T+j}, v{T+j}, v{V_S2+rb}, v{V_S2+rb}") for j in range(8)]
            its += [It(f"v_rcp_f32 v{T+j}, v{T+j}") for j in range(8)]
            its += [It(f"v_mul_f32 v{g}, v{g}, v{T+j}") for j, (g, u) in enumerate(el)]
            its += [It(f"v_cvt_pk_bf16_f32 v{T+8+j}, v{el[2*j][0]}, v{el[2*j+1][0]}") for j in range(4)]
            its.append(It(lambda T=T, rb=rb: k.vmop(
                f"buffer_store_dwordx4 {v(T+8,4)}, v{V_L16}, s[{SO}:{SO+3}], {'s5' if rb else '0'} offen offset:{pp*1024}{SC1}", "st"), "d"))
        return its
    k(f"s_mov_b32 s5, {43*1024}")
    for pp in range(np_):
        mf, rd = [], []
        for t in range(4 * pp, 4 * pp + 4):
            seq_ = [(6, 0), (6, 1), (7, 0), (7, 1)]
            for rr in range(2):
                rb = rr if t % 2 == 0 else 1 - rr
                for q_, (s_, kk) in enumerate(seq_ if rr == 0 else seq_[::-1]):
                    pre = [lambda t=t, s_=s_: k.lgwait(("F", s_, t))] if rr == 0 and kk == 0 else []
                    if t == 0 and rr == 0 and kk == 0: pre.append(lambda s_=s_: k.vmwait(("H", s_)))
                    mf.append((pre, mfma(v(acc(t, rb), 4), v(V_WF + 8 * (2 * (t % 2) + s_ - 6) + 4 * kk, 4), a(16 * s_ + 8 * rb + 4 * kk, 4), v(acc(t, rb), 4))))
            if t + 1 < nt:
                o = 8 * (t % 4)
                rd += window(wreads(6, t + 1, 2 * ((t + 1) % 2)) + wreads(7, t + 1, 2 * ((t + 1) % 2) + 1), o, o + 4)
        streams = [rd]
        if pp: streams.append(window(swiglu(pp - 1), 4, 31))
        if extra and 6 + pp in extra: streams.append(window(extra[6 + pp](), 2, 28))
        pack(k, mf, streams)
    stamp(k, st0 + 2, ts)
    wv = Weave(k, extra["epi"](), 14)
    for it in swiglu(np_ - 1): it.x() if callable(it.x) else wv(it.x)
    run(wv.rest())


def g_phase(k, ts, st0, extra, csl):
    k(f"""
    v_lshlrev_b32 v{V_L16}, 4, v0
    v_mov_b32 v{V_HO}, v{V_L16}
    v_add_u32 v{V_HO+1}, 16384, v{V_L16}
    v_mov_b32 v{V_RA}, v{V_L16}
    s_lshr_b32 s5, s{S_RB}, 2
    s_lshr_b32 s4, s5, 2
    s_and_b32 s5, s5, 3
    s_lshl_b32 s5, s5, 3
    s_add_u32 s4, s4, s5
    s_lshl_b32 s4, s4, 7
    s_add_u32 s4, s4, {FOFF[4]}
    v_and_b32 v22, 7, v0
    v_lshlrev_b32 v22, 12, v22
    v_add_u32 v22, s4, v22
    """)
    k(f"s_lshl_b32 s4, s{S_RB}, 14\ns_add_u32 s4, s4, {WS_H}"); srd(k, SH, P['ws'], P['ws'] + 1, "s4", 32768)
    k(f"s_lshl_b32 s4, s{S_RB}, 10\ns_add_u32 s4, s4, {WS_ST}"); srd(k, SST, P['ws'], P['ws'] + 1, "s4", 2048)
    k(f"s_mul_i32 s4, s{S_RB}, {43*1024}\ns_lshl_b32 s5, s{S_PS}, 10\ns_add_u32 s4, s4, s5\ns_add_u32 s4, s4, {WS_HH}")
    srd(k, SO, P['ws'], P['ws'] + 1, "s4", 43 * 1024 + 3072)
    vm0 = list(k.vm)
    two, join = k.label("two"), k.label("gj")
    k(f"s_cmp_ge_u32 s{S_CG}, 11\ns_cbranch_scc1 {two}")
    for np_ in (3, 2):
        k.vm, k.lg = list(vm0), []
        body(k, np_, ts, st0, extra, csl())
        k(f"s_branch {join}\n{two}:" if np_ == 3 else f"{join}:")
```

```python
from emit import *
from k1 import run, L, SC1
from k3 import S_R, S_C, LOOK
import k35

SA, SB, SR, SO = 32, 28, 80, 84
import os
ROT = int(os.environ.get('DROT', '1'))
S_KO, S_KA, S_T, S_ROT = 42, 43, 44, 45
V_AO, V_ACC, V_T, X = 24, 128, 192, 16
NK = 43
a_reg = lambda p, t: a(128 + 16 * p + 4 * t, 4) if p < 8 else a(16 * (p - 8) + 4 * t, 4)
b_reg = lambda p, t: v(32 + 16 * p + 4 * t, 4) if p < 6 else a(48 + 16 * (p - 6) + 4 * t, 4)


def setup(k):
    k(f"s_mul_i32 s4, s{S_C}, {4*NK*1024}\ns_add_u32 s4, s4, {WS_W2}"); srd(k, SA, P['ws'], P['ws'] + 1, "s4", 4 * NK * 1024)
    k(f"s_mul_i32 s4, s{S_R}, {4*NK*1024}\ns_add_u32 s4, s4, {WS_HH}"); srd(k, SB, P['ws'], P['ws'] + 1, "s4", 4 * NK * 1024)
    k(f"s_lshl_b32 s5, s{S_R}, 2\ns_add_u32 s5, s5, s3\ns_lshl_b32 s5, s5, 14\ns_lshl_b32 s4, s{S_C}, 7\ns_add_u32 s4, s4, s5")
    srd(k, SO, P['out'], P['out'] + 1, "s4", 15 * 1024 + 128)
    k(f"s_mul_i32 s{S_KO}, s3, {11*1024}\ns_add_u32 s{S_KA}, s{S_KO}, 8192\ns_cmp_eq_u32 s3, 3\ns_cselect_b32 s{S_KA}, 0x7000000, s{S_KA}")
    k(f"v_lshlrev_b32 v{V_AO}, 4, v0")
    for t in range(1, 4): k(f"v_add_u32 v{V_AO+t}, {t*NK*1024}, v{V_AO}")


def loads(k, op, ps):
    items = []
    for p in ps:
        if p % 4 == 0 or p == ps[0]: items.append(It(f"s_add_u32 s{S_T}, s{S_KO}, {(p // 4)*4096}"))
        so = S_KA if (op == "A" and p == 10) else S_T
        for t in range(4):
            reg, sr = (a_reg(p, t), SA) if op == "A" else (b_reg(p, t), SB)
            items.append(L(lambda reg=reg, sr=sr, so=so, p=p, t=t: k.vmop(
                f"buffer_load_dwordx4 {reg}, v{V_AO+t}, s[{sr}:{sr+3}], s{so} offen offset:{(p % 4)*1024}{SC1}", (op, p)), "d"))
    return items


GX = {"0": {2: [0, 1], 3: [2, 3], 4: [4, 5], 5: [6, 7]}, "1": {6: [0, 1], 7: [2, 3]}, "2": {5: [0, 1], 6: [2, 3], 7: [4, 5]}, "3": {}}[os.environ.get("GX", "1")]
NEP = 2 * int(os.environ.get('WV', '0'))
REST = [p for p in range(11) if not any(p in x for x in GX.values())]


def g_extra(k):
    d = {s_: (lambda ps=ps: loads(k, "A", ps)) for s_, ps in GX.items()}
    d["epi"] = lambda: loads(k, "A", REST[:NEP]) if NEP else []
    return d


def d_phase(k, ts, st0, pre):
    GS, TS = 320, 1344
    k(f"""
    v_lshrrev_b32 v12, 2, v0
    v_and_b32 v13, 1, v0
    v_bfe_u32 v14, v0, 1, 1
    v_lshlrev_b32 v15, 4, v12
    v_mul_u32_u24 v13, {2*GS}, v13
    v_mul_u32_u24 v14, {TS}, v14
    v_add3_u32 v15, v15, v13, v14
    s_mul_i32 s4, s3, {4*TS}
    v_add_u32 v15, s4, v15
    v_and_b32 v13, 3, v0
    v_lshlrev_b32 v13, 4, v13
    v_lshl_add_u32 v14, v12, 10, v13
    s_lshr_b32 s4, s{S_R}, 3
    s_bfe_u32 s5, s{S_R}, 0x20001
    s_lshl_b32 s5, s5, 3
    s_add_u32 s4, s4, s5
    s_lshl_b32 s4, s4, 7
    s_add_u32 s4, s4, {FOFF[5]}
    v_and_b32 v12, 7, v0
    v_lshlrev_b32 v12, 12, v12
    v_and_b32 v13, 8, v0
    v_lshl_add_u32 v12, v13, 6, v12
    v_add_u32 v12, s4, v12
    """)
    def between():
        run(k, pre)
        run(k, k35.reduce_addr(k, GS, TS, 11))
        k(f"s_mul_i32 s4, s3, {12*TS}\ns_sub_u32 s4, {64*TS}, s4\nv_add_u32 v10, s4, v11")
        for nt in range(4):
            for j in range(2): k(f"v_lshlrev_b32 v{X+4*(nt%2)+2*j}, 16, v{224+2*nt+j}\nv_and_b32 v{X+4*(nt%2)+2*j+1}, 0xffff0000, v{224+2*nt+j}")
            k.lgop(f"ds_write_b128 v10, {v(X+4*(nt%2),4)} offset:{nt*TS}", "hw")
            if nt % 2: k.lgdrain()
    if LOOK: look_then_await(k, 12, 13, between)
    else: between(); await_flags(k, 12, 13)
    stamp(k, st0, ts)
    DP = int(os.environ.get("DP", "3"))
    run(k, loads(k, "B", list(range(DP))))
    later = list(range(DP, 11))
    batches = [[0], [1, 2], [3, 4], [5, 6], [7, 8], [9, 10]]
    for b, ps in enumerate(batches):
        mf = []
        for nt in range(4):
            for rr in range(4):
                rb = rr if nt % 2 == 0 else 3 - rr
                for j, p in enumerate(ps if rr % 2 == 0 else ps[::-1]):
                    pre = [lambda: k.vmwait([(o_, x) for x in ps for o_ in "AB"])] if not mf else []
                    acc = v(V_ACC + 16 * rb + 4 * nt, 4)
                    mf.append((pre, mfma(acc, a_reg(p, nt), b_reg(p, rb), "0" if b == 0 and j == 0 else acc)))
        take, later = later[:(1 if b == 0 else 2) + (1 if DP < 4 and b == 1 else 0)], later[(1 if b == 0 else 2) + (1 if DP < 4 and b == 1 else 0):]
        streams = [window(loads(k, "B", take), 0, len(mf) - 2)] if take else []
        if b == 0: streams.append(window([It(f"v_add_u32 v13, {32*TS}, v15"), It(f"v_add_u32 v12, {64*TS}, v15")], 0, 10))
        if b == len(batches) - 1:
            streams.append(k35.reduce_items(k, [(rr if nt % 2 == 0 else 3 - rr, nt) for nt in range(4) for rr in range(4)], len(ps), V_ACC, TS, 11))
        pack(k, mf, streams)
    stamp(k, st0 + 1, ts)
    k.lgdrain()
    k("s_barrier")
    for w in range(4):
        for hh in range(2):
            for gg in range(2):
                k.lgop(f"ds_read_b128 {v(V_T+16*w+8*hh+4*gg,4)}, v{15 if w < 2 else 13} offset:{(w % 2)*16*TS+2*hh*TS+gg*GS}", ("rr", w))
    for hh in range(2):
        for gg in range(2):
            k.lgop(f"ds_read_b128 {v(64+8*hh+4*gg,4)}, v12 offset:{2*hh*TS+gg*GS}", "hr")
    k.lgwait(("rr", 1))
    for r in range(16): k(f"v_add_f32 v{V_T+r}, v{V_T+r}, v{V_T+16+r}")
    k.lgwait(("rr", 3))
    for r in range(16): k(f"v_add_f32 v{V_T+32+r}, v{V_T+32+r}, v{V_T+48+r}")
    for r in range(16): k(f"v_add_f32 v{V_T+r}, v{V_T+r}, v{V_T+32+r}")
    k.lgwait("hr")
    H, U = 32, 64
    for j in range(8):
        k(f"""
        v_cvt_pk_bf16_f32 v{H+j}, v{V_T+2*j}, v{V_T+2*j+1}
        v_lshlrev_b32 v{V_T+2*j}, 16, v{H+j}
        v_and_b32 v{V_T+2*j+1}, 0xffff0000, v{H+j}
        v_add_f32 v{U+2*j}, v{U+2*j}, v{V_T+2*j}
        v_add_f32 v{U+2*j+1}, v{U+2*j+1}, v{V_T+2*j+1}
        v_cvt_pk_bf16_f32 v{H+j}, v{U+2*j}, v{U+2*j+1}
        """)
        if j % 4 == 3:
            k.vmop(f"buffer_store_dwordx4 {v(H+j-3,4)}, v14, s[{SO}:{SO+3}], 0 offen offset:{64*(j//4)}", "st")
```

```python
import re, sys
from hazard import I

def parse(text):
    ins, labels = [], {}
    for no, raw in enumerate(text.split("\n"), 1):
        ln = raw.split(";")[0].strip()
        if not ln or ln.startswith("."): continue
        if ln.endswith(":"): labels[ln[:-1]] = len(ins); continue
        if re.match(r"^(v_|s_|ds_|buffer_|global_)", ln): ins.append(I(ln, no))
    return ins, labels

def walk(ins, labels, decide, start=0):
    vm, lg, errs, stack = [], [], set(), []
    visits = {}
    pc = start; steps = 0
    while steps < 400000:
        steps += 1
        x = ins[pc]
        vr = lambda s: {r for r in s if r[0] in "va"}
        touch = vr(x.r | x.w)
        if x.cls in ("vmem", "ds"): touch = vr(x.r)
        for q in (vm, lg):
            for d, p in q:
                if d & touch: errs.add((p.no, p.line, x.no, x.line))
        if x.cls == "vmem":
            for d, p in lg:
                if d & vr(x.w): errs.add((p.no, p.line, x.no, x.line))
            vm.append((vr(x.w), x))
        if x.cls == "ds":
            for d, p in vm:
                if d & vr(x.w): errs.add((p.no, p.line, x.no, x.line))
            lg.append((vr(x.w), x))
        if x.mn == "s_waitcnt":
            m = re.search(r"vmcnt\((\d+)\)", x.line)
            if m: n = int(m.group(1)); vm[:] = vm[len(vm) - n:] if n and len(vm) > n else (vm if n else [])
            m = re.search(r"lgkmcnt\((\d+)\)", x.line)
            if m: n = int(m.group(1)); lg[:] = lg[len(lg) - n:] if n and len(lg) > n else (lg if n else [])
        if len(vm) > 63: vm[:] = vm[-63:]
        if x.mn == "s_endpgm": break
        if x.mn == "s_branch": pc = labels[x.ops[-1]]; continue
        if x.mn == "s_call_b64": stack.append(pc + 1); pc = labels[x.ops[-1]]; continue
        if x.mn == "s_setpc_b64": pc = stack.pop(); continue
        if x.mn.startswith("s_cbranch"):
            visits[pc] = visits.get(pc, 0) + 1
            if decide(pc, x.ops[-1], visits[pc]): pc = labels[x.ops[-1]]; continue
        pc += 1
    return errs

def check(text):
    ins, labels = parse(text)
    errs = set()
    for w in range(4):
        for i0 in (0, 1):
            for two in (0, 1):
                ev = [0]; bars = [0]
                def decide(pc, lab, n):
                    t = re.sub(r"^L_.*?_kernel_", "", lab)
                    if t.endswith("_go") or lab.endswith("_go"): return True
                    m = re.match(r"w(\d)_", t)
                    if m: return int(m.group(1)) <= w
                    if t.startswith("gen_"): return not i0
                    if t.startswith("lp_"): return n % 6 != 0
                    if t.startswith("two_"): return two
                    if t.startswith("pub_") or t.startswith("j0_"): return w != 0
                    if t.startswith("fo_"):
                        bars[0] += 1
                        if bars[0] in (3, 7, 10, 13): ev[0] += 1; return True
                        return False
                    m = re.match(r"e(\d)_", t)
                    if m: return ev[0] >= int(m.group(1))
                    if t.startswith(("er_", "ok_", "j2w2")): return True
                    if t.startswith(("ogo_", "lgo_")): return two
                    return False
                errs |= walk(ins, labels, decide)
    return sorted(errs)

if __name__ == "__main__":
    e = check(open(sys.argv[1]).read())
    for x in e[:30]: print("RACE L%d %s  vs  L%d %s" % x)
    print(len(e), "races")
```

```python
import sys, os, hazard, racecheck
from emit import *
import k1, k2, k3, k35, k4, k5, jobs
from k1 import run, L

NAME = "sequential_preLN__compressed_kv_cla__glu_gated_swiglu__prompt_kernel"
NSTAMP = 24
EG = int(os.environ.get('EG', '1'))
PUB2 = k1.CFG['pub2']


def poll_pair(k, vaddr, vt, stubs, wide):
    out, back = k.label("po"), k.label("pb")
    stubs.append((out, back, vaddr, vt, wide))
    tag = ("PL", out)
    if wide: issue = [L(lambda x=x: k.vmop(x, tag), "d") for x in wide_poll(vaddr, vt).split("\n")]
    else: issue = [L(lambda: k.vmop(f"buffer_load_dword v{vt}, v{vaddr}, s[{S_FL}:{S_FL+3}], 0 offen sc1", tag), "d")]
    chk = [L(lambda: k.vmwait(tag), "s")]
    if wide:
        chk += [It(f"v_xor_b32 v{vt+j}, s{S_TAG}, v{vt+j}") for j in range(4)]
        chk += [It(f"v_or3_b32 v{vt}, v{vt}, v{vt+1}, v{vt+2}"), It(f"v_or_b32 v{vt}, v{vt}, v{vt+3}")]
        chk += [It(f"v_cmp_ne_u32 vcc, 0, v{vt}\ns_nop 0\ns_cbranch_vccnz {out}\n{back}:")]
    else:
        chk += [It(f"v_cmp_ne_u32 vcc, s{S_TAG}, v{vt}"), It("s_nop 0"), It(f"s_cbranch_vccnz {out}\n{back}:")]
    return issue, chk


def build(ts=False, name=NAME, steps_ts=False, light=False):
    k = K(name, 256, 256, 163840, vgpr=256, agpr=256)
    load_args(k, warm=int(os.environ.get('W0', '64')))
    stamp(k, 0, ts or light)
    stubs = []
    k.beam = 'p' in os.environ.get('BEAM', '')
    steps, extra, epi_kv = k1.kv_phase(k, ts)
    A = k2.Att(k)
    qsteps, qsetup, xn_items, k0_dma, pair_dma, epi_q = k2.q_phase(k, A, 16)
    steps += qsteps
    f1 = f"""
    s_lshl_b32 s67, s71, 4
    v_mov_b32 v16, s67
    s_sub_u32 s67, 240, s67
    v_mov_b32 v17, s67
    v_and_b32 v18, 16, v0
    v_cmp_eq_u32 vcc, 0, v18
    v_cndmask_b32 v16, v17, v16, vcc
    v_and_b32 v18, 15, v0
    v_add_u32 v18, v16, v18
    v_lshlrev_b32 v18, 7, v18
    s_and_b32 s67, s2, 31
    s_lshl_b32 s67, s67, 7
    s_add_u32 s67, s67, {FOFF[2]}
    v_and_b32 v19, 7, v0
    v_lshlrev_b32 v19, 12, v19
    v_add_u32 v19, s67, v19
    s_bfe_u32 s6, s2, 0x20003
    s_sub_u32 s7, 7, s6
    s_bitcmp1_b32 s3, 0\ns_cselect_b32 s6, s7, s6
    s_lshl_b32 s7, s71, 3
    s_sub_u32 s67, 120, s7
    s_bitcmp1_b32 s3, 1\ns_cselect_b32 s7, s67, s7
    s_add_u32 s6, s6, s7
    s_lshl_b32 s6, s6, 14
    v_lshlrev_b32 v17, 6, v0
    v_add_u32 v17, s6, v17""".replace("\ns_cselect", " @s_cselect")
    fsetup = [It(l_.strip().replace(" @", "\n")) for l_ in f1.strip().split("\n")]
    warm = [L(lambda j_=j_: k.vmop(f"buffer_load_dword v16, v17, s[{k2.SXN}:{k2.SXN+3}], {'0' if j_ == 0 else 's%d' % (63+j_)} offen sc1", "warm"), "d") for j_ in range(4)]
    p1, c1 = poll_pair(k, 18, 16, stubs, False)
    p2, c2 = poll_pair(k, 19, 16, stubs, False)
    extra[6].append((4, 63, fsetup))
    extra[7] = [(0, 63, qsetup)]
    extra[9] = [(0, 0, p1, "mem"), (44, 62, c1)]
    if os.environ.get("WARM"):
        for j_ in range(4): extra.setdefault(9 + j_ // 2, []).append((10 + 24 * (j_ % 2), 10 + 24 * (j_ % 2), [warm[j_]], "mem"))
    for st_, gs in k1.CFG["xn"].items():
        its = []
        for g_ in gs: its += xn_items(g_ // 4, (g_ % 4,))
        if not os.environ.get("NOXN"): extra.setdefault(st_, []).append((4, 46 if st_ <= 16 else 60, its, "mem"))
    extra[21] = [(4, 4, [L(lambda: jobs.setup(k), "s")])]
    if k1.CFG["poll"] == 21:
        extra[21] += [(44, 44, p2, "mem")]
        extra[22] = [(24, 30, c2, "mem"), (31, 62, k0_dma() + pair_dma(0), "mem")]
        extra[23] = [(0, 60, pair_dma(1) + pair_dma(2), "mem")]
    else:
        extra[22] = [(50, 50, p2, "mem")]
        extra[23] = [(24, 30, c2, "mem"), (31, 63, k0_dma() + pair_dma(0) + pair_dma(1) + pair_dma(2), "mem")]
    extra[22].append((0, 60, k2.att_setup(k)))
    res = lambda b, ks: a(64 * b + 4 * ks, 4)

    def res_wait(step, b, ks):
        if step < 8: return [lambda: k.lgwait(("CR", 4 * (step // 2) + b))]
        if step >= 16: return [lambda: k.vmwait(("XN", (step - 16) // 2, b))]
        return []
    at_bar = {3: (lambda: k.lgwait(("CR", 11)), None), 4: (lambda: k.lgwait("xw"), None), 6: (lambda: k.vmwait("sj"), lambda: publish(k, 1, 2)), PUB2: (lambda: k.vmwait("kv"), lambda: publish(k, 2, 2))}
    hook = lambda st: stamp(k, {7: 4, 15: 5, 21: 6, 23: 7}[st], ts) if st in (7, 15, 21, 23) else None
    if steps_ts:
        hook = lambda st: stamp(k, 4 + st, True)
        ts = False
    k1.proj_core(k, steps, res, extra, res_wait, lambda st: epi_kv(st) if st < 16 else epi_q(st), hook=hook, at_barrier=at_bar)
    k2.att_phase(k, A, pair_dma, ts, 8, lambda: k3.setup(k), lambda: k3.early_items(k, k2.S_WR, k1.S_W4K))
    stamp(k, 12, ts)

    def hand_off(phase, shadow, lds):
        if lds: k("s_barrier")
        run(k, shadow)
        k.vmwait("st"); k("s_barrier"); publish(k, phase, 2)
    SH = int(os.environ.get("SH", "1"))
    k.vm = ["st"]
    pre = k3.pre_items(k)
    n_ = 18 if SH else 0
    hand_off(3, pre[:n_], False)
    if "g" in k2.CW: code_warm(k, k.name + "_cG", k.name + "_cend", 2, "v3")
    stamp(k, 13, ts)
    e_ = k4.early(k)
    left = k3.o_phase(k, 'o' if os.environ.get('OTS') and light else ts, 14, (e_[0], [], []), pre[n_:], e_[2] + e_[1] if k4.WV else [])
    stamp(k, 16, ts)
    k(f"{k.name}_cG:")
    hand_off(4, left + k4.wdma(k, 2) if k4.WV else e_[2], False)
    k5.setup(k)
    k4.g_phase(k, ts, 17, k5.g_extra(k), lambda: [] if k4.WV else k4.early(k)[1])
    stamp(k, 20, ts)
    rest = k5.REST[k5.NEP:]
    k.vm = ["st"] + ["?"] * 0
    hand_off(5, k5.loads(k, "A", rest[:3]), False)
    k5.d_phase(k, ts, 21, k5.loads(k, "A", rest[3:]) if rest[3:] else [])
    lab = k.label("ep")
    k(f"""
    s_or_b32 s4, s2, s3
    s_cmp_eq_u32 s4, 0
    s_cbranch_scc0 {lab}
    v_mov_b32 v2, {EPOCH}
    v_mov_b32 v3, s{S_TAG}
    s_mov_b64 exec, 1
    buffer_store_dword v3, v2, s[{S_FL}:{S_FL+3}], 0 offen sc1
    s_mov_b64 exec, -1
    {lab}:
    """)
    stamp(k, 23, ts or light)
    stamp_flush(k, 0, ts or steps_ts or light)
    k("s_endpgm")
    A.emit_slow()
    for out, back, vaddr, vt, wide in stubs:
        k(f"{out}:")
        await_flags(k, vaddr, vt, wide)
        k(f"s_branch {back}")
    k(f"{k.name}_cend:\ns_endpgm")
    txt = build_file([k])
    errs = hazard.check(txt)
    for x in errs[:40]: print(x)
    assert not errs
    races = racecheck.check(txt)
    for x in races[:20]: print("RACE", x)
    assert not races
    return txt


if __name__ == "__main__":
    open("t_all.s", "w").write(build(True))
    open("t_steps.s", "w").write(build(True, steps_ts=True))
    open("t_light.s", "w").write(build(False, light=True))
    txt = build(False)
    open("t_nots.s", "w").write(txt)
    txt = txt.replace(f"; @launch kernel={NAME} grid", "; @launch grid")
    open("sequential_preLN__compressed_kv_cla__glu_gated_swiglu__prompt.s", "w").write(txt)
    print(len(txt))
```
